```python
import torch

def _softmax(x, axis=-1):
    return torch.softmax(x, dim=axis)
def _gelu(x):
    return torch.nn.functional.gelu(x, approximate="tanh")
def _silu(x):
    return torch.nn.functional.silu(x)
def _sigmoid(x):
    return torch.sigmoid(x)
def _layernorm(x, axis=-1, eps=1e-5):
    m = x.mean(dim=axis, keepdim=True)
    v = x.var(dim=axis, keepdim=True, unbiased=False)
    return (x - m) / torch.sqrt(v + eps)
def _scatter_add(tgt, idx, src, axis=0):
    return tgt.clone().index_add_(axis, idx, src)
def _segment_sum(src, seg, n):
    out = torch.zeros((n,) + src.shape[1:], dtype=src.dtype)
    return out.index_add_(0, seg, src)
def _pad(x, pw):
    flat = tuple(v for pair in reversed(pw) for v in pair)
    return torch.nn.functional.pad(x, flat)

kernel_name = 'standalone__gqa_softmax__near_ridge'

def setup_inputs():

    _w = (lambda a: (lambda t: t.to(torch.bfloat16) if t.is_floating_point() else t)(torch.as_tensor(a)))
    B, Hq, Hkv, Sq, Sk, D = 16, 32, 16, 496, 512, 128
    return {
        "q": _w((lambda *s: torch.randn(*s, dtype=torch.bfloat16) * 0.8)(B, Hq, Sq, D)),
        "k": _w((lambda *s: torch.randn(*s, dtype=torch.bfloat16) * 0.8)(B, Hkv, Sk, D)),
        "v": _w((lambda *s: torch.randn(*s, dtype=torch.bfloat16) * 0.05)(B, Hkv, Sk, D)),
    }

def reference(q, k, v):
    B, Hq, Sq, D = q.shape
    Hkv = k.shape[1]
    rep = Hq // Hkv
    k = (lambda x, n, axis: torch.repeat_interleave(x, n, dim=axis))(k, rep, axis=1)
    v = (lambda x, n, axis: torch.repeat_interleave(x, n, dim=axis))(v, rep, axis=1)
    scale = D ** -0.5
    scores = torch.einsum("bhqd,bhkd->bhqk", q, k) * scale
    p = _softmax(scores, axis=-1)
    return torch.einsum("bhqk,bhkd->bhqd", p, v)
```

```python
import re, sys

VALU_KINDS = ('valu', 'trans', 'perm')
MEM_KINDS = ('ds', 'dma', 'vld', 'vst')
SALU_KINDS = ('salu', 'wlg', 'wvm', 'bar')

def rng(p, a, n):
    return [f'{p}{i}' for i in range(a, a + n)]

class Op:
    __slots__ = ('kind', 'text', 'R', 'W', 'C', 'due', 'earliest', 'targets', 'preds', 'succs', 'idx',
                 'pos', 'cyc', 'name', 'midx', 'extra', 'prev_targets')
    def __init__(self, kind, text, R=(), W=(), C=(), due=None, earliest=None, targets=None, name=None, after=()):
        self.kind = kind; self.text = text
        self.R = list(R); self.W = list(W); self.C = list(C)
        self.due = due; self.earliest = earliest
        self.targets = targets; self.prev_targets = None
        self.preds = {}; self.succs = []
        self.pos = None; self.cyc = None; self.name = name; self.midx = None
        self.extra = list(after)
    def cost(self):
        return 8 if self.kind in ('trans', 'mfma') else 4

def is_reg(r):
    return re.match(r'^[va]\d+$', r) is not None

def hz_raw(p, c, r):
    if r == 'm0':
        return 1 if c.kind == 'dma' else 0
    if not is_reg(r):
        if p.kind in VALU_KINDS and c.kind in MEM_KINDS: return 5
        if p.kind in VALU_KINDS and c.kind in VALU_KINDS: return 2
        if p.kind in VALU_KINDS: return 1
        return 0
    if p.kind == 'mfma':
        if c.kind == 'mfma':
            return 0 if (r in c.C and set(c.C) == set(p.W)) else 8
        return 8
    if p.kind in VALU_KINDS:
        if c.kind == 'mfma': return 2
        if c.kind == 'perm': return 2
        if p.kind == 'trans' and c.kind != 'trans': return 1
        return 0
    return 0
def hz_waw(p, c, r):
    if is_reg(r) and p.kind == 'mfma' and c.kind != 'mfma': return 8
    return 0
def hz_war(p, c, r):
    if not is_reg(r): return 0
    if p.kind == 'mfma' and r in p.C and c.kind in VALU_KINDS: return 3
    if p.kind == 'vst' and c.kind in VALU_KINDS: return 2
    if p.kind == 'vst': return 1
    return 0

def build_deps(ops):
    lastw = {}; readers = {}
    prev_m = None
    mi = 0
    for i, o in enumerate(ops):
        o.idx = i
        def add(p, d):
            if p is o: return
            o.preds[p] = max(o.preds.get(p, 0), d)
        for r in o.R:
            if r in lastw: add(lastw[r], hz_raw(lastw[r], o, r))
        for r in o.W:
            if r in lastw: add(lastw[r], hz_waw(lastw[r], o, r))
            for p in readers.get(r, []): add(p, hz_war(p, o, r))
        for p in o.extra: add(p, 0)
        if o.targets:
            for p in o.targets: add(p, 0)
        if o.kind == 'mfma':
            if prev_m is not None: add(prev_m, 0)
            prev_m = o; o.midx = mi; mi += 1
        for r in o.R: readers.setdefault(r, []).append(o)
        for r in o.W:
            lastw[r] = o; readers[r] = []
    for o in ops:
        for p in o.preds: p.succs.append(o)
    return mi

def compute_due(ops, nm, ds_lead):
    INF = nm + 1000
    for o in reversed(ops):
        if o.kind == 'mfma':
            o.due = o.midx; continue
        d = INF
        for s in o.succs:
            sd = s.due
            if s.kind == 'wlg' and o.kind == 'ds': sd -= ds_lead
            elif s.kind != 'mfma': sd -= 0.25
            d = min(d, sd)
        if o.due is not None: d = min(d, o.due)
        o.due = d

def schedule(ops, ds_lead=10, ds_lat=160, vm_space=3, verbose=False):
    nm = build_deps(ops)
    compute_due(ops, nm, ds_lead)
    mf = [o for o in ops if o.kind == 'mfma']
    pend = [o for o in ops if o.kind != 'mfma']
    out = []
    st = dict(cyc=0, lastvm=-100, k=-1, lds_out=[])
    def emit(o):
        o.pos = len(out); o.cyc = st['cyc']; out.append(o)
        if o.kind in ('dma', 'vld', 'vst'): st['lastvm'] = st['k']
    def ready(o):
        n = len(out)
        for p, d in o.preds.items():
            if p.pos is None or n - p.pos - 1 < d: return False
        return True
    def allowed(o):
        if o.earliest is not None and st['k'] < o.earliest: return False
        if o.kind in ('dma', 'vld', 'vst') and st['k'] - st['lastvm'] < vm_space and o.due > st['k'] + 1: return False
        return True
    def cands(kinds, force=False):
        c = [o for o in pend if o.kind in kinds and ready(o) and (force or allowed(o))]
        c.sort(key=lambda o: (o.due, o.idx))
        return c
    def take(o):
        pend.remove(o); emit(o)
    def nop():
        o = Op('salu', 's_nop 0'); emit(o); st['cyc'] += 4
    def wait_ok(o):
        if o.kind == 'wlg':
            if o.due <= st['k'] + 1.01: return True
            return st['cyc'] - max([t.cyc for t in o.targets] or [-1000]) >= ds_lat and o.due <= st['k'] + 6
        if o.kind in ('wvm', 'bar'):
            return o.earliest is None or st['k'] >= o.earliest
        return True
    def needed_closure(m):
        seen = set(); stack = [m]
        while stack:
            x = stack.pop()
            for p in x.preds:
                if p.pos is None and p not in seen and p.kind != 'mfma':
                    seen.add(p); stack.append(p)
        return seen
    stats = dict(under=0, over=0, pen=0, nops=0)
    def fill_gap():
        used = 0; valu_seen = False
        c = [o for o in cands(SALU_KINDS) if wait_ok(o)]
        if c: take(c[0])
        while used < 8:
            c = cands(VALU_KINDS + (MEM_KINDS if not valu_seen else ()))
            if used > 0: c = [o for o in c if o.cost() + used <= 8]
            if not c: break
            o = c[0]
            if used == 0:
                small = [x for x in c if x.cost() == 4]
                if o.cost() == 4:
                    if len(small) < 2:
                        ex = [x for x in c if x.cost() == 8]
                        if ex and o.due > st['k'] + 2: o = ex[0]
                    else:
                        a, b = small[0], small[1]
                        if a.kind in VALU_KINDS and b.kind in MEM_KINDS: o = b
            take(o); used += o.cost(); st['cyc'] += o.cost()
            if o.kind in VALU_KINDS: valu_seen = True
        return used, valu_seen
    used, valu_seen = 0, True
    gapstart = 0
    for k, m in enumerate(mf + [None]):
        while True:
            if m is None:
                if not pend: break
                need = set(pend)
            else:
                if ready(m): break
                need = needed_closure(m)
            c = [o for o in cands(VALU_KINDS + MEM_KINDS + SALU_KINDS, force=True) if o in need]
            if c:
                o = c[0]
                if o.kind == 'wlg' and st['cyc'] - max([t.cyc for t in o.targets] or [-1000]) < ds_lat:
                    alt = [x for x in c if x.kind != 'wlg'] or cands(VALU_KINDS)
                    if alt: o = alt[0]
            else:
                c2 = cands(VALU_KINDS) or [x for x in cands(SALU_KINDS) if wait_ok(x) and x.kind == 'salu']
                if c2: o = c2[0]
                else:
                    nop(); used += 4; stats['nops'] += 1; continue
            if o.kind in MEM_KINDS and valu_seen:
                st['cyc'] += 8; used += 8; stats['pen'] += 1
            take(o); used += o.cost(); st['cyc'] += o.cost()
            valu_seen = o.kind in VALU_KINDS or (valu_seen and o.kind not in MEM_KINDS)
        if k > 0:
            if used < 8:
                stats['under'] += 8 - used; st['cyc'] += 8 - used
            else: stats['over'] += used - 8
        if m is None: break
        st['k'] = k
        emit(m); st['cyc'] += 8
        used, valu_seen = fill_gap()
    stats['cycles'] = st['cyc']; stats['ninst'] = len(out)
    return out, stats

def check_hazards(seq):
    lastw = {}; readers = {}
    bad = 0
    for n, o in enumerate(seq):
        def chk(pn, p, d, what, r):
            nonlocal bad
            if n - pn - 1 < d:
                print(f'HAZARD {what} {r}: [{pn}] {p.text} -> [{n}] {o.text} need {d}', file=sys.stderr); bad += 1
        for r in o.R:
            if r in lastw: chk(*lastw[r], hz_raw(lastw[r][1], o, r), 'RAW', r)
        for r in o.W:
            if r in lastw: chk(*lastw[r], hz_waw(lastw[r][1], o, r), 'WAW', r)
            for pn, p in readers.get(r, []):
                if p is not o: chk(pn, p, hz_war(p, o, r), 'WAR', r)
        for r in o.R: readers.setdefault(r, []).append((n, o))
        for r in o.W:
            lastw[r] = (n, o); readers[r] = []
    return bad
```

```python
import sys, struct, math
from sched import *

OPT = dict(store_flags='', ds_lead=10, ds_lat=160, vm_space=3, debug=0, force_slow=0, q_flags='', kv_flags='')
for a in sys.argv[2:]:
    k, v = a.split('=')
    OPT[k] = int(v) if v.lstrip('-').isdigit() else v.replace('+', ' ')

NAME = 'standalone__gqa_softmax__near_ridge_kernel'
def f32(x): return struct.unpack('<I', struct.pack('<f', x))[0]
CSCALE = math.log2(math.e) / math.sqrt(128.0)
QBYTES = 16*32*496*128*2
KBYTES = 16*16*512*128*2
PAIRQ = 992*256
PAIRK = 512*256

vKa, vVa, vQlo, vQhi = 1, 2, 3, 4
vKd = [5, 6, 7, 8]
vNM = [10, 11, 12, 13]
vRL = [14, 15, 16, 17]
vBias = 18
vT = [20, 21, 22, 23]
def S(buf, qt): return 32 + 16*buf + 4*qt
def P(par, h, qt): return 64 + 32*par + 16*h + 4*qt
def O(T, qt): return 128 + 16*T + 4*qt
def Q(qt, ks): return 16*qt + 4*ks
def QN(qt, ks): return 64 + 16*qt + 4*ks
def KF(buf, ks): return 128 + 16*buf + 4*ks
def VF(buf, Tb, h): return 160 + 16*buf + 8*Tb + 4*h
def RS(qt): return 192 + 4*qt
ONES = 208
sQ, sK, sV, sO, sKn, sVn = 4, 8, 12, 16, 20, 24
sKV, sKVn = 28, 29
sQn = [30, 31]; sOo = [32, 33]
sC, sNC, sThr, sB, sFlag, sW4k = 34, 35, 36, 37, 38, 39
sTK, sTV = 40, 41
sCmp = [48, 50, 52, 54]
VBASE = 65536

def vr(a, n): return f'v[{a}:{a+n-1}]'
def ar(a, n): return f'a[{a}:{a+n-1}]'
def srd(a): return f's[{a}:{a+3}]'

def mfma(dp, d, ap, a, bp, b, zero):
    c = '0' if zero else f'{dp}[{d}:{d+3}]'
    D = rng(dp, d, 4)
    return Op('mfma', f'v_mfma_f32_16x16x32_bf16 {dp}[{d}:{d+3}], {ap}[{a}:{a+3}], {bp}[{b}:{b+3}], {c}',
              R=rng(ap, a, 4) + rng(bp, b, 4) + ([] if zero else D), W=D, C=([] if zero else D))
def valu(text, R, W, kind='valu', **kw): return Op(kind, text, R=R, W=W, **kw)

def op_RK(a, tile, kt):
    slot = tile % 4
    l = []
    for ks in range(4):
        d = KF(a % 2, ks)
        l.append(Op('ds', f'ds_read_b128 {ar(d,4)}, v{vKa} offset:{slot*16384 + kt*4096 + ks*256}',
                    R=[f'v{vKa}', f'Krdy{tile}'], W=rng('a', d, 4), name=('RK', a, ks)))
    return l
def op_RV(b, tile, u):
    slot = tile % 4
    l = []
    for Tb in range(2):
        for h in range(2):
            for jh in range(2):
                d = VF(b % 2, Tb, h) + 2*jh
                off = slot*16384 + h*8192 + jh*4096 + u*256 + Tb*8
                l.append(Op('ds', f'ds_read_b64_tr_b16 {ar(d,2)}, v{vVa} offset:{off}',
                            R=[f'v{vVa}', f'Vrdy{tile}'], W=rng('a', d, 2), name=('RV', b, Tb, h, jh)))
    return l
def op_QK(a):
    l = []
    for qt in range(4):
        for ks in range(4):
            l.append(mfma('v', S(a % 2, qt), 'a', KF(a % 2, ks), 'a', Q(qt, ks), ks == 0))
    return l
def op_PV(b):
    t, u = divmod(b, 4)
    l = []
    for Tb in range(2):
        for qt in range(4):
            for h in range(2):
                l.append(mfma('v', O(2*u+Tb, qt), 'a', VF(b % 2, Tb, h), 'v', P(t % 2, h, qt), t == 0 and h == 0))
    return l
def op_RS(t, qt):
    return [mfma('a', RS(qt), 'a', ONES, 'v', P(t % 2, h, qt), t == 0 and h == 0) for h in range(2)]
def op_SM(a):
    t, kt = divmod(a, 4)
    l = []
    for qt in range(4):
        s = S(a % 2, qt)
        for r in range(4):
            l.append(valu(f'v_fma_f32 v{s+r}, v{s+r}, s{sC}, v{vNM[qt]}', [f'v{s+r}', f'v{vNM[qt]}'], [f'v{s+r}']))
        for r in range(4):
            l.append(valu(f'v_exp_f32 v{s+r}, v{s+r}', [f'v{s+r}'], [f'v{s+r}'], kind='trans'))
        p = P(t % 2, kt // 2, qt) + 2*(kt % 2)
        for i in range(2):
            l.append(valu(f'v_cvt_pk_bf16_f32 v{p+i}, v{s+2*i}, v{s+2*i+1}', [f'v{s+2*i}', f'v{s+2*i+1}'], [f'v{p+i}']))
    return l
def perm(n, a, b): return valu(f'v_permlane{n}_swap_b32 v{a}, v{b}', [f'v{a}', f'v{b}'], [f'v{a}', f'v{b}'], kind='perm')
def op_reduce():
    t = vT; n = vNM
    mx = lambda d, a, b: valu(f'v_max_f32 v{d}, v{a}, v{b}', [f'v{a}', f'v{b}'], [f'v{d}'])
    mv = lambda d, a: valu(f'v_mov_b32 v{d}, v{a}', [f'v{a}'], [f'v{d}'])
    return [perm(16, t[0], t[1]), perm(16, t[2], t[3]), mx(t[0], t[0], t[1]), mx(t[2], t[2], t[3]),
            perm(32, t[0], t[2]), mx(t[0], t[0], t[2]),
            valu(f'v_fma_f32 v{n[0]}, v{t[0]}, s{sNC}, v{vBias}', [f'v{t[0]}', f'v{vBias}'], [f'v{n[0]}']),
            mv(n[2], n[0]), perm(32, n[0], n[2]), mv(n[1], n[0]), mv(n[3], n[2]),
            perm(16, n[0], n[1]), perm(16, n[2], n[3])]
def op_MAX():
    l = []
    for qt in range(4):
        s = S(0, qt)
        l.append(valu(f'v_max3_f32 v{vT[qt]}, v{s}, v{s+1}, v{s+2}', rng('v', s, 3), [f'v{vT[qt]}']))
        l.append(valu(f'v_max_f32 v{vT[qt]}, v{vT[qt]}, v{s+3}', [f'v{vT[qt]}', f'v{s+3}'], [f'v{vT[qt]}']))
    return l + op_reduce()
def op_DMA(which, tile, bar):
    slot = tile % 4
    nxt = tile >= 8
    base = sKVn if nxt else sKV
    st = sTK if which == 'K' else sTV
    d = (sKn if nxt else sK) if which == 'K' else (sVn if nxt else sV)
    l = [Op('salu', f's_add_u32 s{st}, s{base}, {(tile % 8)*16384}', R=[f's{base}'], W=[f's{st}', 'scc']),
         Op('salu', f's_add_u32 m0, s{sW4k}, {slot*16384 + (VBASE if which == "V" else 0)}', R=[], W=['m0', 'scc'])]
    for n in range(4):
        va = vKd[n] if which == 'K' else vKd[0]
        l.append(Op('dma', f'buffer_load_dwordx4 v{va}, {srd(d)}, s{st} offen offset:{n*1024} lds {OPT["kv_flags"]}'.rstrip(),
                    R=[f'v{va}', f's{st}', 'm0'] + ([bar] if bar else []), W=[], name=(which, tile, n)))
    return l
def op_QL(dst):
    l = []
    for qt in range(4):
        for ks in range(4):
            d = dst(qt, ks)
            va = vQlo if qt < 2 else vQhi
            l.append(Op('vld', f'buffer_load_dwordx4 {ar(d,4)}, v{va}, {srd(sQ)}, s{sQn[qt%2]} offen offset:{ks*64} {OPT["q_flags"]}'.rstrip(),
                        R=[f'v{va}', f's{sQn[qt%2]}'], W=rng('a', d, 4), name=('Q', qt, ks)))
    return l
def op_L():
    l = []
    for qt in range(4):
        r = vRL[qt]
        l.append(valu(f'v_accvgpr_read_b32 v{r}, a{RS(qt)}', [f'a{RS(qt)}'], [f'v{r}']))
        l.append(valu(f'v_cmp_nge_f32 s[{sCmp[qt]}:{sCmp[qt]+1}], s{sThr}, v{r}', [f'v{r}'], [f's{sCmp[qt]}']))
        l.append(valu(f'v_rcp_f32 v{r}, v{r}', [f'v{r}'], [f'v{r}'], kind='trans'))
    return l
def op_EPI(u):
    l = []
    for qt in range(4):
        a, b = O(2*u, qt), O(2*u+1, qt)
        for x in list(range(a, a+4)) + list(range(b, b+4)):
            l.append(valu(f'v_mul_f32 v{x}, v{x}, v{vRL[qt]}', [f'v{x}', f'v{vRL[qt]}'], [f'v{x}']))
        for i, x in enumerate([a, a+2, b, b+2]):
            l.append(valu(f'v_cvt_pk_bf16_f32 v{a+i}, v{x}, v{x+1}', [f'v{x}', f'v{x+1}'], [f'v{a+i}']))
        va = vQlo if qt < 2 else vQhi
        l.append(Op('vst', f'buffer_store_dwordx4 {vr(a,4)}, v{va}, {srd(sO)}, s{sOo[qt%2]} offen offset:{u*64} {OPT["store_flags"]}'.rstrip(),
                    R=rng('v', a, 4) + [f'v{va}', f's{sOo[qt%2]}'], W=[], name=('O', u, qt)))
    return l
def wlg(targets, tag, prev=None):
    o = Op('wlg', None, W=[tag], targets=targets)
    o.prev_targets = prev
    return o

def build_body():
    ops = []
    nm = [0]
    def add(l, need=None):
        for i, o in enumerate(l):
            if need and i == 0: o.R.append(need)
            if o.kind == 'mfma': nm[0] += 1
            ops.append(o)
        return l
    byname = {}
    start = {}; n = 0
    for s in range(1, 37):
        start[s] = n
        if s <= 31: n += 16
        if 4 <= s <= 35: n += 16 + (2 if s < 32 else (8 if s == 32 else 0))
    barpos = {nn: start[4*nn+3] + (16 if nn >= 1 else 1) for nn in range(8)}
    barpos[-1] = -1; barpos[8] = start[36]
    def spread(l, lo, hi):
        mem = [o for o in l if o.kind in MEM_KINDS]
        for i, o in enumerate(mem):
            pos = lo + (hi - lo) * (i + 0.5) / len(mem)
            o.earliest = int(pos) - 2; o.due = pos + 4
        for i, o in enumerate(l):
            if o.kind == 'salu':
                nx = next(x for x in l[i:] if x.kind in MEM_KINDS)
                o.earliest = nx.earliest - 6
    def dma_interval(nn):
        bar = f'bar{nn}' if nn >= 0 else None
        l = op_DMA('K', nn + 4, bar) + op_DMA('V', nn + 3, bar)
        spread(l, barpos[nn] + 2, barpos[nn+1] - 6)
        for o in l:
            if o.name: byname[o.name] = o
        add(l)
    ql = op_QL(QN)
    spread(ql, start[5], start[27])
    add(op_MAX())
    dma_interval(-1)
    qi = 0
    for s in range(1, 36):
        lastw = None
        if s <= 31:
            if s == 1:
                w = wlg([], 'wK1', prev=[('RK', 33, ks) for ks in range(4)])
                w.due = -1
            else:
                rk = add(op_RK(s, s // 4, s % 4))
                w = wlg(rk, f'wK{s}')
            add([w]); lastw = w
            add(op_QK(s), f'wK{s}')
        if s - 1 <= 31: add(op_SM(s - 1))
        while qi < 16 and ql[qi].earliest < start[s+1]:
            add([ql[qi]]); qi += 1
        if s >= 4:
            b = s - 4
            rv = add(op_RV(b, b // 4, b % 4))
            w = wlg(rv, f'wV{b}'); add([w])
            if s == 32:
                for qt in range(4): add(op_RS(7, qt))
                add(op_L())
        if s % 4 == 3 and s <= 31:
            nn = s // 4
            names = [('K', nn+1, i) for i in range(4)] + [('V', nn, i) for i in range(4)]
            if nn >= 2:
                wv = Op('wvm', None, W=[f'wvm{nn}'], targets=[byname[x] for x in names])
            else:
                wv = Op('wvm', None, W=[f'wvm{nn}'], targets=[])
                wv.prev_targets = [(a, t + 8, i) for a, t, i in names]
            wv.earliest = barpos[nn] - 3
            R = [f'wvm{nn}', f'wK{s}'] + ([f'wV{s-4}'] if s >= 4 else [])
            bo = Op('bar', 's_barrier', R=R, W=[f'bar{nn}', f'Krdy{nn+1}', f'Vrdy{nn}'])
            bo.earliest = barpos[nn] - 1; bo.due = barpos[nn] + 1
            add([wv, bo])
        if s >= 4:
            add(op_PV(b), f'wV{b}')
            if s < 32: add(op_RS(b // 4, b % 4))
        if s % 4 == 3 and s // 4 <= 6: dma_interval(s // 4)
        if s == 31:
            wq = Op('wvm', None, W=['wQ'], targets=ql); wq.earliest = start[31]
            add([wq])
            for i in range(64):
                add([valu(f'v_accvgpr_mov_b32 a{i}, a{64+i}', [f'a{64+i}', 'wQ'], [f'a{i}'])])
        if s >= 32: add(op_EPI(s - 32))
    rk = add(op_RK(32, 8, 0)); add([wlg(rk, 'wK32')])
    rk1 = add(op_RK(33, 8, 1))
    for o in rk1: o.due = start[36] + 8
    add(op_QK(32), 'wK32')
    return ops

def resolve_waits(body, pro_vm, pro_ds):
    for kind, kinds, pro, fmt, mx in (('wvm', ('dma', 'vld', 'vst'), pro_vm, 'vmcnt', 63), ('wlg', ('ds',), pro_ds, 'lgkmcnt', 15)):
        names_body = [o.name for o in body if o.kind in kinds]
        cnt = 0; posn = {}
        for o in body:
            if o.kind in kinds:
                posn[o] = cnt; cnt += 1
            elif o.kind == kind:
                N = 1000
                if o.targets: N = cnt - 1 - max(posn[t] for t in o.targets)
                if o.prev_targets:
                    for prev in (names_body, pro):
                        last = max(prev.index(x) for x in o.prev_targets)
                        N = min(N, len(prev) - 1 - last + cnt)
                assert 0 <= N < 1000
                o.text = f's_waitcnt {fmt}({min(N, mx)})'

def max_outstanding_ds(body):
    out = 0; mx = 0
    for o in body + body:
        if o.kind == 'ds': out += 1; mx = max(mx, out)
        elif o.kind == 'wlg': out = min(out, int(o.text.split('(')[1][:-1]))
    return mx

def lines(ops): return ''.join('    ' + o.text + '\n' for o in ops)
def padded(ops):
    build_deps(ops)
    out = []
    for o in ops:
        need = 0
        for p, d in o.preds.items():
            need = max(need, d - (len(out) - p.pos - 1))
        for _ in range(need): out.append(Op('salu', 's_nop 0'))
        o.pos = len(out); out.append(o)
    return out

def main():
    body, stats = schedule(build_body(), OPT['ds_lead'], OPT['ds_lat'], OPT['vm_space'])
    print(stats, file=sys.stderr)
    A = []
    w = A.append
    w(f'''; GQA attention forward, B=16 Hq=32 Hkv=16 Sq=496 Sk=512 D=128, bf16.  Generated by gen/gen.py (own generator).
; @launch grid=(256,1,1) block=(256,1,1) lds=163840
.amdgcn_target "amdgcn-amd-amdhsa--gfx950"
.text
.globl {NAME}
.p2align 8
.type {NAME},@function
{NAME}:
    s_cmp_ge_u32 s2, 256
    s_cbranch_scc1 L_end
    s_load_dwordx4 s[56:59], s[0:1], 0
    s_load_dwordx4 s[60:63], s[0:1], 16
    v_lshrrev_b32 v20, 6, v0
    v_and_b32 v21, 63, v0                 ; lane
    v_readfirstlane_b32 s42, v20          ; wave
    v_and_b32 v22, 15, v21                ; i
    v_lshrrev_b32 v23, 4, v21             ; g
    v_lshrrev_b32 v24, 2, v22             ; i/4
    v_and_b32 v25, 3, v21                 ; i%4
    ; DMA lane part: (i/4)*256 + g*64 + ((i%4)^f(n))*16
    v_lshlrev_b32 v26, 8, v24
    v_lshl_add_u32 v26, v23, 6, v26
    v_lshl_add_u32 v{vKd[0]}, v25, 4, v26
    v_xor_b32 v{vKd[1]}, 48, v{vKd[0]}
    v_xor_b32 v{vKd[2]}, 32, v{vKd[0]}
    v_xor_b32 v{vKd[3]}, 16, v{vKd[0]}
    v_lshlrev_b32 v26, 8, v22
    v_lshl_add_u32 v{vQlo}, v23, 4, v26
    s_and_b32 s43, s2, 7                  ; xcd
    s_lshr_b32 s44, s2, 3
    s_lshr_b32 s45, s44, 2                ; group
    s_and_b32 s44, s44, 3                 ; qb
    s_lshl_b32 s43, s43, 5
    s_add_u32 s43, s43, s45               ; pair0
    s_lshl_b32 s{sW4k}, s42, 12
    s_lshl_b32 s{sKV}, s43, 17
    s_add_u32 s{sKV}, s{sKV}, s{sW4k}
    s_mul_i32 s45, s43, {PAIRQ}
    s_lshl_b32 s46, s44, 16
    s_add_u32 s45, s45, s46
    s_lshl_b32 s46, s42, 14
    s_add_u32 s{sQn[0]}, s45, s46
    s_add_u32 s{sQn[1]}, s{sQn[0]}, 4096
    s_lshl_b32 s46, s44, 2
    s_add_u32 s46, s46, s42
    s_cmp_eq_u32 s46, 15
    s_cselect_b32 s46, 0x40000000, 8192
    s_cselect_b32 s47, 0xff800000, 0
    v_add_u32 v{vQhi}, s46, v{vQlo}
    s_mov_b32 s{sQ+2}, {QBYTES}
    s_mov_b32 s{sQ+3}, 0x20000
    s_mov_b32 s{sK+2}, {KBYTES}
    s_mov_b32 s{sK+3}, 0x20000
    s_mov_b32 s{sV+2}, {KBYTES}
    s_mov_b32 s{sV+3}, 0x20000
    s_mov_b32 s{sO+2}, {QBYTES}
    s_mov_b32 s{sO+3}, 0x20000
    s_mov_b32 s{sKn+2}, {KBYTES}
    s_mov_b32 s{sKn+3}, 0x20000
    s_mov_b32 s{sVn+2}, {KBYTES}
    s_mov_b32 s{sVn+3}, 0x20000
    s_mov_b32 s{sKVn}, s{sKV}
    s_waitcnt lgkmcnt(0)
    s_mov_b32 s{sQ}, s56
    s_mov_b32 s{sQ+1}, s57
    s_mov_b32 s{sK}, s58
    s_mov_b32 s{sK+1}, s59
    s_mov_b32 s{sKn}, s58
    s_mov_b32 s{sKn+1}, s59
    s_mov_b32 s{sV}, s60
    s_mov_b32 s{sV+1}, s61
    s_mov_b32 s{sVn}, s60
    s_mov_b32 s{sVn+1}, s61
    s_mov_b32 s{sO}, s62
    s_mov_b32 s{sO+1}, s63
''')
    pro = op_DMA('K', 8, None) + op_QL(Q) + op_DMA('K', 9, None) + op_DMA('V', 8, None) + op_DMA('K', 10, None) + op_DMA('V', 9, None)
    pro = padded(pro)
    pro_vm = [o.name for o in pro if o.kind in ('dma', 'vld', 'vst')]
    w(lines(pro))
    w(f'''    ; remaining setup under the load latency
    v_sub_u32 v26, 0, v24
    v_and_b32 v26, 3, v26                 ; f(i/4)
    v_xor_b32 v26, v26, v23
    v_lshlrev_b32 v26, 4, v26
    v_lshl_add_u32 v26, v25, 6, v26
    v_lshl_add_u32 v{vKa}, v24, 10, v26
    v_lshlrev_b32 v26, 10, v23
    v_lshl_add_u32 v26, v24, 6, v26
    v_lshl_add_u32 v26, v25, 4, v26
    v_add_u32 v{vVa}, {VBASE}, v26
    v_mov_b32 v26, s47
    v_cmp_lt_u32 vcc, 31, v21
    v_mov_b32 v27, 0x3f803f80
    s_mov_b32 s{sC}, {hex(f32(CSCALE))}
    v_cndmask_b32 v{vBias}, 0, v26, vcc
    s_mov_b32 s{sNC}, {hex(f32(-CSCALE))}
    s_mov_b32 s{sThr}, {hex(f32(2.0**64) if not OPT['force_slow'] else f32(-1.0))}
    s_mov_b32 s{sB}, 0
    s_mov_b32 s{sFlag}, 0
    v_accvgpr_write_b32 a{ONES}, v27
    v_accvgpr_write_b32 a{ONES+1}, v27
    v_accvgpr_write_b32 a{ONES+2}, v27
    v_accvgpr_write_b32 a{ONES+3}, v27
    s_mov_b32 s{sOo[0]}, s{sQn[0]}
    s_mov_b32 s{sOo[1]}, s{sQn[1]}
    s_add_u32 s{sQn[0]}, s{sQn[0]}, {8*PAIRQ}
    s_add_u32 s{sQn[1]}, s{sQn[1]}, {8*PAIRQ}
    s_add_u32 s{sKVn}, s{sKV}, {8*PAIRK}
    s_waitcnt vmcnt({len(pro_vm) - 4})
    s_barrier
''')
    rk0 = op_RK(32, 8, 0); rk1 = op_RK(33, 8, 1)
    pro_ds = [o.name for o in rk0 + rk1]
    w(lines(rk0 + rk1))
    w('    s_waitcnt lgkmcnt(4)\n')
    qk0 = op_QK(32)
    for qt in range(4):
        w(f'    s_waitcnt vmcnt({len(pro_vm) - 4 - 4*(qt+1)})\n')
        w(lines(qk0[4*qt:4*qt+4]))
    w('    s_nop 7\n')
    resolve_waits(body, pro_vm, pro_ds)
    print('max outstanding ds', max_outstanding_ds(body), file=sys.stderr)
    tail_txt = f'''    s_or_b64 s[{sCmp[0]}:{sCmp[0]+1}], s[{sCmp[0]}:{sCmp[0]+1}], s[{sCmp[1]}:{sCmp[1]+1}]
    s_or_b64 s[{sCmp[2]}:{sCmp[2]+1}], s[{sCmp[2]}:{sCmp[2]+1}], s[{sCmp[3]}:{sCmp[3]+1}]
    s_or_b64 s[{sCmp[0]}:{sCmp[0]+1}], s[{sCmp[0]}:{sCmp[0]+1}], s[{sCmp[2]}:{sCmp[2]+1}]
    s_cselect_b32 s42, 1, 0
    s_lshl_b32 s42, s42, s{sB}
    s_or_b32 s{sFlag}, s{sFlag}, s42
    s_mov_b32 s{sOo[0]}, s{sQn[0]}
    s_mov_b32 s{sOo[1]}, s{sQn[1]}
    s_mov_b32 s{sKV}, s{sKVn}
    s_add_u32 s{sQn[0]}, s{sQn[0]}, {8*PAIRQ}
    s_add_u32 s{sQn[1]}, s{sQn[1]}, {8*PAIRQ}
    s_add_u32 s{sKVn}, s{sKVn}, {8*PAIRK}
    s_add_u32 s{sB}, s{sB}, 1
    s_cmp_lt_u32 s{sB}, 3
    s_cbranch_scc1 L_block
    s_mov_b32 s{sQ+2}, 0
    s_mov_b32 s{sKn+2}, 0
    s_mov_b32 s{sVn+2}, 0
    s_mov_b32 s{sQn[0]}, 0
    s_mov_b32 s{sQn[1]}, 0
    s_mov_b32 s{sKVn}, 0
    s_cmp_eq_u32 s{sB}, 3
    s_cbranch_scc1 L_block
'''
    tail_ops = [Op('salu', 'x') for _ in range(15)]
    bad = check_hazards(body + tail_ops + body)
    assert bad == 0, bad
    w('.p2align 6\nL_block:\n')
    w(lines(body))
    w(tail_txt)
    w(slow_path())
    w(f'''L_end:
    s_endpgm
.section .rodata,"a"
.p2align 6
.amdhsa_kernel {NAME}
  .amdhsa_next_free_vgpr 512
  .amdhsa_next_free_sgpr 72
  .amdhsa_accum_offset 256
  .amdhsa_group_segment_fixed_size 0
  .amdhsa_kernarg_size 48
  .amdhsa_user_sgpr_count 2
  .amdhsa_user_sgpr_kernarg_segment_ptr 1
  .amdhsa_system_sgpr_workgroup_id_x 1
.end_amdhsa_kernel
''')
    open(sys.argv[1], 'w').write(''.join(A))

def slow_path():
    raw = lambda t: Op('salu', t)
    T = []
    w = T.append
    sPair, sKoff, sJ, sM0 = 64, 65, 66, 67
    w(f'''    s_cmp_eq_u32 s{sFlag}, 0
    s_cbranch_scc1 L_end
    s_waitcnt vmcnt(0) lgkmcnt(0)
    s_mov_b32 s{sQ+2}, {QBYTES}
    s_lshl_b32 s{sM0}, s{sW4k}, 1
    s_add_u32 s{sM0}, s{sM0}, 131072
    s_sub_u32 s42, s{sM0}, {VBASE}
    v_add_u32 v24, s42, v{vVa}
    s_mov_b32 s{sB}, 0
L_slow_blk:
    s_lshr_b32 s42, s{sFlag}, s{sB}
    s_and_b32 s42, s42, 1
    s_cmp_eq_u32 s42, 0
    s_cbranch_scc1 L_slow_next
    s_lshl_b32 s42, s{sB}, 3
    s_add_u32 s{sPair}, s43, s42
    s_mul_i32 s42, s{sPair}, {PAIRQ}
    s_lshl_b32 s46, s44, 16
    s_add_u32 s42, s42, s46
    s_lshl_b32 s46, s{sW4k}, 2
    s_add_u32 s{sQn[0]}, s42, s46
    s_add_u32 s{sQn[1]}, s{sQn[0]}, 4096
    s_mov_b32 s{sOo[0]}, s{sQn[0]}
    s_mov_b32 s{sOo[1]}, s{sQn[1]}
''')
    w(lines(op_QL(Q)))
    for qt in range(4): w(f'    v_mov_b32 v{vT[qt]}, 0xff800000\n')
    w(f'''    s_lshl_b32 s{sKoff}, s{sPair}, 17
    s_mov_b32 s{sJ}, 0
L_slow_p1:
''')
    def kload(buf, extra):
        return [raw(f'buffer_load_dwordx4 {ar(KF(buf,ks),4)}, v{vQlo}, {srd(sK)}, s{sKoff} offen offset:{ks*64}') for ks in range(4)]
    w(lines(kload(0, 0)))
    w('    s_waitcnt vmcnt(0)\n')
    l = op_QK(0)
    for qt in range(4):
        s = S(0, qt)
        l.append(valu(f'v_max3_f32 v{vT[qt]}, v{s}, v{s+1}, v{vT[qt]}', [f'v{s}', f'v{s+1}', f'v{vT[qt]}'], [f'v{vT[qt]}']))
        l.append(valu(f'v_max3_f32 v{vT[qt]}, v{s+2}, v{s+3}, v{vT[qt]}', [f'v{s+2}', f'v{s+3}', f'v{vT[qt]}'], [f'v{vT[qt]}']))
    w(lines(padded(l)))
    w(f'''    s_add_u32 s{sKoff}, s{sKoff}, 4096
    s_add_u32 s{sJ}, s{sJ}, 1
    s_cmp_lt_u32 s{sJ}, 32
    s_cbranch_scc1 L_slow_p1
''')
    w(lines(padded(op_reduce())))
    for i in range(128): w(f'    v_mov_b32 v{128+i}, 0\n')
    for i in range(16): w(f'    v_accvgpr_write_b32 a{RS(0)+i}, 0\n')
    w(f'''    s_lshl_b32 s{sKoff}, s{sPair}, 17
    s_mov_b32 s{sJ}, 0
L_slow_p2:
''')
    w(f'    s_mov_b32 m0, s{sM0}\n    s_nop 0\n')
    for n in range(4): w(f'    buffer_load_dwordx4 v{vKd[0]}, {srd(sV)}, s{sKoff} offen offset:{n*1024} lds\n')
    w(lines(kload(0, 0)))
    w(f'    s_add_u32 s{sKoff}, s{sKoff}, 4096\n    s_add_u32 m0, s{sM0}, 4096\n    s_nop 0\n')
    for n in range(4): w(f'    buffer_load_dwordx4 v{vKd[0]}, {srd(sV)}, s{sKoff} offen offset:{n*1024} lds\n')
    w(lines(kload(1, 0)))
    w(f'    s_add_u32 s{sKoff}, s{sKoff}, 4096\n    s_waitcnt vmcnt(0)\n')
    l = op_QK(0) + op_QK(1) + op_SM(0) + op_SM(1)
    for qt in range(4): l.append(mfma('a', RS(qt), 'a', ONES, 'v', P(0, 0, qt), False))
    w(lines(padded(l)))
    for u in range(4):
        for Tb in range(2):
            for jh in range(2):
                d = VF(0, Tb, 0) + 2*jh
                w(f'    ds_read_b64_tr_b16 {ar(d,2)}, v24 offset:{jh*4096 + u*256 + Tb*8}\n')
        w('    s_waitcnt lgkmcnt(0)\n')
        for Tb in range(2):
            for qt in range(4):
                w('    ' + mfma('v', O(2*u+Tb, qt), 'a', VF(0, Tb, 0), 'v', P(0, 0, qt), False).text + '\n')
        w('    s_nop 7\n')
    w(f'''    s_add_u32 s{sJ}, s{sJ}, 1
    s_cmp_lt_u32 s{sJ}, 16
    s_cbranch_scc1 L_slow_p2
    s_nop 7
''')
    l = op_L()
    for u in range(4): l += op_EPI(u)
    w(lines(padded(l)))
    w(f'''    s_waitcnt vmcnt(0)
L_slow_next:
    s_add_u32 s{sB}, s{sB}, 1
    s_cmp_lt_u32 s{sB}, 4
    s_cbranch_scc1 L_slow_blk
''')
    return ''.join(T)

main()
```

```python
import re, sys

VALU_KINDS = ('valu', 'trans', 'perm')
MEM_KINDS = ('ds', 'dma', 'vld', 'vst')
SALU_KINDS = ('salu', 'wlg', 'wvm', 'bar')

def rng(p, a, n):
    return [f'{p}{i}' for i in range(a, a + n)]

class Op:
    __slots__ = ('kind', 'text', 'R', 'W', 'C', 'due', 'earliest', 'targets', 'preds', 'succs', 'idx',
                 'pos', 'cyc', 'name', 'midx', 'extra', 'prev_targets')
    def __init__(self, kind, text, R=(), W=(), C=(), due=None, earliest=None, targets=None, name=None, after=()):
        self.kind = kind; self.text = text
        self.R = list(R); self.W = list(W); self.C = list(C)
        self.due = due; self.earliest = earliest
        self.targets = targets; self.prev_targets = None
        self.preds = {}; self.succs = []
        self.pos = None; self.cyc = None; self.name = name; self.midx = None
        self.extra = list(after)
    def cost(self):
        return 8 if self.kind in ('trans', 'mfma') else 4

def is_reg(r):
    return re.match(r'^[va]\d+$', r) is not None

def hz_raw(p, c, r):
    if r == 'm0':
        return 1 if c.kind == 'dma' else 0
    if not is_reg(r):
        if p.kind in VALU_KINDS and c.kind in MEM_KINDS: return 5
        if p.kind in VALU_KINDS and c.kind in VALU_KINDS: return 2
        if p.kind in VALU_KINDS: return 1
        return 0
    if p.kind == 'mfma':
        if c.kind == 'mfma':
            return 0 if (r in c.C and set(c.C) == set(p.W)) else 8
        return 8
    if p.kind in VALU_KINDS:
        if c.kind == 'mfma': return 2
        if c.kind == 'perm': return 2
        if p.kind == 'trans' and c.kind != 'trans': return 1
        return 0
    return 0
def hz_waw(p, c, r):
    if is_reg(r) and p.kind == 'mfma' and c.kind != 'mfma': return 8
    return 0
def hz_war(p, c, r):
    if not is_reg(r): return 0
    if p.kind == 'mfma' and r in p.C and c.kind in VALU_KINDS: return 3
    if p.kind == 'vst' and c.kind in VALU_KINDS: return 2
    if p.kind == 'vst': return 1
    return 0

def build_deps(ops):
    lastw = {}; readers = {}
    prev_m = None
    mi = 0
    for i, o in enumerate(ops):
        o.idx = i
        def add(p, d):
            if p is o: return
            o.preds[p] = max(o.preds.get(p, 0), d)
        for r in o.R:
            if r in lastw: add(lastw[r], hz_raw(lastw[r], o, r))
        for r in o.W:
            if r in lastw: add(lastw[r], hz_waw(lastw[r], o, r))
            for p in readers.get(r, []): add(p, hz_war(p, o, r))
        for p in o.extra: add(p, 0)
        if o.targets:
            for p in o.targets: add(p, 0)
        if o.kind == 'mfma':
            if prev_m is not None: add(prev_m, 0)
            prev_m = o; o.midx = mi; mi += 1
        for r in o.R: readers.setdefault(r, []).append(o)
        for r in o.W:
            lastw[r] = o; readers[r] = []
    for o in ops:
        for p in o.preds: p.succs.append(o)
    return mi

def compute_due(ops, nm, ds_lead):
    INF = nm + 1000
    for o in reversed(ops):
        if o.kind == 'mfma':
            o.due = o.midx; continue
        d = INF
        for s in o.succs:
            sd = s.due
            if s.kind == 'wlg' and o.kind == 'ds': sd -= ds_lead
            elif s.kind != 'mfma': sd -= 0.25
            d = min(d, sd)
        if o.due is not None: d = min(d, o.due)
        o.due = d

def schedule(ops, ds_lead=10, ds_lat=160, vm_space=3, verbose=False):
    nm = build_deps(ops)
    compute_due(ops, nm, ds_lead)
    mf = [o for o in ops if o.kind == 'mfma']
    pend = [o for o in ops if o.kind != 'mfma']
    out = []
    st = dict(cyc=0, lastvm=-100, k=-1, lds_out=[])
    def emit(o):
        o.pos = len(out); o.cyc = st['cyc']; out.append(o)
        if o.kind in ('dma', 'vld', 'vst'): st['lastvm'] = st['k']
    def ready(o):
        n = len(out)
        for p, d in o.preds.items():
            if p.pos is None or n - p.pos - 1 < d: return False
        return True
    def allowed(o):
        if o.earliest is not None and st['k'] < o.earliest: return False
        if o.kind in ('dma', 'vld', 'vst') and st['k'] - st['lastvm'] < vm_space and o.due > st['k'] + 1: return False
        return True
    def cands(kinds, force=False):
        c = [o for o in pend if o.kind in kinds and ready(o) and (force or allowed(o))]
        c.sort(key=lambda o: (o.due, o.idx))
        return c
    def take(o):
        pend.remove(o); emit(o)
    def nop():
        o = Op('salu', 's_nop 0'); emit(o); st['cyc'] += 4
    def wait_ok(o):
        if o.kind == 'wlg':
            if o.due <= st['k'] + 1.01: return True
            return st['cyc'] - max([t.cyc for t in o.targets] or [-1000]) >= ds_lat and o.due <= st['k'] + 6
        if o.kind in ('wvm', 'bar'):
            return o.earliest is None or st['k'] >= o.earliest
        return True
    def needed_closure(m):
        seen = set(); stack = [m]
        while stack:
            x = stack.pop()
            for p in x.preds:
                if p.pos is None and p not in seen and p.kind != 'mfma':
                    seen.add(p); stack.append(p)
        return seen
    stats = dict(under=0, over=0, pen=0, nops=0)
    def fill_gap():
        used = 0; valu_seen = False
        c = [o for o in cands(SALU_KINDS) if wait_ok(o)]
        if c: take(c[0])
        while used < 8:
            c = cands(VALU_KINDS + (MEM_KINDS if not valu_seen else ()))
            if used > 0:
                c = [o for o in c if o.cost() + used <= 8]
                nv = [o for o in c if o.kind in VALU_KINDS or o.due <= st['k'] - 3]
                if nv: c = nv
            if not c: break
            o = c[0]
            if used == 0:
                small = [x for x in c if x.cost() == 4]
                if o.cost() == 4:
                    if len(small) < 2:
                        ex = [x for x in c if x.cost() == 8]
                        if ex and o.due > st['k'] + 2: o = ex[0]
                    else:
                        a, b = small[0], small[1]
                        if a.kind in VALU_KINDS and b.kind in MEM_KINDS: o = b
            take(o); used += o.cost(); st['cyc'] += o.cost()
            if o.kind in VALU_KINDS: valu_seen = True
        return used, valu_seen
    used, valu_seen = 0, True
    gapstart = 0
    for k, m in enumerate(mf + [None]):
        while True:
            if m is None:
                if not pend: break
                need = set(pend)
            else:
                if ready(m): break
                need = needed_closure(m)
            c = [o for o in cands(VALU_KINDS + MEM_KINDS + SALU_KINDS, force=True) if o in need]
            if c:
                o = c[0]
                if o.kind == 'wlg' and st['cyc'] - max([t.cyc for t in o.targets] or [-1000]) < ds_lat:
                    alt = [x for x in c if x.kind != 'wlg'] or cands(VALU_KINDS)
                    if alt: o = alt[0]
            else:
                c2 = cands(VALU_KINDS) or [x for x in cands(SALU_KINDS) if wait_ok(x) and x.kind == 'salu']
                if c2: o = c2[0]
                else:
                    nop(); used += 4; stats['nops'] += 1; continue
            if o.kind in MEM_KINDS and valu_seen:
                st['cyc'] += 8; used += 8; stats['pen'] += 1
            take(o); used += o.cost(); st['cyc'] += o.cost()
            valu_seen = o.kind in VALU_KINDS or (valu_seen and o.kind not in MEM_KINDS)
        if k > 0:
            if used < 8:
                stats['under'] += 8 - used; st['cyc'] += 8 - used
            else: stats['over'] += used - 8
        if m is None: break
        st['k'] = k
        emit(m); st['cyc'] += 8
        used, valu_seen = fill_gap()
    stats['cycles'] = st['cyc']; stats['ninst'] = len(out)
    return out, stats

def check_hazards(seq):
    lastw = {}; readers = {}
    bad = 0
    for n, o in enumerate(seq):
        def chk(pn, p, d, what, r):
            nonlocal bad
            if n - pn - 1 < d:
                print(f'HAZARD {what} {r}: [{pn}] {p.text} -> [{n}] {o.text} need {d}', file=sys.stderr); bad += 1
        for r in o.R:
            if r in lastw: chk(*lastw[r], hz_raw(lastw[r][1], o, r), 'RAW', r)
        for r in o.W:
            if r in lastw: chk(*lastw[r], hz_waw(lastw[r][1], o, r), 'WAW', r)
            for pn, p in readers.get(r, []):
                if p is not o: chk(pn, p, hz_war(p, o, r), 'WAR', r)
        for r in o.R: readers.setdefault(r, []).append((n, o))
        for r in o.W:
            lastw[r] = (n, o); readers[r] = []
    return bad
```

```python
import sys, struct, math
import sched
from sched import *

OPT = dict(store_flags='', ds_lead=8, ds_lat=120, vm_space=3, debug=0, force_slow=0, q_flags='nt', kv_flags='nt',
           ds_sp=3, vshift=0)
for a in sys.argv[2:]:
    k, v = a.split('=')
    OPT[k] = int(v) if v.lstrip('-').isdigit() else v.replace('+', ' ')

NAME = 'standalone__gqa_softmax__near_ridge_kernel'
def f32(x): return struct.unpack('<I', struct.pack('<f', x))[0]
CSCALE = math.log2(math.e) / math.sqrt(128.0)
QBYTES = 16*32*496*128*2
KBYTES = 16*16*512*128*2
PAIRQ = 992*256
PAIRK = 512*256

vKa, vVa, vOlo, vOhi = 1, 2, 3, 4
vKd = [5, 6, 7, 8]
vQa = 9
vNM = [10, 11, 12, 13]
vRL = [14, 15, 16, 17]
vBias = 18
vRd = 19
vT = [20, 21, 22, 23]
vWr = [24, 25]
def S(buf, qt): return 32 + 16*buf + 4*qt
def P(par, h, qt): return 64 + 32*par + 16*h + 4*qt
def O(T, qt): return 128 + 16*T + 4*qt
def Q(qt, ks): return 16*qt + 4*ks
def QN(qt, ks): return 64 + 16*qt + 4*ks
def KF(buf, ks): return 128 + 16*buf + 4*ks
def VF(buf, Tb, h): return 160 + 16*buf + 8*Tb + 4*h
def RS(qt): return 192 + 4*qt
ONES = 208
def OST(R, n): return (96 if R == 0 else 212) + 4*n
sQ, sK, sV, sO, sKn, sVn, sQB = 4, 8, 12, 16, 20, 24, 68
sKV, sKVn = 28, 29
sQn = [30, 31, 64, 65]
sOo = [32, 33]
sC, sNC, sThr, sB, sFlag, sW4k = 34, 35, 36, 37, 38, 39
sTK, sTV = 40, 41
sCmp = [48, 50, 52, 54]
sPA = 66
VBASE = 65536

def vr(a, n): return f'v[{a}:{a+n-1}]'
def ar(a, n): return f'a[{a}:{a+n-1}]'
def srd(a): return f's[{a}:{a+3}]'

def mfma(dp, d, ap, a, bp, b, zero):
    c = '0' if zero else f'{dp}[{d}:{d+3}]'
    D = rng(dp, d, 4)
    return Op('mfma', f'v_mfma_f32_16x16x32_bf16 {dp}[{d}:{d+3}], {ap}[{a}:{a+3}], {bp}[{b}:{b+3}], {c}',
              R=rng(ap, a, 4) + rng(bp, b, 4) + ([] if zero else D), W=D, C=([] if zero else D))
def valu(text, R, W, kind='valu', **kw): return Op(kind, text, R=R, W=W, **kw)

def op_RK(a):
    tile, kt = divmod(a, 4)
    slot = tile % 4
    l = []
    for ks in range(4):
        d = KF(a % 2, ks)
        l.append(Op('ds', f'ds_read_b128 {ar(d,4)}, v{vKa} offset:{slot*16384 + kt*4096 + ks*256}',
                    R=[f'v{vKa}', f'Krdy{tile}'], W=rng('a', d, 4), name=('RK', a % 32, ks)))
    return l
def op_RV(b):
    tile, u = divmod(b, 4)
    slot = tile % 4
    l = []
    for Tb in range(2):
        for h in range(2):
            for jh in range(2):
                d = VF(b % 2, Tb, h) + 2*jh
                off = slot*16384 + h*8192 + jh*4096 + u*256 + Tb*8
                l.append(Op('ds', f'ds_read_b64_tr_b16 {ar(d,2)}, v{vVa} offset:{off}',
                            R=[f'v{vVa}', f'Vrdy{tile}'], W=rng('a', d, 2), name=('RV', b % 32, Tb, h, jh)))
    return l
def op_QK(a):
    l = []
    for qt in range(4):
        for ks in range(4):
            l.append(mfma('v', S(a % 2, qt), 'a', KF(a % 2, ks), 'a', Q(qt, ks), ks == 0))
    return l
def op_PV(b):
    t, u = divmod(b, 4)
    l = []
    for Tb in range(2):
        for qt in range(4):
            for h in range(2):
                l.append(mfma('v', O(2*u+Tb, qt), 'a', VF(b % 2, Tb, h), 'v', P(t % 2, h, qt), t == 0 and h == 0))
    return l
def op_RS(t, qt):
    return [mfma('a', RS(qt), 'a', ONES, 'v', P(t % 2, h, qt), t == 0 and h == 0) for h in range(2)]
def op_SM(a):
    t, kt = divmod(a, 4)
    l = []
    for qt in range(4):
        s = S(a % 2, qt)
        for r in range(4):
            l.append(valu(f'v_fma_f32 v{s+r}, v{s+r}, s{sC}, v{vNM[qt]}', [f'v{s+r}', f'v{vNM[qt]}'], [f'v{s+r}']))
        for r in range(4):
            l.append(valu(f'v_exp_f32 v{s+r}, v{s+r}', [f'v{s+r}'], [f'v{s+r}'], kind='trans'))
        p = P(t % 2, kt // 2, qt) + 2*(kt % 2)
        for i in range(2):
            l.append(valu(f'v_cvt_pk_bf16_f32 v{p+i}, v{s+2*i}, v{s+2*i+1}', [f'v{s+2*i}', f'v{s+2*i+1}'], [f'v{p+i}']))
    return l
def perm(n, a, b): return valu(f'v_permlane{n}_swap_b32 v{a}, v{b}', [f'v{a}', f'v{b}'], [f'v{a}', f'v{b}'], kind='perm')
def op_reduce():
    t = vT; n = vNM
    mx = lambda d, a, b: valu(f'v_max_f32 v{d}, v{a}, v{b}', [f'v{a}', f'v{b}'], [f'v{d}'])
    mv = lambda d, a: valu(f'v_mov_b32 v{d}, v{a}', [f'v{a}'], [f'v{d}'])
    return [perm(16, t[0], t[1]), perm(16, t[2], t[3]), mx(t[0], t[0], t[1]), mx(t[2], t[2], t[3]),
            perm(32, t[0], t[2]), mx(t[0], t[0], t[2]),
            valu(f'v_fma_f32 v{n[0]}, v{t[0]}, s{sNC}, v{vBias}', [f'v{t[0]}', f'v{vBias}'], [f'v{n[0]}']),
            mv(n[2], n[0]), perm(32, n[0], n[2]), mv(n[1], n[0]), mv(n[3], n[2]),
            perm(16, n[0], n[1]), perm(16, n[2], n[3])]
def op_MAX():
    l = []
    for qt in range(4):
        s = S(0, qt)
        l.append(valu(f'v_max3_f32 v{vT[qt]}, v{s}, v{s+1}, v{s+2}', rng('v', s, 3), [f'v{vT[qt]}']))
        l.append(valu(f'v_max_f32 v{vT[qt]}, v{vT[qt]}, v{s+3}', [f'v{vT[qt]}', f'v{s+3}'], [f'v{vT[qt]}']))
    return l + op_reduce()
def op_DMA(which, tile, bar):
    slot = tile % 4
    nxt = tile >= 8
    base = sKVn if nxt else sKV
    st = sTK if which == 'K' else sTV
    d = (sKn if nxt else sK) if which == 'K' else (sVn if nxt else sV)
    l = [Op('salu', f's_add_u32 s{st}, s{base}, {(tile % 8)*16384}', R=[f's{base}'], W=[f's{st}', 'scc']),
         Op('salu', f's_add_u32 m0, s{sW4k}, {slot*16384 + (VBASE if which == "V" else 0)}', R=[], W=['m0', 'scc'])]
    for n in range(4):
        va = vKd[n] if which == 'K' else vKd[0]
        l.append(Op('dma', f'buffer_load_dwordx4 v{va}, {srd(d)}, s{st} offen offset:{n*1024} {OPT["kv_flags"]} lds',
                    R=[f'v{va}', f's{st}', 'm0'] + ([bar] if bar else []), W=[], name=(which, tile % 8, n)))
    return l
def op_QD(qt, m0txt, dep=None):
    l = [Op('salu', m0txt, R=[], W=['m0', 'scc'])]
    for n in range(4):
        l.append(Op('dma', f'buffer_load_dwordx4 v{vKd[n]}, {srd(sQ if qt < 2 else sQB)}, s{sQn[qt]} offen offset:{n*1024} {OPT["q_flags"]} lds',
                    R=[f'v{vKd[n]}', f's{sQn[qt]}', 'm0'] + ([dep] if dep else []), W=[], name=('Q', qt, n)))
    return l
def op_QR(qt, dst, va, off, dep):
    return [Op('ds', f'ds_read_b128 {ar(dst(qt,ks),4)}, v{va} offset:{off + ks*256}',
               R=[f'v{va}', dep, 'PA'], W=rng('a', dst(qt, ks), 4), name=('QR', qt, ks)) for ks in range(4)]
def op_L():
    l = []
    for qt in range(4):
        r = vRL[qt]
        l.append(valu(f'v_accvgpr_read_b32 v{r}, a{RS(qt)}', [f'a{RS(qt)}'], [f'v{r}']))
        l.append(valu(f'v_cmp_nge_f32 s[{sCmp[qt]}:{sCmp[qt]+1}], s{sThr}, v{r}', [f'v{r}'], [f's{sCmp[qt]}']))
        l.append(valu(f'v_rcp_f32 v{r}, v{r}', [f'v{r}'], [f'v{r}'], kind='trans'))
    return l
def op_EPI(u):
    l = []
    for qt in range(4):
        a, b = O(2*u, qt), O(2*u+1, qt)
        for x in list(range(a, a+4)) + list(range(b, b+4)):
            l.append(valu(f'v_mul_f32 v{x}, v{x}, v{vRL[qt]}', [f'v{x}', f'v{vRL[qt]}'], [f'v{x}']))
        for i, x in enumerate([a, a+2, b, b+2]):
            l.append(valu(f'v_cvt_pk_bf16_f32 v{a+i}, v{x}, v{x+1}', [f'v{x}', f'v{x+1}'], [f'v{a+i}']))
        l.append(Op('ds', f'ds_write_b128 v{vWr[u%2]}, {vr(a,4)} offset:{qt*2048}',
                    R=rng('v', a, 4) + [f'v{vWr[u%2]}', 'PAw'], W=[f'PA{qt}_{u%2}'], name=('OW', u, qt)))
    return l
def op_OUT(R):
    l = []
    for half in range(2):
        rd = [Op('ds', f'ds_read_b128 {ar(OST(R,n),4)}, v{vRd} offset:{n*1024}',
                 R=[f'v{vRd}', f'PA{n//2}_0', f'PA{n//2}_1'], W=rng('a', OST(R, n), 4), name=('OR', R, n)) for n in range(4*half, 4*half+4)]
        w = wlg(rd, f'wO{R}_{half}')
        l += rd + [w]
        for n in range(4*half, 4*half+4):
            va = vOlo if n < 4 else vOhi
            so = sOo[(n//2) % 2]
            l.append(Op('vst', f'buffer_store_dwordx4 {ar(OST(R,n),4)}, v{va}, {srd(sO)}, s{so} offen offset:{(n%2)*2048 + R*128} {OPT["store_flags"]}'.rstrip(),
                        R=rng('a', OST(R, n), 4) + [f'v{va}', f's{so}', f'wO{R}_{half}'], W=[], name=('O', R, n)))
    return l
def wlg(targets, tag, prev=None):
    o = Op('wlg', None, W=[tag], targets=targets)
    o.prev_targets = [t.name for t in targets] if prev is None else prev
    return o
def wvm(names, tag, byname):
    o = Op('wvm', None, W=[tag], targets=[byname[x] for x in names if x in byname])
    o.prev_targets = names
    return o

class Seg:
    def __init__(self):
        self.ops = []; self.nm = 0; self.byname = {}
    def add(self, l, need=None):
        for i, o in enumerate(l):
            if need and i == 0: o.R += need if isinstance(need, list) else [need]
            if o.kind == 'mfma': self.nm += 1
            if o.kind in ('dma', 'vld', 'vst'): self.byname[o.name] = o
            self.ops.append(o)
        return l
    def reads(self, l, tag, at):
        n = len(l)
        for i, o in enumerate(l):
            o.due = at - OPT['ds_lead'] - (n - 1 - i) * OPT['ds_sp']
            o.earliest = o.due - 2
        self.add(l)
        if tag: self.add([wlg(l, tag)])
    def spread(self, l, lo, hi):
        mem = [o for o in l if o.kind in MEM_KINDS]
        for i, o in enumerate(mem):
            pos = lo + (hi - lo) * (i + 0.5) / len(mem)
            o.earliest = int(pos) - 2; o.due = pos + 4
        for i, o in enumerate(l):
            if o.kind == 'salu':
                nx = next(x for x in l[i:] if x.kind in MEM_KINDS)
                o.earliest = nx.earliest - 6
        self.add(l)
    def barrier(self, nn, pos, waits):
        names = [('K', (nn+1) % 8, i) for i in range(4)] + [('V', nn % 8, i) for i in range(4)]
        wv = wvm(names, f'wvm{nn}', self.byname); wv.earliest = pos - 3
        bo = Op('bar', 's_barrier', R=[f'wvm{nn}'] + waits, W=[f'bar{nn}', f'Krdy{nn+1}', f'Vrdy{nn}'])
        bo.earliest = pos - 1; bo.due = pos + 1
        self.add([wv, bo])

def seg_A():
    g = Seg()
    start = {s: (s - 4) * 34 for s in range(4, 33)}
    barpos = {nn: start[4*nn+3] + 16 for nn in range(1, 8)}
    barpos[0] = -2
    def interval(nn, extra):
        bar = f'bar{nn}' if nn >= 1 else None
        l = op_DMA('K', nn + 4, bar) + op_DMA('V', nn + 3, bar) + extra
        g.spread(l, barpos[nn] + 2, barpos[nn+1] - 6)
    qm0 = lambda j: f's_add_u32 m0, s{sPA}, {4096*j}'
    extras = {0: op_QD(0, qm0(0)), 1: op_QD(1, qm0(1)), 4: op_QD(2, qm0(0), 'wQA'), 5: op_QD(3, qm0(1), 'wQA')}
    interval(0, extras[0])
    for s in range(4, 32):
        if s == 4:
            w = wlg([], 'wK4', prev=[('RK', 4, ks) for ks in range(4)]); w.due = -1
            g.add([w])
        else: g.reads(op_RK(s), f'wK{s}', start[s])
        g.add(op_QK(s), f'wK{s}')
        g.add(op_SM(s - 1))
        b = s - 4
        g.reads(op_RV(b), f'wV{b}', start[s] + 16)
        if s % 4 == 3: g.barrier(s // 4, barpos[s // 4], [f'wK{s}', f'wV{b}'])
        g.add(op_PV(b), f'wV{b}')
        g.add(op_RS(b // 4, b % 4))
        if s == 17:
            wq = wvm([('Q', qt, n) for qt in range(2) for n in range(4)], 'vQA', g.byname); wq.earliest = start[17]
            g.add([wq])
            g.reads(op_QR(0, QN, vQa, 0, 'vQA') + op_QR(1, QN, vQa, 4096, 'vQA'), 'wQA', barpos[4] + 8)
        if s % 4 == 3 and s // 4 <= 6: interval(s // 4, extras.get(s // 4, []))
    g.reads(op_RV(28), None, start[32] + 12)
    return g.ops

def seg_tail(drain, fill):
    g = Seg()
    pos = {}; n = 0
    order = []
    if drain: order += [('RS', 0), ('PV', 28)]
    for i in range(4):
        if fill: order.append(('QK', 32 + i))
        if drain and i < 3: order.append(('PV', 29 + i))
    for k in order:
        pos[k] = n; n += 8 if k[0] == 'RS' else 16
    total = n
    if drain:
        g.add(op_SM(31))
        w = wlg([], 'wV28', prev=[o.name for o in op_RV(28)]); g.add([w])
    if drain and fill:
        wq = wvm([('Q', qt, n) for qt in range(2, 4) for n in range(4)], 'vQB', g.byname); wq.due = -5
        g.add([wq])
        g.reads(op_QR(2, Q, vQa, 0, 'vQB') + op_QR(3, Q, vQa, 4096, 'vQB'), 'wQB', pos[('QK', 32)] + 8)
        for o in g.ops:
            if o.kind == 'ds': o.earliest = None; o.R.remove('PA'); o.R += [f'PA{q}_{p}' for q in range(4) for p in range(2)]
        for i in range(32):
            g.add([valu(f'v_accvgpr_mov_b32 a{i}, a{64+i}', [f'a{64+i}'], [f'a{i}'])])
    if drain and not fill:
        wq = wvm([('Q', qt, n) for qt in range(2, 4) for n in range(4)], 'PAw', g.byname); wq.earliest = 8
        g.add([wq])
    if fill:
        barp = pos[('QK', 35)] + 1
        g.spread(op_DMA('K', 11, None) + op_DMA('V', 10, None), 2, barp - 6)
    for k in order:
        if k[0] == 'RS':
            for qt in range(4): g.add(op_RS(7, qt))
            g.add(op_L())
        elif k[0] == 'PV':
            b = k[1]
            if b > 28: g.reads(op_RV(b), f'wV{b}', pos[k])
            g.add(op_PV(b), f'wV{b}')
            g.add(op_EPI(b - 28))
            if b % 2 == 1: g.add(op_OUT((b - 28) // 2))
        else:
            a = k[1]
            if a == 32 and not drain:
                pass
            else: g.reads(op_RK(a), f'wK{a}', pos[k])
            qk = op_QK(a)
            if a == 32 and drain: qk[8].R.append('wQB')
            if a == 35: g.barrier(8, barp, [f'wK{a}'] + (['wV31'] if drain else []))
            g.add(qk, f'wK{a}' if (a > 32 or drain) else None)
            if a == 32: g.add(op_MAX())
            if a > 32: g.add(op_SM(a - 33))
    if fill:
        g.reads(op_RK(36), None, total + 4)
    return g.ops

def resolve_waits(seqs):
    res = {}
    for kind, kinds, fmt, mx in (('wvm', ('dma', 'vld', 'vst'), 'vmcnt', 63), ('wlg', ('ds',), 'lgkmcnt', 15)):
        hist = []
        for si, sq in enumerate(seqs):
            for o in sq:
                if o.kind in kinds: hist.append(o.name)
                elif o.kind == kind:
                    last = max(len(hist) - 1 - hist[::-1].index(x) for x in o.prev_targets)
                    res.setdefault(o, []).append(len(hist) - 1 - last)
        for o, l in res.items():
            if o.kind == kind: o.text = f's_waitcnt {fmt}({min(min(l), mx)})'
    return res

def lines(ops): return ''.join('    ' + o.text + '\n' for o in ops)
def padded(ops):
    build_deps(ops)
    out = []
    for o in ops:
        need = 0
        for p, d in o.preds.items():
            need = max(need, d - (len(out) - p.pos - 1))
        for _ in range(need): out.append(Op('salu', 's_nop 0'))
        o.pos = len(out); out.append(o)
    return out

def dbg_lines(ops, first):
    txt = ''; n = first
    for o in ops:
        txt += '    ' + o.text + '\n'
        if o.kind == 'bar':
            txt += f'    s_memtime s[{72+2*n}:{73+2*n}]\n'; n += 1
    return txt, n
DUMP = '    s_memtime s[90:91]\n    s_waitcnt lgkmcnt(0)\n' + ''.join(
    f'    v_writelane_b32 v28, s{72+2*i}, {i}\n' for i in range(11)) + \
    '    s_mov_b64 exec, 0xffff\n    buffer_store_dword v28, v29, s[96:99], s94 offen\n    s_mov_b64 exec, -1\n    s_add_u32 s94, s94, 64\n'

def main():
    segs = {}
    for nme, ops in (('A', seg_A()), ('B', seg_tail(True, True)), ('F', seg_tail(False, True)), ('D', seg_tail(True, False))):
        segs[nme], stats = schedule(ops, OPT['ds_lead'], OPT['ds_lat'], OPT['vm_space'])
        print(nme, stats, file=sys.stderr)
    A = []
    w = A.append
    w(f'''; GQA attention forward, B=16 Hq=32 Hkv=16 Sq=496 Sk=512 D=128, bf16.  Generated by gen/gen.py (own generator).
; @launch grid=(256,1,1) block=(256,1,1) lds=163840
.amdgcn_target "amdgcn-amd-amdhsa--gfx950"
.text
.globl {NAME}
.p2align 8
.type {NAME},@function
{NAME}:
    s_cmp_ge_u32 s2, 256
    s_cbranch_scc1 L_end
    s_load_dwordx4 s[56:59], s[0:1], 0
    s_load_dwordx4 s[60:63], s[0:1], 16
    v_lshrrev_b32 v20, 6, v0
    v_and_b32 v21, 63, v0                 ; lane
    v_readfirstlane_b32 s42, v20          ; wave
    v_and_b32 v22, 15, v21                ; i
    v_lshrrev_b32 v23, 4, v21             ; g
    v_lshrrev_b32 v26, 2, v22             ; i/4
    v_and_b32 v27, 3, v21                 ; i%4
    ; DMA lane part: (i/4)*256 + g*64 + ((i%4)^f(n))*16
    v_lshlrev_b32 v30, 8, v26
    v_lshl_add_u32 v30, v23, 6, v30
    v_lshl_add_u32 v{vKd[0]}, v27, 4, v30
    v_xor_b32 v{vKd[1]}, 48, v{vKd[0]}
    v_xor_b32 v{vKd[2]}, 32, v{vKd[0]}
    v_xor_b32 v{vKd[3]}, 16, v{vKd[0]}
    s_and_b32 s43, s2, 7                  ; xcd
    s_lshr_b32 s44, s2, 3
    s_lshr_b32 s45, s44, 2                ; group
    s_and_b32 s44, s44, 3                 ; qb
    s_lshl_b32 s43, s43, 5
    s_add_u32 s43, s43, s45               ; pair0
    s_lshl_b32 s{sW4k}, s42, 12
    s_lshl_b32 s{sKVn}, s43, 17
    s_add_u32 s{sKVn}, s{sKVn}, s{sW4k}
    s_mul_i32 s45, s43, {PAIRQ}
    s_lshl_b32 s46, s44, 16
    s_add_u32 s45, s45, s46
    s_lshl_b32 s46, s42, 14
    s_add_u32 s{sQn[0]}, s45, s46
    s_add_u32 s{sQn[1]}, s{sQn[0]}, 4096
    s_lshl_b32 s{sPA}, s42, 13
    s_add_u32 s{sPA}, s{sPA}, 131072
    s_lshl_b32 s46, s44, 2
    s_add_u32 s46, s46, s42
    s_cmp_eq_u32 s46, 15
    s_cselect_b32 s46, 0x40000000, 8192
    s_cselect_b32 s47, 0xff800000, 0
    s_cselect_b32 s45, 0, 8192
    s_cselect_b32 s{sQB+2}, 0, {QBYTES}
    s_add_u32 s{sQn[2]}, s{sQn[0]}, s45
    s_add_u32 s{sQn[3]}, s{sQn[1]}, s45
    s_mov_b32 s{sQ+2}, {QBYTES}
    s_mov_b32 s{sQ+3}, 0x20000
    s_mov_b32 s{sQB+3}, 0x20000
    s_mov_b32 s{sKn+2}, {KBYTES}
    s_mov_b32 s{sKn+3}, 0x20000
    s_mov_b32 s{sVn+2}, {KBYTES}
    s_mov_b32 s{sVn+3}, 0x20000
    s_waitcnt lgkmcnt(0)
    s_mov_b32 s{sKn}, s58
    s_mov_b32 s{sKn+1}, s59
    s_mov_b32 s{sQ}, s56
    s_mov_b32 s{sQ+1}, s57
    s_mov_b32 s{sQB}, s56
    s_mov_b32 s{sQB+1}, s57
    s_mov_b32 s{sVn}, s60
    s_mov_b32 s{sVn+1}, s61
''')
    if OPT['debug']:
        w('''    s_memtime s[100:101]
    s_memrealtime s[92:93]
    s_load_dwordx2 s[96:97], s[0:1], 40
    s_mov_b32 s98, 0x1000000
    s_mov_b32 s99, 0x20000
    s_lshl_b32 s94, s2, 2
    s_add_u32 s94, s94, s42
    s_lshl_b32 s94, s94, 9
    v_lshlrev_b32 v29, 2, v21
    s_waitcnt lgkmcnt(0)
    s_mov_b32 s95, s92
''')
    QTMP = [None, None, VBASE + 3*16384, 3*16384]
    pro = op_DMA('K', 8, None)
    pro += op_QD(0, f's_add_u32 m0, s{sPA}, 0') + op_QD(1, f's_add_u32 m0, s{sPA}, 4096')
    pro += op_QD(2, f's_add_u32 m0, s{sW4k}, {QTMP[2]}') + op_QD(3, f's_add_u32 m0, s{sW4k}, {QTMP[3]}')
    pro += op_DMA('K', 9, None) + op_DMA('V', 8, None) + op_DMA('K', 10, None) + op_DMA('V', 9, None)
    pro = padded(pro)
    w(lines(pro))
    w(f'''    ; remaining setup under the load latency
    s_mov_b32 s{sK}, s58
    s_mov_b32 s{sK+1}, s59
    s_mov_b32 s{sK+2}, {KBYTES}
    s_mov_b32 s{sK+3}, 0x20000
    s_mov_b32 s{sV}, s60
    s_mov_b32 s{sV+1}, s61
    s_mov_b32 s{sV+2}, {KBYTES}
    s_mov_b32 s{sV+3}, 0x20000
    s_mov_b32 s{sO}, s62
    s_mov_b32 s{sO+1}, s63
    s_mov_b32 s{sO+2}, {QBYTES}
    s_mov_b32 s{sO+3}, 0x20000
    v_sub_u32 v30, 0, v26
    v_and_b32 v30, 3, v30                 ; f(i/4)
    v_xor_b32 v30, v30, v23
    v_lshlrev_b32 v30, 4, v30
    v_lshl_add_u32 v30, v27, 6, v30
    v_lshl_add_u32 v{vKa}, v26, 10, v30
    v_add_u32 v{vQa}, s{sPA}, v{vKa}
    v_lshlrev_b32 v30, 10, v23
    v_lshl_add_u32 v30, v26, 6, v30
    v_lshl_add_u32 v30, v27, 4, v30
    v_add_u32 v{vVa}, {VBASE}, v30
    ; O staging: write addr = PA + i*128 + ((g ^ (i&7))*16); read addr = PA + lane*16; store lane part = (l/8)*256 + ((l%8)^(l/8))*16
    v_and_b32 v30, 7, v21
    v_xor_b32 v31, v30, v23
    v_lshlrev_b32 v31, 4, v31
    v_lshl_add_u32 v31, v22, 7, v31
    v_add_u32 v{vWr[0]}, s{sPA}, v31
    v_xor_b32 v{vWr[1]}, 64, v{vWr[0]}
    v_lshlrev_b32 v31, 4, v21
    v_add_u32 v{vRd}, s{sPA}, v31
    v_lshrrev_b32 v31, 3, v21
    v_xor_b32 v30, v30, v31
    v_lshlrev_b32 v30, 4, v30
    v_lshl_add_u32 v{vOlo}, v31, 8, v30
    v_add_u32 v{vOhi}, s46, v{vOlo}
    v_mov_b32 v30, s47
    v_cmp_lt_u32 vcc, 31, v21
    v_mov_b32 v31, 0x3f803f80
    s_mov_b32 s{sC}, {hex(f32(CSCALE))}
    v_cndmask_b32 v{vBias}, 0, v30, vcc
    s_mov_b32 s{sNC}, {hex(f32(-CSCALE))}
    s_mov_b32 s{sThr}, {hex(f32(2.0**64) if not OPT['force_slow'] else f32(-1.0))}
    s_mov_b32 s{sB}, -1
    s_mov_b32 s{sFlag}, 0
    s_mov_b64 s[{sCmp[0]}:{sCmp[0]+1}], 0
    s_mov_b64 s[{sCmp[1]}:{sCmp[1]+1}], 0
    s_mov_b64 s[{sCmp[2]}:{sCmp[2]+1}], 0
    s_mov_b64 s[{sCmp[3]}:{sCmp[3]+1}], 0
    v_accvgpr_write_b32 a{ONES}, v31
    v_accvgpr_write_b32 a{ONES+1}, v31
    v_accvgpr_write_b32 a{ONES+2}, v31
    v_accvgpr_write_b32 a{ONES+3}, v31
    v_add_u32 v30, s{sW4k}, v{vKa}
    v_add_u32 v31, {VBASE}, v30
''')
    rk0 = op_RK(32)
    qr = [op_QR(0, Q, vQa, 0, 'x'), op_QR(1, Q, vQa, 4096, 'x'), op_QR(2, Q, 31, 3*16384, 'x'), op_QR(3, Q, 30, 3*16384, 'x')]
    dummies = lambda nd: [Op('vst', f'buffer_store_dword v31, v31, {srd(sO)}, 0 offen', name=('dummy', i)) for i in range(nd)]
    seqs0 = lambda nd: [pro + rk0, segs['F'], dummies(nd)] + [segs['A'], segs['B']] * 3 + [segs['A'], segs['D']]
    r = resolve_waits(seqs0(0))
    nd = max(min(l[-1], 63) - l[0] for o, l in r.items() if o.kind == 'wvm' and len(l) > 1)
    sq = seqs0(nd)
    r = resolve_waits(sq)
    print('dummies', nd, [(o.text, l) for o, l in r.items() if o.kind == 'wvm'], file=sys.stderr)
    tot = len([o for o in pro if o.kind == 'dma'])
    w(f'    s_waitcnt vmcnt({tot - 4})\n    s_barrier\n')
    w(lines(rk0))
    for qt in range(4):
        w(f'    s_waitcnt vmcnt({tot - 4 - 4*(qt+1)})\n')
        w(lines(qr[qt]))
    w('    s_waitcnt lgkmcnt(0)\n    v_mov_b32 v31, 0x40000000\n')
    upd = f'''L_next:
    s_or_b64 s[{sCmp[0]}:{sCmp[0]+1}], s[{sCmp[0]}:{sCmp[0]+1}], s[{sCmp[1]}:{sCmp[1]+1}]
    s_or_b64 s[{sCmp[2]}:{sCmp[2]+1}], s[{sCmp[2]}:{sCmp[2]+1}], s[{sCmp[3]}:{sCmp[3]+1}]
    s_or_b64 s[{sCmp[0]}:{sCmp[0]+1}], s[{sCmp[0]}:{sCmp[0]+1}], s[{sCmp[2]}:{sCmp[2]+1}]
    s_cselect_b32 s42, 1, 0
    s_lshl_b32 s42, s42, s{sB}
    s_or_b32 s{sFlag}, s{sFlag}, s42
    s_mov_b32 s{sOo[0]}, s{sQn[0]}
    s_mov_b32 s{sOo[1]}, s{sQn[1]}
    s_mov_b32 s{sKV}, s{sKVn}
    s_add_u32 s{sB}, s{sB}, 1
    s_cmp_lt_u32 s{sB}, 3
    s_cselect_b32 s42, {8*PAIRQ}, 0
    s_cselect_b32 s45, {8*PAIRK}, 0
    s_cselect_b32 s{sQ+2}, s{sQ+2}, 0
    s_cselect_b32 s{sQB+2}, s{sQB+2}, 0
    s_cselect_b32 s{sKn+2}, s{sKn+2}, 0
    s_cselect_b32 s{sVn+2}, s{sVn+2}, 0
    s_add_u32 s{sQn[0]}, s{sQn[0]}, s42
    s_add_u32 s{sQn[1]}, s{sQn[1]}, s42
    s_add_u32 s{sQn[2]}, s{sQn[2]}, s42
    s_add_u32 s{sQn[3]}, s{sQn[3]}, s42
    s_add_u32 s{sKVn}, s{sKVn}, s45
'''
    pad = lambda n: [Op('salu', 'x') for _ in range(n)]
    bad = check_hazards(segs['F'] + pad(22) + segs['A'] + pad(2) + segs['B'] + pad(22) + segs['A'] + pad(2) + segs['D'])
    assert bad == 0, bad
    if not OPT['debug']:
        w(lines(segs['F']))
        w(lines(sq[2]))
        w(upd)
        w(lines(segs['A']))
        w(f'    s_cmp_eq_u32 s{sB}, 3\n    s_cbranch_scc1 L_final\n')
        w(lines(segs['B']))
        w('    s_branch L_next\nL_final:\n')
        w(lines(segs['D']))
    else:
        w('    s_memtime s[86:87]\n')
        w(dbg_lines(segs['F'], 8)[0]); w(DUMP)
        w(lines(sq[2]))
        w(upd)
        w('    s_memtime s[72:73]\n    s_memrealtime s[92:93]\n')
        w(dbg_lines(segs['A'], 1)[0])
        w(f'    s_cmp_eq_u32 s{sB}, 3\n    s_cbranch_scc1 L_final\n')
        w(dbg_lines(segs['B'], 8)[0]); w(DUMP)
        w('    s_branch L_next\nL_final:\n')
        w(lines(segs['D'])); w('    s_memtime s[88:89]\n'); w(DUMP)
        w('''    s_waitcnt vmcnt(0)
    s_memtime s[72:73]
    s_memrealtime s[92:93]
    s_waitcnt lgkmcnt(0)
    v_mov_b32 v28, s72
    v_mov_b32 v29, s92
    v_mov_b32 v30, s100
    v_mov_b32 v31, s95
    s_mov_b64 exec, 1
    buffer_store_dwordx4 v[28:31], off, s[96:99], s94
    s_mov_b64 exec, -1
''')
    w(f'''    s_or_b64 s[{sCmp[0]}:{sCmp[0]+1}], s[{sCmp[0]}:{sCmp[0]+1}], s[{sCmp[1]}:{sCmp[1]+1}]
    s_or_b64 s[{sCmp[2]}:{sCmp[2]+1}], s[{sCmp[2]}:{sCmp[2]+1}], s[{sCmp[3]}:{sCmp[3]+1}]
    s_or_b64 s[{sCmp[0]}:{sCmp[0]+1}], s[{sCmp[0]}:{sCmp[0]+1}], s[{sCmp[2]}:{sCmp[2]+1}]
    s_cselect_b32 s42, 8, 0
    s_or_b32 s{sFlag}, s{sFlag}, s42
''')
    w(slow_path())
    w(f'''L_end:
    s_endpgm
.section .rodata,"a"
.p2align 6
.amdhsa_kernel {NAME}
  .amdhsa_next_free_vgpr 512
  .amdhsa_next_free_sgpr {102 if OPT['debug'] else 80}
  .amdhsa_accum_offset 256
  .amdhsa_group_segment_fixed_size 0
  .amdhsa_kernarg_size 48
  .amdhsa_user_sgpr_count 2
  .amdhsa_user_sgpr_kernarg_segment_ptr 1
  .amdhsa_system_sgpr_workgroup_id_x 1
.end_amdhsa_kernel
''')
    open(sys.argv[1], 'w').write(''.join(A))

def slow_path():
    raw = lambda t: Op('salu', t)
    T = []
    w = T.append
    sPair, sKoff, sJ = 56, 57, 58
    vF, vFh, vTr = 26, 27, 30
    w(f'''    s_cmp_eq_u32 s{sFlag}, 0
    s_cbranch_scc1 L_end
    s_waitcnt vmcnt(0) lgkmcnt(0)
    s_mov_b32 s{sQ+2}, {QBYTES}
    s_sub_u32 s42, s{sPA}, {VBASE}
    v_add_u32 v{vTr}, s42, v{vVa}
    v_and_b32 v20, 15, v0
    v_bfe_u32 v21, v0, 4, 2
    v_lshlrev_b32 v20, 8, v20
    v_lshl_add_u32 v{vF}, v21, 4, v20
    v_add_u32 v{vFh}, s46, v{vF}
    s_mov_b32 s{sB}, 0
L_slow_blk:
    s_lshr_b32 s42, s{sFlag}, s{sB}
    s_and_b32 s42, s42, 1
    s_cmp_eq_u32 s42, 0
    s_cbranch_scc1 L_slow_next
    s_lshl_b32 s42, s{sB}, 3
    s_add_u32 s{sPair}, s43, s42
    s_mul_i32 s42, s{sPair}, {PAIRQ}
    s_lshl_b32 s45, s44, 16
    s_add_u32 s42, s42, s45
    s_lshl_b32 s45, s{sW4k}, 2
    s_add_u32 s{sOo[0]}, s42, s45
    s_add_u32 s{sOo[1]}, s{sOo[0]}, 4096
''')
    for qt in range(4):
        for ks in range(4):
            w(f'    buffer_load_dwordx4 {ar(Q(qt,ks),4)}, v{vF if qt < 2 else vFh}, {srd(sQ)}, s{sOo[qt%2]} offen offset:{ks*64}\n')
    for qt in range(4): w(f'    v_mov_b32 v{vT[qt]}, 0xff800000\n')
    w(f'''    s_lshl_b32 s{sKoff}, s{sPair}, 17
    s_mov_b32 s{sJ}, 0
L_slow_p1:
''')
    def kload(buf):
        return [raw(f'buffer_load_dwordx4 {ar(KF(buf,ks),4)}, v{vF}, {srd(sK)}, s{sKoff} offen offset:{ks*64}') for ks in range(4)]
    w(lines(kload(0)))
    w('    s_waitcnt vmcnt(0)\n')
    l = op_QK(0)
    for qt in range(4):
        s = S(0, qt)
        l.append(valu(f'v_max3_f32 v{vT[qt]}, v{s}, v{s+1}, v{vT[qt]}', [f'v{s}', f'v{s+1}', f'v{vT[qt]}'], [f'v{vT[qt]}']))
        l.append(valu(f'v_max3_f32 v{vT[qt]}, v{s+2}, v{s+3}, v{vT[qt]}', [f'v{s+2}', f'v{s+3}', f'v{vT[qt]}'], [f'v{vT[qt]}']))
    w(lines(padded(l)))
    w(f'''    s_add_u32 s{sKoff}, s{sKoff}, 4096
    s_add_u32 s{sJ}, s{sJ}, 1
    s_cmp_lt_u32 s{sJ}, 32
    s_cbranch_scc1 L_slow_p1
''')
    w(lines(padded(op_reduce())))
    for i in range(128): w(f'    v_mov_b32 v{128+i}, 0\n')
    for i in range(16): w(f'    v_accvgpr_write_b32 a{RS(0)+i}, 0\n')
    w(f'''    s_lshl_b32 s{sKoff}, s{sPair}, 17
    s_mov_b32 s{sJ}, 0
L_slow_p2:
''')
    w(f'    s_mov_b32 m0, s{sPA}\n    s_nop 0\n')
    for n in range(4): w(f'    buffer_load_dwordx4 v{vKd[0]}, {srd(sV)}, s{sKoff} offen offset:{n*1024} lds\n')
    w(lines(kload(0)))
    w(f'    s_add_u32 s{sKoff}, s{sKoff}, 4096\n    s_add_u32 m0, s{sPA}, 4096\n    s_nop 0\n')
    for n in range(4): w(f'    buffer_load_dwordx4 v{vKd[0]}, {srd(sV)}, s{sKoff} offen offset:{n*1024} lds\n')
    w(lines(kload(1)))
    w(f'    s_add_u32 s{sKoff}, s{sKoff}, 4096\n    s_waitcnt vmcnt(0)\n')
    l = op_QK(0) + op_QK(1) + op_SM(0) + op_SM(1)
    for qt in range(4): l.append(mfma('a', RS(qt), 'a', ONES, 'v', P(0, 0, qt), False))
    w(lines(padded(l)))
    for u in range(4):
        for Tb in range(2):
            for jh in range(2):
                d = VF(0, Tb, 0) + 2*jh
                w(f'    ds_read_b64_tr_b16 {ar(d,2)}, v{vTr} offset:{jh*4096 + u*256 + Tb*8}\n')
        w('    s_waitcnt lgkmcnt(0)\n')
        for Tb in range(2):
            for qt in range(4):
                w('    ' + mfma('v', O(2*u+Tb, qt), 'a', VF(0, Tb, 0), 'v', P(0, 0, qt), False).text + '\n')
        w('    s_nop 7\n')
    w(f'''    s_add_u32 s{sJ}, s{sJ}, 1
    s_cmp_lt_u32 s{sJ}, 16
    s_cbranch_scc1 L_slow_p2
    s_nop 7
''')
    l = op_L()
    for u in range(4):
        l += op_EPI(u)
        if u % 2: l += op_OUT(u // 2)
    for o in l:
        if o.kind == 'wlg': o.text = 's_waitcnt lgkmcnt(0)'
    w(lines(padded(l)))
    w(f'''    s_waitcnt vmcnt(0)
L_slow_next:
    s_add_u32 s{sB}, s{sB}, 1
    s_cmp_lt_u32 s{sB}, 4
    s_cbranch_scc1 L_slow_blk
''')
    return ''.join(T)

main()
```

```python
import re, sys

DSW_COST = 8
VM_COST = 4
VALU_KINDS = ('valu', 'trans', 'perm')
MEM_KINDS = ('ds', 'dma', 'vld', 'vst')
SALU_KINDS = ('salu', 'wlg', 'wvm', 'bar')

def rng(p, a, n):
    return [f'{p}{i}' for i in range(a, a + n)]

class Op:
    __slots__ = ('kind', 'text', 'R', 'W', 'C', 'due', 'earliest', 'targets', 'preds', 'succs', 'idx',
                 'pos', 'cyc', 'name', 'midx', 'extra', 'prev_targets')
    def __init__(self, kind, text, R=(), W=(), C=(), due=None, earliest=None, targets=None, name=None, after=()):
        self.kind = kind; self.text = text
        self.R = list(R); self.W = list(W); self.C = list(C)
        self.due = due; self.earliest = earliest
        self.targets = targets; self.prev_targets = None
        self.preds = {}; self.succs = []
        self.pos = None; self.cyc = None; self.name = name; self.midx = None
        self.extra = list(after)
    def cost(self):
        if self.kind == 'ds' and self.text.startswith('ds_write'): return DSW_COST
        if self.kind in ('dma', 'vst'): return VM_COST
        return 8 if self.kind in ('trans', 'mfma') else 4

def is_reg(r):
    return re.match(r'^[va]\d+$', r) is not None

def hz_raw(p, c, r):
    if r == 'm0':
        return 1 if c.kind == 'dma' else 0
    if not is_reg(r):
        if p.kind in VALU_KINDS and c.kind in MEM_KINDS: return 5
        if p.kind in VALU_KINDS and c.kind in VALU_KINDS: return 2
        if p.kind in VALU_KINDS: return 1
        return 0
    if p.kind == 'mfma':
        if c.kind == 'mfma':
            return 0 if (r in c.C and set(c.C) == set(p.W)) else 8
        return 8
    if p.kind in VALU_KINDS:
        if c.kind == 'mfma': return 2
        if c.kind == 'perm': return 2
        if p.kind == 'trans' and c.kind != 'trans': return 1
        return 0
    return 0
def hz_waw(p, c, r):
    if is_reg(r) and p.kind == 'mfma' and c.kind != 'mfma': return 8
    return 0
def hz_war(p, c, r):
    if not is_reg(r): return 0
    if p.kind == 'mfma' and r in p.C and c.kind in VALU_KINDS: return 3
    if p.kind == 'vst' and c.kind in VALU_KINDS: return 2
    if p.kind == 'vst': return 1
    return 0

def build_deps(ops):
    lastw = {}; readers = {}
    prev_m = None
    mi = 0
    for i, o in enumerate(ops):
        o.idx = i
        def add(p, d):
            if p is o: return
            o.preds[p] = max(o.preds.get(p, 0), d)
        for r in o.R:
            if r in lastw: add(lastw[r], hz_raw(lastw[r], o, r))
        for r in o.W:
            if r in lastw: add(lastw[r], hz_waw(lastw[r], o, r))
            for p in readers.get(r, []): add(p, hz_war(p, o, r))
        for p in o.extra: add(p, 0)
        if o.targets:
            for p in o.targets: add(p, 0)
        if o.kind == 'mfma':
            if prev_m is not None: add(prev_m, 0)
            prev_m = o; o.midx = mi; mi += 1
        for r in o.R: readers.setdefault(r, []).append(o)
        for r in o.W:
            lastw[r] = o; readers[r] = []
    for o in ops:
        for p in o.preds: p.succs.append(o)
    return mi

def compute_due(ops, nm, ds_lead):
    INF = nm + 1000
    for o in reversed(ops):
        if o.kind == 'mfma':
            o.due = o.midx; continue
        d = INF
        for s in o.succs:
            sd = s.due
            if s.kind == 'wlg' and o.kind == 'ds': sd -= ds_lead
            elif s.kind != 'mfma': sd -= 0.25
            d = min(d, sd)
        if o.due is not None: d = min(d, o.due)
        o.due = d

def schedule(ops, ds_lead=10, ds_lat=160, vm_space=3, pace_end=None):
    nm = build_deps(ops)
    compute_due(ops, nm, ds_lead)
    mf = [o for o in ops if o.kind == 'mfma']
    pend = [o for o in ops if o.kind != 'mfma']
    out = []
    st = dict(cyc=0, lastvm=-100, k=-1, lds_out=[])
    def emit(o):
        o.pos = len(out); o.cyc = st['cyc']; out.append(o)
        if o.kind in ('dma', 'vld', 'vst'): st['lastvm'] = st['k']
    def ready(o):
        n = len(out)
        for p, d in o.preds.items():
            if p.pos is None or n - p.pos - 1 < d: return False
        return True
    def allowed(o):
        if o.earliest is not None and st['k'] < o.earliest: return False
        if o.kind in ('dma', 'vld', 'vst') and st['k'] - st['lastvm'] < vm_space and o.due > st['k'] + 1: return False
        return True
    def cands(kinds, force=False):
        c = [o for o in pend if o.kind in kinds and ready(o) and (force or allowed(o))]
        c.sort(key=lambda o: (o.due, o.idx))
        return c
    def take(o):
        pend.remove(o); emit(o)
        if o.kind not in SALU_KINDS: st['fill'] += o.cost()
    def nop():
        o = Op('salu', 's_nop 0'); emit(o); st['cyc'] += 4
    def wait_ok(o):
        if o.kind == 'wlg':
            if o.due <= st['k'] + 1.01: return True
            return st['cyc'] - max([t.cyc for t in o.targets] or [-1000]) >= ds_lat and o.due <= st['k'] + 6
        if o.kind in ('wvm', 'bar'):
            return o.earliest is None or st['k'] >= o.earliest
        return True
    def needed_closure(m):
        seen = set(); stack = [m]
        while stack:
            x = stack.pop()
            for p in x.preds:
                if p.pos is None and p not in seen and p.kind != 'mfma':
                    seen.add(p); stack.append(p)
        return seen
    stats = dict(under=0, over=0, pen=0, nops=0)
    total_fill = sum(o.cost() for o in pend if o.kind not in SALU_KINDS)
    st['fill'] = 0
    pe = pace_end or nm
    def chained(k):
        return k + 1 < nm and mf[k+1].C and set(mf[k+1].C) == set(mf[k].W)
    def fill_gap():
        used = 0; valu_seen = False
        c = [o for o in cands(SALU_KINDS) if wait_ok(o)]
        if c: take(c[0])
        while used < 8:
            c = cands(VALU_KINDS + (MEM_KINDS if not valu_seen else ()))
            if used > 0:
                c = [o for o in c if o.cost() + used <= 8]
                nv = [o for o in c if o.kind in VALU_KINDS or o.due <= st['k'] - 3]
                if nv: c = nv
            if not c: break
            o = c[0]
            if used == 0:
                small = [x for x in c if x.cost() == 4]
                if o.cost() == 4:
                    if len(small) < 2:
                        ex = [x for x in c if x.cost() == 8]
                        if ex and o.due > st['k'] + 2: o = ex[0]
                    else:
                        a, b = small[0], small[1]
                        if a.kind in VALU_KINDS and b.kind in MEM_KINDS: o = b
            take(o); used += o.cost(); st['cyc'] += o.cost()
            if o.kind in VALU_KINDS: valu_seen = True
        if not chained(st['k']):
            j = st['k'] + 1
            while chained(j): j += 1
            tgt = total_fill * min(1.0, j / pe) - 8 * (j - st['k'] - 1)
            while st['fill'] + 2 < tgt:
                c = cands(VALU_KINDS)
                if not c: break
                take(c[0]); used += c[0].cost(); st['cyc'] += c[0].cost(); valu_seen = True
        return used, valu_seen
    used, valu_seen = 0, True
    gapstart = 0
    for k, m in enumerate(mf + [None]):
        while True:
            if m is None:
                if not pend: break
                need = set(pend)
            else:
                if ready(m): break
                need = needed_closure(m)
            c = [o for o in cands(VALU_KINDS + MEM_KINDS + SALU_KINDS, force=True) if o in need]
            if c:
                o = c[0]
                if o.kind == 'wlg' and st['cyc'] - max([t.cyc for t in o.targets] or [-1000]) < ds_lat:
                    alt = [x for x in c if x.kind != 'wlg'] or cands(VALU_KINDS)
                    if alt: o = alt[0]
            else:
                c2 = cands(VALU_KINDS) or [x for x in cands(SALU_KINDS) if wait_ok(x) and x.kind == 'salu']
                if c2: o = c2[0]
                else:
                    nop(); used += 4; stats['nops'] += 1; continue
            if o.kind in MEM_KINDS and valu_seen:
                st['cyc'] += 8; used += 8; stats['pen'] += 1
            take(o); used += o.cost(); st['cyc'] += o.cost()
            valu_seen = o.kind in VALU_KINDS or (valu_seen and o.kind not in MEM_KINDS)
        if k > 0:
            if used < 8:
                stats['under'] += 8 - used; st['cyc'] += 8 - used
            else: stats['over'] += used - 8
        if m is None: break
        st['k'] = k
        emit(m); st['cyc'] += 8
        used, valu_seen = fill_gap()
    stats['cycles'] = st['cyc']; stats['ninst'] = len(out)
    return out, stats

def check_hazards(seq):
    lastw = {}; readers = {}
    bad = 0
    for n, o in enumerate(seq):
        def chk(pn, p, d, what, r):
            nonlocal bad
            if n - pn - 1 < d:
                print(f'HAZARD {what} {r}: [{pn}] {p.text} -> [{n}] {o.text} need {d}', file=sys.stderr); bad += 1
        for r in o.R:
            if r in lastw: chk(*lastw[r], hz_raw(lastw[r][1], o, r), 'RAW', r)
        for r in o.W:
            if r in lastw: chk(*lastw[r], hz_waw(lastw[r][1], o, r), 'WAW', r)
            for pn, p in readers.get(r, []):
                if p is not o: chk(pn, p, hz_war(p, o, r), 'WAR', r)
        for r in o.R: readers.setdefault(r, []).append((n, o))
        for r in o.W:
            lastw[r] = (n, o); readers[r] = []
    return bad
```

```python
import sys, struct, math
import sched
from sched import *

OPT = dict(store_flags='', ds_lead=8, ds_lat=120, vm_space=3, debug=0, force_slow=0, q_flags='nt', kv_flags='nt',
           ds_sp=3, vshift=0, st_lo=10, st_hi=500, epi_len=20, warm=1)
for a in sys.argv[2:]:
    k, v = a.split('=')
    OPT[k] = int(v) if v.lstrip('-').isdigit() else v.replace('+', ' ')

NAME = 'standalone__gqa_softmax__near_ridge_kernel'
def f32(x): return struct.unpack('<I', struct.pack('<f', x))[0]
CSCALE = math.log2(math.e) / math.sqrt(128.0)
QBYTES = 16*32*496*128*2
KBYTES = 16*16*512*128*2
PAIRQ = 992*256
PAIRK = 512*256

vKa, vVa, vOlo, vOhi = 1, 2, 3, 4
vKd = [5, 6, 7, 8]
vQa = 9
vNM = [10, 11, 12, 13]
vRL = [14, 15, 16, 17]
vBias = 18
vRd = 19
vT = [20, 21, 22, 23]
vWr = [24, 25]
def S(buf, qt): return 32 + 16*buf + 4*qt
def P(par, h, qt): return 64 + 32*par + 16*h + 4*qt
def O(T, qt): return 128 + 16*T + 4*qt
def Q(qt, ks): return 16*qt + 4*ks
def QN(qt, ks): return 64 + 16*qt + 4*ks
def KF(buf, ks): return 128 + 16*buf + 4*ks
def VF(buf, Tb, h): return 160 + 16*buf + 8*Tb + 4*h
def RS(qt): return 192 + 4*qt
ONES = 208
def OST(R, n): return (96 if R == 0 else 212) + 4*n
sQ, sK, sV, sO, sKn, sVn, sQB = 4, 8, 12, 16, 20, 24, 68
sKV, sKVn = 28, 29
sQn = [30, 31, 64, 65]
sOo = [32, 33]
sC, sNC, sThr, sB, sFlag, sW4k = 34, 35, 36, 37, 38, 39
sTK, sTV = 40, 41
sCmp = [48, 50, 52, 54]
sOP = 72
sOp = [76, 77]
sPA = 66
VBASE = 65536

def vr(a, n): return f'v[{a}:{a+n-1}]'
def ar(a, n): return f'a[{a}:{a+n-1}]'
def srd(a): return f's[{a}:{a+3}]'

def mfma(dp, d, ap, a, bp, b, zero):
    c = '0' if zero else f'{dp}[{d}:{d+3}]'
    D = rng(dp, d, 4)
    return Op('mfma', f'v_mfma_f32_16x16x32_bf16 {dp}[{d}:{d+3}], {ap}[{a}:{a+3}], {bp}[{b}:{b+3}], {c}',
              R=rng(ap, a, 4) + rng(bp, b, 4) + ([] if zero else D), W=D, C=([] if zero else D))
def valu(text, R, W, kind='valu', **kw): return Op(kind, text, R=R, W=W, **kw)

def op_RK(a):
    tile, kt = divmod(a, 4)
    slot = tile % 4
    l = []
    for ks in range(4):
        d = KF(a % 2, ks)
        l.append(Op('ds', f'ds_read_b128 {ar(d,4)}, v{vKa} offset:{slot*16384 + kt*4096 + ks*256}',
                    R=[f'v{vKa}', f'Krdy{tile}'], W=rng('a', d, 4), name=('RK', a % 32, ks)))
    return l
def op_RV(b):
    tile, u = divmod(b, 4)
    slot = tile % 4
    l = []
    for Tb in range(2):
        for h in range(2):
            for jh in range(2):
                d = VF(b % 2, Tb, h) + 2*jh
                off = slot*16384 + h*8192 + jh*4096 + u*256 + Tb*8
                l.append(Op('ds', f'ds_read_b64_tr_b16 {ar(d,2)}, v{vVa} offset:{off}',
                            R=[f'v{vVa}', f'Vrdy{tile}'], W=rng('a', d, 2), name=('RV', b % 32, Tb, h, jh)))
    return l
def op_QK(a):
    l = []
    for qt in range(4):
        for ks in range(4):
            l.append(mfma('v', S(a % 2, qt), 'a', KF(a % 2, ks), 'a', Q(qt, ks), ks == 0))
    return l
def op_PV(b):
    t, u = divmod(b, 4)
    l = []
    for Tb in range(2):
        for qt in range(4):
            for h in range(2):
                l.append(mfma('v', O(2*u+Tb, qt), 'a', VF(b % 2, Tb, h), 'v', P(t % 2, h, qt), t == 0 and h == 0))
    return l
def op_RS(t, qt):
    return [mfma('a', RS(qt), 'a', ONES, 'v', P(t % 2, h, qt), t == 0 and h == 0) for h in range(2)]
def op_SM(a):
    t, kt = divmod(a, 4)
    l = []
    for qt in range(4):
        s = S(a % 2, qt)
        for r in range(4):
            l.append(valu(f'v_fma_f32 v{s+r}, v{s+r}, s{sC}, v{vNM[qt]}', [f'v{s+r}', f'v{vNM[qt]}'], [f'v{s+r}']))
        for r in range(4):
            l.append(valu(f'v_exp_f32 v{s+r}, v{s+r}', [f'v{s+r}'], [f'v{s+r}'], kind='trans'))
        p = P(t % 2, kt // 2, qt) + 2*(kt % 2)
        for i in range(2):
            l.append(valu(f'v_cvt_pk_bf16_f32 v{p+i}, v{s+2*i}, v{s+2*i+1}', [f'v{s+2*i}', f'v{s+2*i+1}'], [f'v{p+i}']))
    return l
def perm(n, a, b): return valu(f'v_permlane{n}_swap_b32 v{a}, v{b}', [f'v{a}', f'v{b}'], [f'v{a}', f'v{b}'], kind='perm')
def op_reduce():
    t = vT; n = vNM
    mx = lambda d, a, b: valu(f'v_max_f32 v{d}, v{a}, v{b}', [f'v{a}', f'v{b}'], [f'v{d}'])
    mv = lambda d, a: valu(f'v_mov_b32 v{d}, v{a}', [f'v{a}'], [f'v{d}'])
    return [perm(16, t[0], t[1]), perm(16, t[2], t[3]), mx(t[0], t[0], t[1]), mx(t[2], t[2], t[3]),
            perm(32, t[0], t[2]), mx(t[0], t[0], t[2]),
            valu(f'v_fma_f32 v{n[0]}, v{t[0]}, s{sNC}, v{vBias}', [f'v{t[0]}', f'v{vBias}'], [f'v{n[0]}']),
            mv(n[2], n[0]), perm(32, n[0], n[2]), mv(n[1], n[0]), mv(n[3], n[2]),
            perm(16, n[0], n[1]), perm(16, n[2], n[3])]
def op_MAX():
    l = []
    for qt in range(4):
        s = S(0, qt)
        l.append(valu(f'v_max3_f32 v{vT[qt]}, v{s}, v{s+1}, v{s+2}', rng('v', s, 3), [f'v{vT[qt]}']))
        l.append(valu(f'v_max_f32 v{vT[qt]}, v{vT[qt]}, v{s+3}', [f'v{vT[qt]}', f'v{s+3}'], [f'v{vT[qt]}']))
    return l + op_reduce()
def op_DMA(which, tile, bar):
    slot = tile % 4
    nxt = tile >= 8
    base = sKVn if nxt else sKV
    st = sTK if which == 'K' else sTV
    d = (sKn if nxt else sK) if which == 'K' else (sVn if nxt else sV)
    l = [Op('salu', f's_add_u32 s{st}, s{base}, {(tile % 8)*16384}', R=[f's{base}'], W=[f's{st}', 'scc']),
         Op('salu', f's_add_u32 m0, s{sW4k}, {slot*16384 + (VBASE if which == "V" else 0)}', R=[], W=['m0', 'scc'])]
    for n in range(4):
        va = vKd[n] if which == 'K' else vKd[0]
        l.append(Op('dma', f'buffer_load_dwordx4 v{va}, {srd(d)}, s{st} offen offset:{n*1024} {OPT["kv_flags"]} lds',
                    R=[f'v{va}', f's{st}', 'm0'] + ([bar] if bar else []), W=[], name=(which, tile % 8, n)))
    return l
def op_QD(qt, m0txt, dep=None):
    l = [Op('salu', m0txt, R=[], W=['m0', 'scc'])]
    for n in range(4):
        l.append(Op('dma', f'buffer_load_dwordx4 v{vKd[n]}, {srd(sQ if qt < 2 else sQB)}, s{sQn[qt]} offen offset:{n*1024} {OPT["q_flags"]} lds',
                    R=[f'v{vKd[n]}', f's{sQn[qt]}', 'm0'] + ([dep] if dep else []), W=[], name=('Q', qt, n)))
    return l
def op_QR(qt, dst, va, off, dep):
    return [Op('ds', f'ds_read_b128 {ar(dst(qt,ks),4)}, v{va} offset:{off + ks*256}',
               R=[f'v{va}', dep, 'PA'], W=rng('a', dst(qt, ks), 4), name=('QR', qt, ks)) for ks in range(4)]
def op_L():
    l = []
    for qt in range(4):
        r = vRL[qt]
        l.append(valu(f'v_accvgpr_read_b32 v{r}, a{RS(qt)}', [f'a{RS(qt)}'], [f'v{r}']))
        l.append(valu(f'v_cmp_nge_f32 s[{sCmp[qt]}:{sCmp[qt]+1}], s{sThr}, v{r}', [f'v{r}'], [f's{sCmp[qt]}']))
        l.append(valu(f'v_rcp_f32 v{r}, v{r}', [f'v{r}'], [f'v{r}'], kind='trans'))
    return l
def op_EPI(u):
    l = []
    for qt in range(4):
        a, b = O(2*u, qt), O(2*u+1, qt)
        for x in list(range(a, a+4)) + list(range(b, b+4)):
            l.append(valu(f'v_mul_f32 v{x}, v{x}, v{vRL[qt]}', [f'v{x}', f'v{vRL[qt]}'], [f'v{x}']))
        for i, x in enumerate([a, a+2, b, b+2]):
            l.append(valu(f'v_cvt_pk_bf16_f32 v{a+i}, v{x}, v{x+1}', [f'v{x}', f'v{x+1}'], [f'v{a+i}']))
        l.append(Op('ds', f'ds_write_b128 v{vWr[u%2]}, {vr(a,4)} offset:{qt*2048}',
                    R=rng('v', a, 4) + [f'v{vWr[u%2]}', 'PAw'], W=[f'PA{qt}_{u%2}'], name=('OW', u, qt)))
    return l
def op_OR(R, half):
    return [Op('ds', f'ds_read_b128 {ar(OST(R,n),4)}, v{vRd} offset:{n*1024}',
               R=[f'v{vRd}', f'PA{n//2}_0', f'PA{n//2}_1'], W=rng('a', OST(R, n), 4), name=('OR', R, n)) for n in range(4*half, 4*half+4)]
def op_ST(R, half, dep, prev):
    l = []
    for n in range(4*half, 4*half+4):
        va = vOlo if n < 4 else vOhi
        so = (sOp if prev else sOo)[(n//2) % 2]
        l.append(Op('vst', f'buffer_store_dwordx4 {ar(OST(R,n),4)}, v{va}, {srd(sOP if prev else sO)}, s{so} offen offset:{(n%2)*2048 + R*128} {OPT["store_flags"]}'.rstrip(),
                    R=rng('a', OST(R, n), 4) + [f'v{va}', f's{so}', dep], W=[], name=('O', R, n)))
    return l
def op_OUT(R):
    l = []
    for half in range(2):
        rd = op_OR(R, half)
        l += rd + [wlg(rd, f'wO{R}_{half}')] + op_ST(R, half, f'wO{R}_{half}', False)
    return l
def wlg(targets, tag, prev=None):
    o = Op('wlg', None, W=[tag], targets=targets)
    o.prev_targets = [t.name for t in targets] if prev is None else prev
    return o
def wvm(names, tag, byname):
    o = Op('wvm', None, W=[tag], targets=[byname[x] for x in names if x in byname])
    o.prev_targets = names
    return o

class Seg:
    def __init__(self):
        self.ops = []; self.nm = 0; self.byname = {}
    def add(self, l, need=None):
        for i, o in enumerate(l):
            if need and i == 0: o.R += need if isinstance(need, list) else [need]
            if o.kind == 'mfma': self.nm += 1
            if o.kind in ('dma', 'vld', 'vst'): self.byname[o.name] = o
            self.ops.append(o)
        return l
    def reads(self, l, tag, at):
        n = len(l)
        for i, o in enumerate(l):
            o.due = at - OPT['ds_lead'] - (n - 1 - i) * OPT['ds_sp']
            o.earliest = o.due - 2
        self.add(l)
        if tag: self.add([wlg(l, tag)])
    def spread(self, l, lo, hi):
        mem = [o for o in l if o.kind in MEM_KINDS]
        for i, o in enumerate(mem):
            pos = lo + (hi - lo) * (i + 0.5) / len(mem)
            o.earliest = int(pos) - 2; o.due = pos + 4
        for i, o in enumerate(l):
            if o.kind == 'salu':
                nx = next(x for x in l[i:] if x.kind in MEM_KINDS)
                o.earliest = nx.earliest - 6
        self.add(l)
    def barrier(self, nn, pos, waits):
        names = [('K', (nn+1) % 8, i) for i in range(4)] + [('V', nn % 8, i) for i in range(4)]
        wv = wvm(names, f'wvm{nn}', self.byname); wv.earliest = pos - 3
        bo = Op('bar', 's_barrier', R=[f'wvm{nn}'] + waits, W=[f'bar{nn}', f'Krdy{nn+1}', f'Vrdy{nn}'])
        bo.earliest = pos - 1; bo.due = pos + 1
        self.add([wv, bo])

def seg_A():
    g = Seg()
    start = {s: (s - 4) * 34 for s in range(4, 33)}
    barpos = {nn: start[4*nn+3] + 16 for nn in range(1, 8)}
    barpos[0] = -2
    def interval(nn, extra):
        bar = f'bar{nn}' if nn >= 1 else None
        l = op_DMA('K', nn + 4, bar) + op_DMA('V', nn + 3, bar) + extra
        g.spread(l, barpos[nn] + 2, barpos[nn+1] - 6)
    qm0 = lambda j: f's_add_u32 m0, s{sPA}, {4096*j}'
    extras = {0: op_QD(0, qm0(0), 'wK4'), 1: op_QD(1, qm0(1), 'wK4'), 4: op_QD(2, qm0(0), 'wQA'), 5: op_QD(3, qm0(1), 'wQA')}
    w = wlg([], 'wK4', prev=[('RK', 4, ks) for ks in range(4)] + [('OR', R, n) for R in range(2) for n in range(8)]); w.due = -1
    g.add([w])
    sts = sum([op_ST(R, hf, 'wK4', True) for hf in range(2) for R in range(2)], [])
    sts.sort(key=lambda o: (o.name[2], o.name[1]))
    g.spread(sts, OPT['st_lo'], OPT['st_hi'])
    interval(0, extras[0])
    for s in range(4, 32):
        if s > 4: g.reads(op_RK(s), f'wK{s}', start[s])
        g.add(op_QK(s), f'wK{s}')
        g.add(op_SM(s - 1))
        b = s - 4
        g.reads(op_RV(b), f'wV{b}', start[s] + 16)
        if s % 4 == 3: g.barrier(s // 4, barpos[s // 4], [f'wK{s}', f'wV{b}'])
        g.add(op_PV(b), f'wV{b}')
        g.add(op_RS(b // 4, b % 4))
        if s == 17:
            wq = wvm([('Q', qt, n) for qt in range(2) for n in range(4)], 'vQA', g.byname); wq.earliest = start[17]
            g.add([wq])
            g.reads(op_QR(0, QN, vQa, 0, 'vQA') + op_QR(1, QN, vQa, 4096, 'vQA'), 'wQA', barpos[4] + 8)
        if s % 4 == 3 and s // 4 <= 6: interval(s // 4, extras.get(s // 4, []))
    g.reads(op_RV(28), None, start[32] + 12)
    return g.ops

def seg_tail(drain, fill):
    g = Seg()
    pos = {}; n = 0
    order = []
    if drain: order += [('RS', 0), ('PV', 28), ('PV', 29)]
    for i in range(4):
        if fill: order.append(('QK', 32 + i))
        if drain and i < 2: order.append(('PV', 30 + i))
    for k in order:
        pos[k] = n; n += 8 if k[0] == 'RS' else 16
    total = n
    if drain:
        g.add(op_SM(31))
        w = wlg([], 'wV28', prev=[o.name for o in op_RV(28)]); g.add([w])
    if drain and fill:
        wq = wvm([('Q', qt, n) for qt in range(2, 4) for n in range(4)], 'vQB', g.byname); wq.due = -5
        g.add([wq])
        g.reads(op_QR(2, Q, vQa, 0, 'vQB') + op_QR(3, Q, vQa, 4096, 'vQB'), 'wQB', pos[('QK', 32)] + 8)
        for o in g.ops:
            if o.kind == 'ds': o.earliest = None; o.R.remove('PA'); o.R += [f'PA{q}_{p}' for q in range(4) for p in range(2)]
        for i in range(32):
            g.add([valu(f'v_accvgpr_mov_b32 a{i}, a{64+i}', [f'a{64+i}'], [f'a{i}'])])
    if drain and not fill:
        wq = wvm([('Q', qt, n) for qt in range(2, 4) for n in range(4)], 'PAw', g.byname); wq.earliest = 8
        g.add([wq])
    if fill:
        barp = pos[('QK', 35)] + 1
        g.spread(op_DMA('K', 11, None) + op_DMA('V', 10, None), 2, barp - 6)
    for k in order:
        if k[0] == 'RS':
            for qt in range(4): g.add(op_RS(7, qt))
            g.add(op_L())
        elif k[0] == 'PV':
            b = k[1]
            if b > 28: g.reads(op_RV(b), f'wV{b}', pos[k])
            g.add(op_PV(b), f'wV{b}')
            ep = op_EPI(b - 28)
            for i, o in enumerate(ep): o.due = pos[k] + 16 + 4 + OPT['epi_len'] * i / len(ep)
            g.add(ep)
            if b % 2 == 1:
                R = (b - 28) // 2
                out = op_OUT(R) if not fill else op_OR(R, 0) + op_OR(R, 1)
                for i, o in enumerate(out): o.due = pos[k] + 16 + 4 + OPT['epi_len'] * (0.5 + 0.5 * i / len(out)) + (6 if o.kind != 'ds' else 0)
                g.add(out)
        else:
            a = k[1]
            if a == 32 and not drain:
                pass
            else: g.reads(op_RK(a), f'wK{a}', pos[k])
            qk = op_QK(a)
            if a == 32 and drain: qk[8].R.append('wQB')
            if a == 35: g.barrier(8, barp, [f'wK{a}'] + (['wV31'] if drain else []))
            g.add(qk, f'wK{a}' if (a > 32 or drain) else None)
            if a == 32: g.add(op_MAX())
            if a > 32: g.add(op_SM(a - 33))
    if fill:
        g.reads(op_RK(36), None, total + 4)
    return g.ops

def resolve_waits(seqs):
    res = {}
    for kind, kinds, fmt, mx in (('wvm', ('dma', 'vld', 'vst'), 'vmcnt', 63), ('wlg', ('ds',), 'lgkmcnt', 15)):
        hist = []
        for si, sq in enumerate(seqs):
            for o in sq:
                if o.kind in kinds: hist.append(o.name)
                elif o.kind == kind:
                    last = max(len(hist) - 1 - hist[::-1].index(x) for x in o.prev_targets if x in hist)
                    res.setdefault(o, []).append(len(hist) - 1 - last)
        for o, l in res.items():
            if o.kind == kind: o.text = f's_waitcnt {fmt}({min(min(l), mx)})'
    return res

def lines(ops): return ''.join('    ' + o.text + '\n' for o in ops)
def padded(ops):
    build_deps(ops)
    out = []
    for o in ops:
        need = 0
        for p, d in o.preds.items():
            need = max(need, d - (len(out) - p.pos - 1))
        for _ in range(need): out.append(Op('salu', 's_nop 0'))
        o.pos = len(out); out.append(o)
    return out

def dbg_lines(ops, first):
    txt = ''; n = first
    for o in ops:
        txt += '    ' + o.text + '\n'
        if o.kind == 'bar':
            txt += f'    s_memtime s[{78+2*n}:{79+2*n}]\n'; n += 1
    return txt, n
DUMP = '    s_memtime s[96:97]\n    s_waitcnt lgkmcnt(0)\n' + ''.join(
    f'    v_writelane_b32 v28, s{78+2*i}, {i}\n' for i in range(11)) + \
    '    s_mov_b64 exec, 0xffff\n    buffer_store_dword v28, v29, s[60:63], s59 offen\n    s_mov_b64 exec, -1\n    s_add_u32 s59, s59, 64\n'

def main():
    segs = {}
    for nme, ops in (('A', seg_A()), ('B', seg_tail(True, True)), ('F', seg_tail(False, True)), ('D', seg_tail(True, False))):
        segs[nme], stats = schedule(ops, OPT['ds_lead'], OPT['ds_lat'], OPT['vm_space'])
        print(nme, stats, file=sys.stderr)
    A = []
    w = A.append
    w(f'''; GQA attention forward, B=16 Hq=32 Hkv=16 Sq=496 Sk=512 D=128, bf16.  Generated by gen/gen.py (own generator).
; @launch grid=(256,1,1) block=(256,1,1) lds=163840
.amdgcn_target "amdgcn-amd-amdhsa--gfx950"
.text
.globl {NAME}
.p2align 8
.type {NAME},@function
{NAME}:
    s_cmp_ge_u32 s2, 256
    s_cbranch_scc1 L_end
    s_load_dwordx4 s[56:59], s[0:1], 0
    s_load_dwordx4 s[60:63], s[0:1], 16
    v_lshrrev_b32 v20, 6, v0
    v_and_b32 v21, 63, v0                 ; lane
    v_readfirstlane_b32 s42, v20          ; wave
    v_and_b32 v22, 15, v21                ; i
    v_lshrrev_b32 v23, 4, v21             ; g
    v_lshrrev_b32 v26, 2, v22             ; i/4
    v_and_b32 v27, 3, v21                 ; i%4
    ; DMA lane part: (i/4)*256 + g*64 + ((i%4)^f(n))*16
    v_lshlrev_b32 v30, 8, v26
    v_lshl_add_u32 v30, v23, 6, v30
    v_lshl_add_u32 v{vKd[0]}, v27, 4, v30
    v_xor_b32 v{vKd[1]}, 48, v{vKd[0]}
    v_xor_b32 v{vKd[2]}, 32, v{vKd[0]}
    v_xor_b32 v{vKd[3]}, 16, v{vKd[0]}
    s_and_b32 s43, s2, 7                  ; xcd
    s_lshr_b32 s44, s2, 3
    s_lshr_b32 s45, s44, 2                ; group
    s_and_b32 s44, s44, 3                 ; qb
    s_lshl_b32 s43, s43, 5
    s_add_u32 s43, s43, s45               ; pair0
    s_lshl_b32 s{sW4k}, s42, 12
    s_lshl_b32 s{sKVn}, s43, 17
    s_add_u32 s{sKVn}, s{sKVn}, s{sW4k}
    s_mul_i32 s45, s43, {PAIRQ}
    s_lshl_b32 s46, s44, 16
    s_add_u32 s45, s45, s46
    s_lshl_b32 s46, s42, 14
    s_add_u32 s{sQn[0]}, s45, s46
    s_add_u32 s{sQn[1]}, s{sQn[0]}, 4096
    s_lshl_b32 s{sPA}, s42, 13
    s_add_u32 s{sPA}, s{sPA}, 131072
    s_lshl_b32 s46, s44, 2
    s_add_u32 s46, s46, s42
    s_cmp_eq_u32 s46, 15
    s_cselect_b32 s46, 0x40000000, 8192
    s_cselect_b32 s47, 0xff800000, 0
    s_cselect_b32 s45, 0, 8192
    s_cselect_b32 s{sQB+2}, 0, {QBYTES}
    s_add_u32 s{sQn[2]}, s{sQn[0]}, s45
    s_add_u32 s{sQn[3]}, s{sQn[1]}, s45
    s_mov_b32 s{sQ+2}, {QBYTES}
    s_mov_b32 s{sQ+3}, 0x20000
    s_mov_b32 s{sQB+3}, 0x20000
    s_mov_b32 s{sKn+2}, {KBYTES}
    s_mov_b32 s{sKn+3}, 0x20000
    s_mov_b32 s{sVn+2}, {KBYTES}
    s_mov_b32 s{sVn+3}, 0x20000
    s_waitcnt lgkmcnt(0)
    s_mov_b32 s{sKn}, s58
    s_mov_b32 s{sKn+1}, s59
    s_mov_b32 s{sQ}, s56
    s_mov_b32 s{sQ+1}, s57
    s_mov_b32 s{sQB}, s56
    s_mov_b32 s{sQB+1}, s57
    s_mov_b32 s{sVn}, s60
    s_mov_b32 s{sVn+1}, s61
''')
    if OPT['debug']:
        w('''    s_memtime s[100:101]
    s_memrealtime s[98:99]
    s_waitcnt lgkmcnt(0)
    s_mov_b32 s67, s98
''')
    QTMP = [None, None, VBASE + 3*16384, 3*16384]
    pro = op_DMA('K', 8, None)
    pro += op_QD(0, f's_add_u32 m0, s{sPA}, 0') + op_QD(1, f's_add_u32 m0, s{sPA}, 4096')
    pro += op_QD(2, f's_add_u32 m0, s{sW4k}, {QTMP[2]}') + op_QD(3, f's_add_u32 m0, s{sW4k}, {QTMP[3]}')
    pro += op_DMA('K', 9, None) + op_DMA('V', 8, None) + op_DMA('K', 10, None) + op_DMA('V', 9, None)
    pro = padded(pro)
    w(lines(pro))
    nwarm = 0
    if OPT['warm']:
        nwarm = 1
        w(f'''    s_getpc_b64 s[78:79]
L_pc:
    v_lshlrev_b32 v30, 7, v0
    v_min_u32 v30, L_end-L_pc, v30
    global_load_dword a255, v30, s[78:79]
''')
        pro.append(Op('vld', 'x', name=('warm', 0)))
    w(f'''    ; remaining setup under the load latency
    s_mov_b32 s{sK}, s58
    s_mov_b32 s{sK+1}, s59
    s_mov_b32 s{sK+2}, {KBYTES}
    s_mov_b32 s{sK+3}, 0x20000
    s_mov_b32 s{sV}, s60
    s_mov_b32 s{sV+1}, s61
    s_mov_b32 s{sV+2}, {KBYTES}
    s_mov_b32 s{sV+3}, 0x20000
    s_mov_b32 s{sO}, s62
    s_mov_b32 s{sO+1}, s63
    s_mov_b32 s{sO+2}, {QBYTES}
    s_mov_b32 s{sO+3}, 0x20000
    s_mov_b32 s{sOP}, s62
    s_mov_b32 s{sOP+1}, s63
    s_mov_b32 s{sOP+3}, 0x20000
    s_mov_b32 s{sOo[0]}, 0
    s_mov_b32 s{sOo[1]}, 0
    v_sub_u32 v30, 0, v26
    v_and_b32 v30, 3, v30                 ; f(i/4)
    v_xor_b32 v30, v30, v23
    v_lshlrev_b32 v30, 4, v30
    v_lshl_add_u32 v30, v27, 6, v30
    v_lshl_add_u32 v{vKa}, v26, 10, v30
    v_add_u32 v{vQa}, s{sPA}, v{vKa}
    v_lshlrev_b32 v30, 10, v23
    v_lshl_add_u32 v30, v26, 6, v30
    v_lshl_add_u32 v30, v27, 4, v30
    v_add_u32 v{vVa}, {VBASE}, v30
    ; O staging: write addr = PA + i*128 + ((g ^ (i&7))*16); read addr = PA + lane*16; store lane part = (l/8)*256 + ((l%8)^(l/8))*16
    v_and_b32 v30, 7, v21
    v_xor_b32 v31, v30, v23
    v_lshlrev_b32 v31, 4, v31
    v_lshl_add_u32 v31, v22, 7, v31
    v_add_u32 v{vWr[0]}, s{sPA}, v31
    v_xor_b32 v{vWr[1]}, 64, v{vWr[0]}
    v_lshlrev_b32 v31, 4, v21
    v_add_u32 v{vRd}, s{sPA}, v31
    v_lshrrev_b32 v31, 3, v21
    v_xor_b32 v30, v30, v31
    v_lshlrev_b32 v30, 4, v30
    v_lshl_add_u32 v{vOlo}, v31, 8, v30
    v_add_u32 v{vOhi}, s46, v{vOlo}
    v_mov_b32 v30, s47
    v_cmp_lt_u32 vcc, 31, v21
    v_mov_b32 v31, 0x3f803f80
    s_mov_b32 s{sC}, {hex(f32(CSCALE))}
    v_cndmask_b32 v{vBias}, 0, v30, vcc
    s_mov_b32 s{sNC}, {hex(f32(-CSCALE))}
    s_mov_b32 s{sThr}, {hex(f32(2.0**64) if not OPT['force_slow'] else f32(-1.0))}
    s_mov_b32 s{sB}, -1
    s_mov_b32 s{sFlag}, 0
    s_mov_b64 s[{sCmp[0]}:{sCmp[0]+1}], 0
    s_mov_b64 s[{sCmp[1]}:{sCmp[1]+1}], 0
    s_mov_b64 s[{sCmp[2]}:{sCmp[2]+1}], 0
    s_mov_b64 s[{sCmp[3]}:{sCmp[3]+1}], 0
    v_accvgpr_write_b32 a{ONES}, v31
    v_accvgpr_write_b32 a{ONES+1}, v31
    v_accvgpr_write_b32 a{ONES+2}, v31
    v_accvgpr_write_b32 a{ONES+3}, v31
    v_add_u32 v30, s{sW4k}, v{vKa}
    v_add_u32 v31, {VBASE}, v30
''')
    rk0 = op_RK(32)
    qr = [op_QR(0, Q, vQa, 0, 'x'), op_QR(1, Q, vQa, 4096, 'x'), op_QR(2, Q, 31, 3*16384, 'x'), op_QR(3, Q, 30, 3*16384, 'x')]
    dummies = lambda nd: [Op('vst', f'buffer_store_dword v31, v31, {srd(sO)}, 0 offen', name=('dummy', i)) for i in range(nd)]
    seqs0 = lambda nd: [pro + rk0, segs['F'], dummies(nd)] + [segs['A'], segs['B']] * 3 + [segs['A'], segs['D']]
    r = resolve_waits(seqs0(0))
    nd = max(min(l[-1], 63) - l[0] for o, l in r.items() if o.kind == 'wvm' and len(l) > 1)
    sq = seqs0(nd)
    r = resolve_waits(sq)
    print('dummies', nd, [(o.text, l) for o, l in r.items() if o.kind == 'wvm'], file=sys.stderr)
    tot = len([o for o in pro if o.kind in ('dma', 'vld')])
    w(f'    s_waitcnt vmcnt({tot - 4})\n    s_barrier\n')
    w(lines(rk0))
    for qt in range(4):
        w(f'    s_waitcnt vmcnt({tot - 4 - 4*(qt+1)})\n')
        w(lines(qr[qt]))
    w('    s_waitcnt lgkmcnt(0)\n    v_mov_b32 v31, 0x40000000\n')
    if OPT['debug']:
        w('''    s_load_dwordx2 s[60:61], s[0:1], 40
    s_mov_b32 s62, 0x1000000
    s_mov_b32 s63, 0x20000
    s_lshl_b32 s59, s2, 2
    s_add_u32 s59, s59, s42
    s_lshl_b32 s59, s59, 9
    v_lshlrev_b32 v29, 2, v21
    s_waitcnt lgkmcnt(0)
''')
    upd = f'''L_next:
    s_or_b64 s[{sCmp[0]}:{sCmp[0]+1}], s[{sCmp[0]}:{sCmp[0]+1}], s[{sCmp[1]}:{sCmp[1]+1}]
    s_or_b64 s[{sCmp[2]}:{sCmp[2]+1}], s[{sCmp[2]}:{sCmp[2]+1}], s[{sCmp[3]}:{sCmp[3]+1}]
    s_or_b64 s[{sCmp[0]}:{sCmp[0]+1}], s[{sCmp[0]}:{sCmp[0]+1}], s[{sCmp[2]}:{sCmp[2]+1}]
    s_cselect_b32 s42, 1, 0
    s_lshl_b32 s42, s42, s{sB}
    s_or_b32 s{sFlag}, s{sFlag}, s42
    s_mov_b32 s{sOp[0]}, s{sOo[0]}
    s_mov_b32 s{sOp[1]}, s{sOo[1]}
    s_mov_b32 s{sOo[0]}, s{sQn[0]}
    s_mov_b32 s{sOo[1]}, s{sQn[1]}
    s_mov_b32 s{sKV}, s{sKVn}
    s_add_u32 s{sB}, s{sB}, 1
    s_cselect_b32 s{sOP+2}, 0, {QBYTES}
    s_cmp_lt_u32 s{sB}, 3
    s_cselect_b32 s42, {8*PAIRQ}, 0
    s_cselect_b32 s45, {8*PAIRK}, 0
    s_cselect_b32 s{sQ+2}, s{sQ+2}, 0
    s_cselect_b32 s{sQB+2}, s{sQB+2}, 0
    s_cselect_b32 s{sKn+2}, s{sKn+2}, 0
    s_cselect_b32 s{sVn+2}, s{sVn+2}, 0
    s_add_u32 s{sQn[0]}, s{sQn[0]}, s42
    s_add_u32 s{sQn[1]}, s{sQn[1]}, s42
    s_add_u32 s{sQn[2]}, s{sQn[2]}, s42
    s_add_u32 s{sQn[3]}, s{sQn[3]}, s42
    s_add_u32 s{sKVn}, s{sKVn}, s45
'''
    pad = lambda n: [Op('salu', 'x') for _ in range(n)]
    bad = check_hazards(segs['F'] + pad(22) + segs['A'] + pad(2) + segs['B'] + pad(22) + segs['A'] + pad(2) + segs['D'])
    assert bad == 0, bad
    if not OPT['debug']:
        w(lines(segs['F']))
        w(lines(sq[2]))
        w(upd)
        w(lines(segs['A']))
        w(f'    s_cmp_eq_u32 s{sB}, 3\n    s_cbranch_scc1 L_final\n')
        w(lines(segs['B']))
        w('    s_branch L_next\nL_final:\n')
        w(lines(segs['D']))
    else:
        w('    s_memtime s[92:93]\n')
        w(dbg_lines(segs['F'], 8)[0]); w(DUMP)
        w(lines(sq[2]))
        w(upd)
        w('    s_memtime s[78:79]\n    s_memrealtime s[98:99]\n')
        w(dbg_lines(segs['A'], 1)[0])
        w(f'    s_cmp_eq_u32 s{sB}, 3\n    s_cbranch_scc1 L_final\n')
        w(dbg_lines(segs['B'], 8)[0]); w(DUMP)
        w('    s_branch L_next\nL_final:\n')
        w(lines(segs['D'])); w('    s_memtime s[94:95]\n'); w(DUMP)
        w('''    s_waitcnt vmcnt(0)
    s_memtime s[78:79]
    s_memrealtime s[98:99]
    s_waitcnt lgkmcnt(0)
    v_mov_b32 v28, s78
    v_mov_b32 v29, s98
    v_mov_b32 v30, s100
    v_mov_b32 v31, s67
    s_mov_b64 exec, 1
    buffer_store_dwordx4 v[28:31], off, s[60:63], s59
    s_mov_b64 exec, -1
''')
    w(f'''    s_or_b64 s[{sCmp[0]}:{sCmp[0]+1}], s[{sCmp[0]}:{sCmp[0]+1}], s[{sCmp[1]}:{sCmp[1]+1}]
    s_or_b64 s[{sCmp[2]}:{sCmp[2]+1}], s[{sCmp[2]}:{sCmp[2]+1}], s[{sCmp[3]}:{sCmp[3]+1}]
    s_or_b64 s[{sCmp[0]}:{sCmp[0]+1}], s[{sCmp[0]}:{sCmp[0]+1}], s[{sCmp[2]}:{sCmp[2]+1}]
    s_cselect_b32 s42, 8, 0
    s_or_b32 s{sFlag}, s{sFlag}, s42
''')
    w(slow_path())
    w(f'''L_end:
    s_endpgm
.section .rodata,"a"
.p2align 6
.amdhsa_kernel {NAME}
  .amdhsa_next_free_vgpr 512
  .amdhsa_next_free_sgpr {102 if OPT['debug'] else 80}
  .amdhsa_accum_offset 256
  .amdhsa_group_segment_fixed_size 0
  .amdhsa_kernarg_size 48
  .amdhsa_user_sgpr_count 2
  .amdhsa_user_sgpr_kernarg_segment_ptr 1
  .amdhsa_system_sgpr_workgroup_id_x 1
.end_amdhsa_kernel
''')
    open(sys.argv[1], 'w').write(''.join(A))

def slow_path():
    raw = lambda t: Op('salu', t)
    T = []
    w = T.append
    sPair, sKoff, sJ = 56, 57, 58
    vF, vFh, vTr = 26, 27, 30
    w(f'''    s_cmp_eq_u32 s{sFlag}, 0
    s_cbranch_scc1 L_end
    s_waitcnt vmcnt(0) lgkmcnt(0)
    s_mov_b32 s{sQ+2}, {QBYTES}
    s_sub_u32 s42, s{sPA}, {VBASE}
    v_add_u32 v{vTr}, s42, v{vVa}
    v_and_b32 v20, 15, v0
    v_bfe_u32 v21, v0, 4, 2
    v_lshlrev_b32 v20, 8, v20
    v_lshl_add_u32 v{vF}, v21, 4, v20
    v_add_u32 v{vFh}, s46, v{vF}
    s_mov_b32 s{sB}, 0
L_slow_blk:
    s_lshr_b32 s42, s{sFlag}, s{sB}
    s_and_b32 s42, s42, 1
    s_cmp_eq_u32 s42, 0
    s_cbranch_scc1 L_slow_next
    s_lshl_b32 s42, s{sB}, 3
    s_add_u32 s{sPair}, s43, s42
    s_mul_i32 s42, s{sPair}, {PAIRQ}
    s_lshl_b32 s45, s44, 16
    s_add_u32 s42, s42, s45
    s_lshl_b32 s45, s{sW4k}, 2
    s_add_u32 s{sOo[0]}, s42, s45
    s_add_u32 s{sOo[1]}, s{sOo[0]}, 4096
''')
    for qt in range(4):
        for ks in range(4):
            w(f'    buffer_load_dwordx4 {ar(Q(qt,ks),4)}, v{vF if qt < 2 else vFh}, {srd(sQ)}, s{sOo[qt%2]} offen offset:{ks*64}\n')
    for qt in range(4): w(f'    v_mov_b32 v{vT[qt]}, 0xff800000\n')
    w(f'''    s_lshl_b32 s{sKoff}, s{sPair}, 17
    s_mov_b32 s{sJ}, 0
L_slow_p1:
''')
    def kload(buf):
        return [raw(f'buffer_load_dwordx4 {ar(KF(buf,ks),4)}, v{vF}, {srd(sK)}, s{sKoff} offen offset:{ks*64}') for ks in range(4)]
    w(lines(kload(0)))
    w('    s_waitcnt vmcnt(0)\n')
    l = op_QK(0)
    for qt in range(4):
        s = S(0, qt)
        l.append(valu(f'v_max3_f32 v{vT[qt]}, v{s}, v{s+1}, v{vT[qt]}', [f'v{s}', f'v{s+1}', f'v{vT[qt]}'], [f'v{vT[qt]}']))
        l.append(valu(f'v_max3_f32 v{vT[qt]}, v{s+2}, v{s+3}, v{vT[qt]}', [f'v{s+2}', f'v{s+3}', f'v{vT[qt]}'], [f'v{vT[qt]}']))
    w(lines(padded(l)))
    w(f'''    s_add_u32 s{sKoff}, s{sKoff}, 4096
    s_add_u32 s{sJ}, s{sJ}, 1
    s_cmp_lt_u32 s{sJ}, 32
    s_cbranch_scc1 L_slow_p1
''')
    w(lines(padded(op_reduce())))
    for i in range(128): w(f'    v_mov_b32 v{128+i}, 0\n')
    for i in range(16): w(f'    v_accvgpr_write_b32 a{RS(0)+i}, 0\n')
    w(f'''    s_lshl_b32 s{sKoff}, s{sPair}, 17
    s_mov_b32 s{sJ}, 0
L_slow_p2:
''')
    w(f'    s_mov_b32 m0, s{sPA}\n    s_nop 0\n')
    for n in range(4): w(f'    buffer_load_dwordx4 v{vKd[0]}, {srd(sV)}, s{sKoff} offen offset:{n*1024} lds\n')
    w(lines(kload(0)))
    w(f'    s_add_u32 s{sKoff}, s{sKoff}, 4096\n    s_add_u32 m0, s{sPA}, 4096\n    s_nop 0\n')
    for n in range(4): w(f'    buffer_load_dwordx4 v{vKd[0]}, {srd(sV)}, s{sKoff} offen offset:{n*1024} lds\n')
    w(lines(kload(1)))
    w(f'    s_add_u32 s{sKoff}, s{sKoff}, 4096\n    s_waitcnt vmcnt(0)\n')
    l = op_QK(0) + op_QK(1) + op_SM(0) + op_SM(1)
    for qt in range(4): l.append(mfma('a', RS(qt), 'a', ONES, 'v', P(0, 0, qt), False))
    w(lines(padded(l)))
    for u in range(4):
        for Tb in range(2):
            for jh in range(2):
                d = VF(0, Tb, 0) + 2*jh
                w(f'    ds_read_b64_tr_b16 {ar(d,2)}, v{vTr} offset:{jh*4096 + u*256 + Tb*8}\n')
        w('    s_waitcnt lgkmcnt(0)\n')
        for Tb in range(2):
            for qt in range(4):
                w('    ' + mfma('v', O(2*u+Tb, qt), 'a', VF(0, Tb, 0), 'v', P(0, 0, qt), False).text + '\n')
        w('    s_nop 7\n')
    w(f'''    s_add_u32 s{sJ}, s{sJ}, 1
    s_cmp_lt_u32 s{sJ}, 16
    s_cbranch_scc1 L_slow_p2
    s_nop 7
''')
    l = op_L()
    for u in range(4):
        l += op_EPI(u)
        if u % 2: l += op_OUT(u // 2)
    for o in l:
        if o.kind == 'wlg': o.text = 's_waitcnt lgkmcnt(0)'
    w(lines(padded(l)))
    w(f'''    s_waitcnt vmcnt(0)
L_slow_next:
    s_add_u32 s{sB}, s{sB}, 1
    s_cmp_lt_u32 s{sB}, 4
    s_cbranch_scc1 L_slow_blk
''')
    return ''.join(T)

main()
```

```python
import sys
s = open(sys.argv[1]).read()
mode = sys.argv[3]
s = s.replace(".amdhsa_next_free_sgpr 96", ".amdhsa_next_free_sgpr 100")
s = s.replace("    s_load_dwordx4 s[56:59], s[0:1], 0\n", "    s_memrealtime s[80:81]\n    s_memtime s[82:83]\n    s_load_dwordx4 s[56:59], s[0:1], 0\n", 1)
if '    s_branch L_cut\n' in s: s = s.replace("    s_branch L_cut\n", "    s_memrealtime s[84:85]\n    s_memtime s[86:87]\n    s_branch L_cut\n", 1)
else: s = s.replace("L_next:\n", "    s_memrealtime s[84:85]\n    s_memtime s[86:87]\nL_next:\n", 1)
s = s.replace("L_final:\n", "L_final:\n    s_memrealtime s[92:93]\n    s_memtime s[96:97]\n", 1)
calc = {
 'cyc': "    s_sub_u32 s90, s90, s82\n    s_lshr_b32 s90, s90, 5\n",
 'rt': "    s_sub_u32 s90, s88, s80\n",
 'pro': "    s_sub_u32 s90, s84, s80\n    s_mul_i32 s90, s90, 4\n",
 'midrt': "    s_sub_u32 s90, s92, s84\n",
 'midcyc': "    s_sub_u32 s90, s96, s86\n    s_lshr_b32 s90, s90, 5\n",
 'tail': "    s_sub_u32 s90, s88, s92\n    s_mul_i32 s90, s90, 4\n",
}[mode]
t = s.replace("    s_cmp_eq_u32 s38, 0\n    s_cbranch_scc1 L_end\n", f"""    s_waitcnt vmcnt(0)
    s_memrealtime s[88:89]
    s_memtime s[90:91]
    s_waitcnt lgkmcnt(0)
{calc}    s_add_u32 s90, s90, 10000
L_spin:
    s_memrealtime s[78:79]
    s_waitcnt lgkmcnt(0)
    s_sub_u32 s78, s78, s80
    s_cmp_lt_u32 s78, s90
    s_cbranch_scc1 L_spin
    s_cmp_eq_u32 s38, 0
    s_cbranch_scc1 L_end
""", 1)
assert 'L_spin' in t
open(sys.argv[2], 'w').write(t)
```

```python
import re, sys

DSW_COST = 20
VM_COST = 8
ST_COST = 8
PK_LEAD = 20
PK_MIN = 2
VALU_KINDS = ('valu', 'trans', 'perm', 'pk')
NORM_KINDS = ('valu', 'trans', 'perm')
MEM_KINDS = ('ds', 'dma', 'vld', 'vst')
SALU_KINDS = ('salu', 'wlg', 'wvm', 'bar')

def rng(p, a, n):
    return [f'{p}{i}' for i in range(a, a + n)]

class Op:
    __slots__ = ('kind', 'text', 'R', 'W', 'C', 'due', 'earliest', 'targets', 'preds', 'succs', 'idx',
                 'pos', 'cyc', 'name', 'midx', 'extra', 'prev_targets')
    def __init__(self, kind, text, R=(), W=(), C=(), due=None, earliest=None, targets=None, name=None, after=()):
        self.kind = kind; self.text = text
        self.R = list(R); self.W = list(W); self.C = list(C)
        self.due = due; self.earliest = earliest
        self.targets = targets; self.prev_targets = None
        self.preds = {}; self.succs = []
        self.pos = None; self.cyc = None; self.name = name; self.midx = None
        self.extra = list(after)
    def cost(self):
        if self.kind == 'ds' and self.text.startswith('ds_write'): return DSW_COST
        if self.kind == 'dma': return VM_COST
        if self.kind == 'vst': return ST_COST
        return 8 if self.kind in ('trans', 'mfma') else 4

def is_reg(r):
    return re.match(r'^[va]\d+$', r) is not None

def hz_raw(p, c, r):
    if r == 'm0':
        return 1 if c.kind == 'dma' else 0
    if not is_reg(r):
        if p.kind in VALU_KINDS and c.kind in MEM_KINDS: return 5
        if p.kind in VALU_KINDS and c.kind in VALU_KINDS: return 2
        if p.kind in VALU_KINDS: return 1
        return 0
    if p.kind == 'mfma':
        if c.kind == 'mfma':
            return 0 if (r in c.C and set(c.C) == set(p.W)) else 8
        return 8
    if p.kind in VALU_KINDS:
        if c.kind == 'mfma': return 2
        if c.kind == 'perm': return 2
        if p.kind == 'trans' and c.kind != 'trans': return 1
        return 0
    return 0
def hz_waw(p, c, r):
    if is_reg(r) and p.kind == 'mfma' and c.kind != 'mfma': return 8
    return 0
def hz_war(p, c, r):
    if not is_reg(r): return 0
    if p.kind == 'mfma' and r in p.C and c.kind in VALU_KINDS: return 3
    if p.kind == 'vst' and c.kind in VALU_KINDS: return 2
    if p.kind == 'vst': return 1
    return 0

def build_deps(ops):
    lastw = {}; readers = {}
    prev_m = None
    mi = 0
    for i, o in enumerate(ops):
        o.idx = i
        def add(p, d):
            if p is o: return
            o.preds[p] = max(o.preds.get(p, 0), d)
        for r in o.R:
            if r in lastw: add(lastw[r], hz_raw(lastw[r], o, r))
        for r in o.W:
            if r in lastw: add(lastw[r], hz_waw(lastw[r], o, r))
            for p in readers.get(r, []): add(p, hz_war(p, o, r))
        for p in o.extra: add(p, 0)
        if o.targets:
            for p in o.targets: add(p, 0)
        if o.kind == 'mfma':
            if prev_m is not None: add(prev_m, 0)
            prev_m = o; o.midx = mi; mi += 1
        for r in o.R: readers.setdefault(r, []).append(o)
        for r in o.W:
            lastw[r] = o; readers[r] = []
    for o in ops:
        for p in o.preds: p.succs.append(o)
    return mi

def compute_due(ops, nm, ds_lead):
    INF = nm + 1000
    for o in reversed(ops):
        if o.kind == 'mfma':
            o.due = o.midx; continue
        d = INF
        for s in o.succs:
            sd = s.due
            if s.kind == 'wlg' and o.kind == 'ds': sd -= ds_lead
            elif s.kind != 'mfma': sd -= 0.25
            d = min(d, sd)
        if o.due is not None: d = min(d, o.due)
        o.due = d

def schedule(ops, ds_lead=10, ds_lat=160, vm_space=3, pace_end=None):
    nm = build_deps(ops)
    compute_due(ops, nm, ds_lead)
    mf = [o for o in ops if o.kind == 'mfma']
    pend = [o for o in ops if o.kind != 'mfma']
    out = []
    st = dict(cyc=0, lastvm=-100, k=-1, lds_out=[])
    def emit(o):
        o.pos = len(out); o.cyc = st['cyc']; out.append(o)
        if o.kind in ('dma', 'vld', 'vst'): st['lastvm'] = st['k']
    def ready(o):
        n = len(out)
        for p, d in o.preds.items():
            if p.pos is None or n - p.pos - 1 < d: return False
        return True
    def allowed(o):
        if o.earliest is not None and st['k'] < o.earliest: return False
        if o.kind in ('dma', 'vld', 'vst') and st['k'] - st['lastvm'] < vm_space and o.due > st['k'] + 1: return False
        return True
    def cands(kinds, force=False):
        c = [o for o in pend if o.kind in kinds and ready(o) and (force or allowed(o))]
        c.sort(key=lambda o: (o.due, o.idx))
        return c
    def take(o):
        pend.remove(o); emit(o)
        if o.kind not in SALU_KINDS: st['fill'] += o.cost()
    def nop():
        o = Op('salu', 's_nop 0'); emit(o); st['cyc'] += 4
    def wait_ok(o):
        if o.kind == 'wlg':
            if o.due <= st['k'] + 1.01: return True
            return st['cyc'] - max([t.cyc for t in o.targets] or [-1000]) >= ds_lat and o.due <= st['k'] + 6
        if o.kind in ('wvm', 'bar'):
            return o.earliest is None or st['k'] >= o.earliest
        return True
    def needed_closure(m):
        seen = set(); stack = [m]
        while stack:
            x = stack.pop()
            for p in x.preds:
                if p.pos is None and p not in seen and p.kind != 'mfma':
                    seen.add(p); stack.append(p)
        return seen
    stats = dict(under=0, over=0, pen=0, nops=0)
    total_fill = sum(o.cost() for o in pend if o.kind not in SALU_KINDS)
    st['fill'] = 0
    pe = pace_end or nm
    def chained(k):
        return k + 1 < nm and mf[k+1].C and set(mf[k+1].C) == set(mf[k].W)
    def fill_gap():
        used = 0; valu_seen = False
        ch = chained(st['k'])
        c = [o for o in cands(SALU_KINDS) if wait_ok(o)]
        if c: take(c[0])
        while used < 8:
            c = cands(NORM_KINDS + (MEM_KINDS if not valu_seen else ()))
            if ch: c = [o for o in c if o.cost() <= 8 or o.due <= st['k'] - 4]
            if used > 0:
                c = [o for o in c if o.cost() + used <= 8]
                nv = [o for o in c if o.kind in VALU_KINDS or o.due <= st['k'] - 3]
                if nv: c = nv
            if not c: break
            o = c[0]
            if used == 0:
                if not ch:
                    big = [x for x in c if x.cost() > 8]
                    if big: o = big[0]
                small = [x for x in c if x.cost() == 4]
                if o.cost() == 4:
                    if len(small) < 2:
                        ex = [x for x in c if x.cost() == 8]
                        if ex and o.due > st['k'] + 2: o = ex[0]
                    else:
                        a, b = small[0], small[1]
                        if a.kind in VALU_KINDS and b.kind in MEM_KINDS: o = b
            take(o); used += o.cost(); st['cyc'] += o.cost()
            if o.kind in VALU_KINDS: valu_seen = True
        if not ch:
            j = st['k'] + 1
            while chained(j): j += 1
            tgt = total_fill * min(1.0, j / pe) - 8 * (j - st['k'] - 1)
            while True:
                pk = cands(('pk',))
                behind = st['fill'] + 2 < tgt
                if used >= PK_LEAD and pk: o = pk[0]
                else:
                    c = cands(NORM_KINDS)
                    want = len(pk) >= PK_MIN and used < PK_LEAD and sum(x.cost() for x in c) >= PK_LEAD - used + 8 * (j - st['k'] - 1)
                    if not c or not (behind or want): break
                    o = c[0]
                take(o); used += o.cost(); st['cyc'] += o.cost(); valu_seen = True
        return used, valu_seen
    used, valu_seen = 0, True
    gapstart = 0
    for k, m in enumerate(mf + [None]):
        while True:
            if m is None:
                if not pend: break
                need = set(pend)
            else:
                if ready(m): break
                need = needed_closure(m)
            c = [o for o in cands(VALU_KINDS + MEM_KINDS + SALU_KINDS, force=True) if o in need]
            if c:
                o = c[0]
                if o.kind == 'wlg' and st['cyc'] - max([t.cyc for t in o.targets] or [-1000]) < ds_lat:
                    alt = [x for x in c if x.kind != 'wlg'] or cands(VALU_KINDS)
                    if alt: o = alt[0]
            else:
                c2 = cands(VALU_KINDS) or [x for x in cands(SALU_KINDS) if wait_ok(x) and x.kind == 'salu']
                if c2: o = c2[0]
                else:
                    nop(); used += 4; stats['nops'] += 1; continue
            if o.kind == 'pk' and used < PK_LEAD and k > 0:
                alt = cands(NORM_KINDS)
                if alt: o = alt[0]
                else:
                    st['cyc'] += PK_LEAD - used; stats['under'] += PK_LEAD - used; used = PK_LEAD
            if o.kind in MEM_KINDS and valu_seen:
                st['cyc'] += 8; used += 8; stats['pen'] += 1
            take(o); used += o.cost(); st['cyc'] += o.cost()
            valu_seen = o.kind in VALU_KINDS or (valu_seen and o.kind not in MEM_KINDS)
        if k > 0:
            if used < 8:
                stats['under'] += 8 - used; st['cyc'] += 8 - used
            else: stats['over'] += used - 8
        if m is None: break
        st['k'] = k
        emit(m); st['cyc'] += 8
        used, valu_seen = fill_gap()
    stats['cycles'] = st['cyc']; stats['ninst'] = len(out)
    return out, stats

def check_hazards(seq):
    lastw = {}; readers = {}
    bad = 0
    for n, o in enumerate(seq):
        def chk(pn, p, d, what, r):
            nonlocal bad
            if n - pn - 1 < d:
                print(f'HAZARD {what} {r}: [{pn}] {p.text} -> [{n}] {o.text} need {d}', file=sys.stderr); bad += 1
        for r in o.R:
            if r in lastw: chk(*lastw[r], hz_raw(lastw[r][1], o, r), 'RAW', r)
        for r in o.W:
            if r in lastw: chk(*lastw[r], hz_waw(lastw[r][1], o, r), 'WAW', r)
            for pn, p in readers.get(r, []):
                if p is not o: chk(pn, p, hz_war(p, o, r), 'WAR', r)
        for r in o.R: readers.setdefault(r, []).append((n, o))
        for r in o.W:
            lastw[r] = (n, o); readers[r] = []
    return bad
```

```python
import sys, struct, math
import sched
from sched import *

OPT = dict(store_flags='nt', ds_lead=8, ds_lat=120, vm_space=3, debug=0, force_slow=0, q_flags='nt', kv_flags='',
           ds_sp=3, vshift=0, st_lo=10, st_hi=900, last_flags='nt', epi_len=20, warm=1, abl='', bou=1, pk=0, vmc=4, stc=4, vm_due=4, pkf=1, pkd=4, vm_sp=0, updin=1)
for a in sys.argv[2:]:
    k, v = a.split('=')
    OPT[k] = int(v) if v.lstrip('-').isdigit() else v.replace('+', ' ')

sched.VM_COST = OPT['vmc']; sched.ST_COST = OPT['stc']
NAME = 'standalone__gqa_softmax__near_ridge_kernel'
def f32(x): return struct.unpack('<I', struct.pack('<f', x))[0]
CSCALE = math.log2(math.e) / math.sqrt(128.0)
QBYTES = 16*32*496*128*2
KBYTES = 16*16*512*128*2
PAIRQ = 992*256
PAIRK = 512*256

vKa, vVa, vOlo, vOhi = 1, 2, 3, 4
vKd = [5, 6, 7, 8]
vQa = 9
vNM = [10, 11, 12, 13]
vRL = [14, 15, 16, 17]
vBias = 18
vRd = 19
vT = [20, 21, 22, 23]
vWr = [24, 25]
def S(buf, qt): return 32 + 16*buf + 4*qt
def P(par, h, qt): return 64 + 32*par + 16*h + 4*qt
def O(T, qt): return 128 + 16*T + 4*qt
def Q(qt, ks): return 16*qt + 4*ks
def QN(qt, ks): return 64 + 16*qt + 4*ks
def KF(buf, ks): return 128 + 16*buf + 4*ks
def VF(buf, Tb, h): return 160 + 16*buf + 8*Tb + 4*h
def RS(qt): return 192 + 4*qt
ONES = 208
def OST(R, n): return (96 if R == 0 else 212) + 4*n
sQ, sK, sV, sO, sKn, sVn, sQB = 4, 8, 12, 16, 20, 24, 68
sKV, sKVn = 28, 29
sQn = [30, 31, 64, 65]
sOo = [32, 33]
sC, sNC, sThr, sB, sFlag, sW4k = 34, 35, 36, 37, 38, 39
sTK, sTV = 40, 41
sCmp = [48, 50, 52, 54]
sOP = 72
sOp = [76, 77]
sPA = 66
VBASE = 65536

def vr(a, n): return f'v[{a}:{a+n-1}]'
def ar(a, n): return f'a[{a}:{a+n-1}]'
def srd(a): return f's[{a}:{a+3}]'

def mfma(dp, d, ap, a, bp, b, zero):
    c = '0' if zero else f'{dp}[{d}:{d+3}]'
    D = rng(dp, d, 4)
    return Op('mfma', f'v_mfma_f32_16x16x32_bf16 {dp}[{d}:{d+3}], {ap}[{a}:{a+3}], {bp}[{b}:{b+3}], {c}',
              R=rng(ap, a, 4) + rng(bp, b, 4) + ([] if zero else D), W=D, C=([] if zero else D))
def valu(text, R, W, kind='valu', **kw): return Op(kind, text, R=R, W=W, **kw)

def op_RK(a):
    tile, kt = divmod(a, 4)
    slot = tile % 4
    l = []
    for ks in range(4):
        d = KF(a % 2, ks)
        l.append(Op('ds', f'ds_read_b128 {ar(d,4)}, v{vKa} offset:{slot*16384 + kt*4096 + ks*256}',
                    R=[f'v{vKa}', f'Krdy{tile}'], W=rng('a', d, 4), name=('RK', a % 32, ks)))
    return l
def op_RV(b):
    tile, u = divmod(b, 4)
    slot = tile % 4
    l = []
    for Tb in range(2):
        for h in range(2):
            for jh in range(2):
                d = VF(b % 2, Tb, h) + 2*jh
                off = slot*16384 + h*8192 + jh*4096 + u*256 + Tb*8
                l.append(Op('ds', f'ds_read_b64_tr_b16 {ar(d,2)}, v{vVa} offset:{off}',
                            R=[f'v{vVa}', f'Vrdy{tile}'], W=rng('a', d, 2), name=('RV', b % 32, Tb, h, jh)))
    return l
def op_QK(a):
    l = []
    for qt in range(4):
        for i in range(4):
            ks = 3 - i if (OPT['bou'] and qt % 2) else i
            l.append(mfma('v', S(a % 2, qt), 'a', KF(a % 2, ks), 'a', Q(qt, ks), i == 0))
    return l
def op_PV(b):
    t, u = divmod(b, 4)
    l = []
    for Tb in range(2):
        for qt in range(4):
            for i in range(2):
                h = 1 - i if (OPT['bou'] and qt % 2) else i
                l.append(mfma('v', O(2*u+Tb, qt), 'a', VF(b % 2, Tb, h), 'v', P(t % 2, h, qt), t == 0 and i == 0))
    return l
def op_RS(t, qt):
    return [mfma('a', RS(qt), 'a', ONES, 'v', P(t % 2, h, qt), t == 0 and h == 0) for h in range(2)]
def pksel(r):
    return (r & ~1, r & 1)
def op_SM(a, pk=False):
    t, kt = divmod(a, 4)
    l = []
    for qt in range(4):
        s = S(a % 2, qt)
        for r in range(4):
            if 'fma' in OPT['abl']: continue
            if pk:
                if r % 2 == 0:
                    b, e = pksel(vNM[qt])
                    l.append(valu(f'v_pk_fma_f32 {vr(s+r,2)}, {vr(s+r,2)}, s[{sC}:{sC+1}], {vr(b,2)} op_sel:[0,0,{e}] op_sel_hi:[1,0,{e}]',
                                  rng('v', s+r, 2) + [f'v{vNM[qt]}'], rng('v', s+r, 2), kind='pk'))
                continue
            l.append(valu(f'v_fma_f32 v{s+r}, v{s+r}, s{sC}, v{vNM[qt]}', [f'v{s+r}', f'v{vNM[qt]}'], [f'v{s+r}']))
        for r in range(4):
            if 'exp' in OPT['abl']: continue
            l.append(valu(f'v_exp_f32 v{s+r}, v{s+r}', [f'v{s+r}'], [f'v{s+r}'], kind='trans'))
        p = P(t % 2, kt // 2, qt) + 2*(kt % 2)
        for i in range(2):
            l.append(valu(f'v_cvt_pk_bf16_f32 v{p+i}, v{s+2*i}, v{s+2*i+1}', [f'v{s+2*i}', f'v{s+2*i+1}'], [f'v{p+i}']))
    return l
def perm(n, a, b): return valu(f'v_permlane{n}_swap_b32 v{a}, v{b}', [f'v{a}', f'v{b}'], [f'v{a}', f'v{b}'], kind='perm')
def op_reduce():
    t = vT; n = vNM
    mx = lambda d, a, b: valu(f'v_max_f32 v{d}, v{a}, v{b}', [f'v{a}', f'v{b}'], [f'v{d}'])
    mv = lambda d, a: valu(f'v_mov_b32 v{d}, v{a}', [f'v{a}'], [f'v{d}'])
    return [perm(16, t[0], t[1]), perm(16, t[2], t[3]), mx(t[0], t[0], t[1]), mx(t[2], t[2], t[3]),
            perm(32, t[0], t[2]), mx(t[0], t[0], t[2]),
            valu(f'v_fma_f32 v{n[0]}, v{t[0]}, s{sNC}, v{vBias}', [f'v{t[0]}', f'v{vBias}'], [f'v{n[0]}']),
            mv(n[2], n[0]), perm(32, n[0], n[2]), mv(n[1], n[0]), mv(n[3], n[2]),
            perm(16, n[0], n[1]), perm(16, n[2], n[3])]
def op_MAX():
    l = []
    for qt in range(4):
        s = S(0, qt)
        l.append(valu(f'v_max3_f32 v{vT[qt]}, v{s}, v{s+1}, v{s+2}', rng('v', s, 3), [f'v{vT[qt]}']))
        l.append(valu(f'v_max_f32 v{vT[qt]}, v{vT[qt]}, v{s+3}', [f'v{vT[qt]}', f'v{s+3}'], [f'v{vT[qt]}']))
    return l + op_reduce()
def op_DMA(which, tile, bar):
    slot = tile % 4
    nxt = tile >= 8
    base = sKVn if nxt else sKV
    st = sTK if which == 'K' else sTV
    d = (sKn if nxt else sK) if which == 'K' else (sVn if nxt else sV)
    l = [Op('salu', f's_add_u32 s{st}, s{base}, {(tile % 8)*16384}', R=[f's{base}'], W=[f's{st}', 'scc']),
         Op('salu', f's_add_u32 m0, s{sW4k}, {slot*16384 + (VBASE if which == "V" else 0)}', R=[], W=['m0', 'scc'])]
    for n in range(4):
        va = vKd[n] if which == 'K' else vKd[0]
        l.append(Op('dma', f'buffer_load_dwordx4 v{va}, {srd(d)}, s{st} offen offset:{n*1024} {OPT["kv_flags"]} lds',
                    R=[f'v{va}', f's{st}', 'm0', 'srdn'] + ([bar] if bar else []), W=[], name=(which, tile % 8, n)))
    return l
def op_QD(qt, m0txt, dep=None):
    l = [Op('salu', m0txt, R=[], W=['m0', 'scc'])]
    for n in range(4):
        l.append(Op('dma', f'buffer_load_dwordx4 v{vKd[n]}, {srd(sQ if qt < 2 else sQB)}, s{sQn[qt]} offen offset:{n*1024} {OPT["q_flags"]} lds',
                    R=[f'v{vKd[n]}', f's{sQn[qt]}', 'm0'] + ([dep] if dep else []), W=[], name=('Q', qt, n)))
    return l
def op_QR(qt, dst, va, off, dep):
    return [Op('ds', f'ds_read_b128 {ar(dst(qt,ks),4)}, v{va} offset:{off + ks*256}',
               R=[f'v{va}', dep, 'PA'], W=rng('a', dst(qt, ks), 4), name=('QR', qt, ks)) for ks in range(4)]
def op_L():
    l = []
    for qt in range(4):
        r = vRL[qt]
        l.append(valu(f'v_accvgpr_read_b32 v{r}, a{RS(qt)}', [f'a{RS(qt)}'], [f'v{r}']))
        l.append(valu(f'v_cmp_nge_f32 s[{sCmp[qt]}:{sCmp[qt]+1}], s{sThr}, v{r}', [f'v{r}'], [f's{sCmp[qt]}']))
        l.append(valu(f'v_rcp_f32 v{r}, v{r}', [f'v{r}'], [f'v{r}'], kind='trans'))
    return l
def op_EPI(u, pk=False):
    l = []
    for qt in range(4):
        a, b = O(2*u, qt), O(2*u+1, qt)
        for x in list(range(a, a+4)) + list(range(b, b+4)):
            if pk:
                if x % 2 == 0:
                    rb, e = pksel(vRL[qt])
                    l.append(valu(f'v_pk_mul_f32 {vr(x,2)}, {vr(x,2)}, {vr(rb,2)} op_sel:[0,{e}] op_sel_hi:[1,{e}]',
                                  rng('v', x, 2) + [f'v{vRL[qt]}'], rng('v', x, 2), kind='pk'))
                continue
            l.append(valu(f'v_mul_f32 v{x}, v{x}, v{vRL[qt]}', [f'v{x}', f'v{vRL[qt]}'], [f'v{x}']))
        for i, x in enumerate([a, a+2, b, b+2]):
            l.append(valu(f'v_cvt_pk_bf16_f32 v{a+i}, v{x}, v{x+1}', [f'v{x}', f'v{x+1}'], [f'v{a+i}']))
        l.append(Op('ds', f'ds_write_b128 v{vWr[u%2]}, {vr(a,4)} offset:{qt*2048}',
                    R=rng('v', a, 4) + [f'v{vWr[u%2]}', 'PAw'], W=[f'PA{qt}_{u%2}'], name=('OW', u, qt)))
    return l
def op_OR(R, half):
    return [Op('ds', f'ds_read_b128 {ar(OST(R,n),4)}, v{vRd} offset:{n*1024}',
               R=[f'v{vRd}', f'PA{n//2}_0', f'PA{n//2}_1'], W=rng('a', OST(R, n), 4), name=('OR', R, n)) for n in range(4*half, 4*half+4)]
def op_ST(R, half, dep, prev):
    l = []
    for n in range(4*half, 4*half+4):
        va = vOlo if n < 4 else vOhi
        so = (sOp if prev else sOo)[(n//2) % 2]
        l.append(Op('vst', f'buffer_store_dwordx4 {ar(OST(R,n),4)}, v{va}, {srd(sOP if prev else sO)}, s{so} offen offset:{(n%2)*2048 + R*128} {OPT["store_flags" if prev else "last_flags"]}'.rstrip(),
                    R=rng('a', OST(R, n), 4) + [f'v{va}', f's{so}', dep], W=[], name=('O', R, n)))
    return l
def op_OUT(R):
    l = []
    for half in range(2):
        rd = op_OR(R, half)
        l += rd + [wlg(rd, f'wO{R}_{half}')] + op_ST(R, half, f'wO{R}_{half}', False)
    return l
def wlg(targets, tag, prev=None):
    o = Op('wlg', None, W=[tag], targets=targets)
    o.prev_targets = [t.name for t in targets] if prev is None else prev
    return o
def wvm(names, tag, byname):
    o = Op('wvm', None, W=[tag], targets=[byname[x] for x in names if x in byname])
    o.prev_targets = names
    return o

def op_UPD():
    sa = lambda t, R, W: Op('salu', t, R=R, W=W)
    c = [f's{x}' for x in sCmp]
    p = lambda x: f's[{x}:{x+1}]'
    l = [sa(f's_or_b64 {p(sCmp[0])}, {p(sCmp[0])}, {p(sCmp[1])}', [c[0], c[1]], [c[0], 'scc']),
         sa(f's_or_b64 {p(sCmp[2])}, {p(sCmp[2])}, {p(sCmp[3])}', [c[2], c[3]], [c[2], 'scc']),
         sa(f's_or_b64 {p(sCmp[0])}, {p(sCmp[0])}, {p(sCmp[2])}', [c[0], c[2]], [c[0], 'scc']),
         sa('s_cselect_b32 s42, 1, 0', ['scc'], ['s42']),
         sa(f's_lshl_b32 s42, s42, s{sB}', ['s42', f's{sB}'], ['s42', 'scc']),
         sa(f's_or_b32 s{sFlag}, s{sFlag}, s42', ['s42'], [f's{sFlag}', 'scc']),
         sa(f's_mov_b64 {p(sOp[0])}, {p(sOo[0])}', [f's{sOo[0]}'], [f's{sOp[0]}']),
         sa(f's_mov_b64 {p(sOo[0])}, {p(sQn[0])}', [f's{sQn[0]}', f's{sQn[1]}'], [f's{sOo[0]}']),
         sa(f's_mov_b32 s{sKV}, s{sKVn}', [f's{sKVn}'], [f's{sKV}']),
         sa(f's_add_u32 s{sB}, s{sB}, 1', [f's{sB}'], [f's{sB}', 'scc']),
         sa(f's_cselect_b32 s{sOP+2}, 0, {QBYTES}', ['scc'], [f's{sOP+2}']),
         sa(f's_cmp_lt_u32 s{sB}, 3', [f's{sB}'], ['scc']),
         sa(f's_cselect_b32 s42, {8*PAIRQ}, 0', ['scc'], ['s42']),
         sa(f's_cselect_b32 s45, {8*PAIRK}, 0', ['scc'], ['s45']),
         sa(f's_cselect_b32 s{sQ+2}, s{sQ+2}, 0', ['scc'], [f's{sQ+2}']),
         sa(f's_cselect_b32 s{sQB+2}, s{sQB+2}, 0', ['scc'], [f's{sQB+2}']),
         sa(f's_cselect_b32 s{sKn+2}, s{sKn+2}, 0', ['scc'], ['srdn']),
         sa(f's_cselect_b32 s{sVn+2}, s{sVn+2}, 0', ['scc'], ['srdn'])]
    l += [sa(f's_add_u32 s{x}, s{x}, s42', ['s42', f's{x}'], [f's{x}', 'scc']) for x in sQn]
    l += [sa(f's_add_u32 s{sKVn}, s{sKVn}, s45', ['s45', f's{sKVn}'], [f's{sKVn}', 'scc'])]
    return l

class Seg:
    def __init__(self):
        self.ops = []; self.nm = 0; self.byname = {}
    def add(self, l, need=None):
        for i, o in enumerate(l):
            if need and i == 0: o.R += need if isinstance(need, list) else [need]
            if o.kind == 'mfma': self.nm += 1
            if o.kind in ('dma', 'vld', 'vst'): self.byname[o.name] = o
            self.ops.append(o)
        return l
    def reads(self, l, tag, at):
        n = len(l)
        for i, o in enumerate(l):
            o.due = at - OPT['ds_lead'] - (n - 1 - i) * OPT['ds_sp']
            o.earliest = o.due - 2
        self.add(l)
        if tag: self.add([wlg(l, tag)])
    def spread(self, l, lo, hi, sp=None):
        mem = [o for o in l if o.kind in MEM_KINDS]
        for i, o in enumerate(mem):
            pos = lo + min(sp or OPT['vm_sp'] or 1000, (hi - lo) / len(mem)) * (i + 0.5)
            o.earliest = int(pos) - 2; o.due = pos + OPT['vm_due']
        for i, o in enumerate(l):
            if o.kind == 'salu':
                nx = next(x for x in l[i:] if x.kind in MEM_KINDS)
                o.earliest = nx.earliest - 6
        self.add(l)
    def barrier(self, nn, pos, waits):
        names = [('K', (nn+1) % 8, i) for i in range(4)] + [('V', nn % 8, i) for i in range(4)]
        wv = wvm(names, f'wvm{nn}', self.byname); wv.earliest = pos - 3
        bo = Op('bar', 's_barrier', R=[f'wvm{nn}'] + waits, W=[f'bar{nn}', f'Krdy{nn+1}', f'Vrdy{nn}'])
        bo.earliest = pos - 1; bo.due = pos + 1
        self.add([wv, bo])

def seg_A():
    g = Seg()
    start = {s: (s - 4) * 34 for s in range(4, 33)}
    barpos = {nn: start[4*nn+3] + 16 for nn in range(1, 8)}
    barpos[0] = -2
    def interval(nn, extra):
        bar = f'bar{nn}' if nn >= 1 else None
        l = op_DMA('K', nn + 4, bar) + op_DMA('V', nn + 3, bar) + extra
        g.spread(l, barpos[nn] + 2, barpos[nn+1] - 6)
    qm0 = lambda j: f's_add_u32 m0, s{sPA}, {4096*j}'
    extras = {0: op_QD(0, qm0(0), 'wK4'), 1: op_QD(1, qm0(1), 'wK4'), 4: op_QD(2, qm0(0), 'wQA'), 5: op_QD(3, qm0(1), 'wQA')}
    w = wlg([], 'wK4', prev=[('RK', 4, ks) for ks in range(4)] + [('OR', R, n) for R in range(2) for n in range(8)]); w.due = -1
    g.add([w])
    sts = sum([op_ST(R, hf, 'wK4', True) for hf in range(2) for R in range(2)], [])
    sts.sort(key=lambda o: (o.name[2], o.name[1]))
    g.spread(sts, OPT['st_lo'], OPT['st_hi'], 1000)
    interval(0, extras[0])
    for s in range(4, 32):
        if s > 4: g.reads(op_RK(s), f'wK{s}', start[s])
        g.add(op_QK(s), f'wK{s}')
        g.add(op_SM(s - 1))
        b = s - 4
        g.reads(op_RV(b), f'wV{b}', start[s] + 16)
        if s % 4 == 3: g.barrier(s // 4, barpos[s // 4], [f'wK{s}', f'wV{b}'])
        g.add(op_PV(b), f'wV{b}')
        g.add(op_RS(b // 4, b % 4))
        if s == 17:
            wq = wvm([('Q', qt, n) for qt in range(2) for n in range(4)], 'vQA', g.byname); wq.earliest = start[17]
            g.add([wq])
            g.reads(op_QR(0, QN, vQa, 0, 'vQA') + op_QR(1, QN, vQa, 4096, 'vQA'), 'wQA', barpos[4] + 8)
        if s % 4 == 3 and s // 4 <= 6: interval(s // 4, extras.get(s // 4, []))
    g.reads(op_RV(28), None, start[32] + 12)
    return g.ops

def seg_tail(drain, fill):
    g = Seg()
    pos = {}; n = 0
    order = []
    if drain: order += [('RS', 0), ('PV', 28), ('PV', 29)]
    for i in range(4):
        if fill: order.append(('QK', 32 + i))
        if drain and i < 2: order.append(('PV', 30 + i))
    for k in order:
        pos[k] = n; n += 8 if k[0] == 'RS' else 16
    total = n
    if drain:
        g.add(op_SM(31, OPT['pk'] & 2 and fill))
        w = wlg([], 'wV28', prev=[o.name for o in op_RV(28)]); g.add([w])
    if drain and fill:
        wq = wvm([('Q', qt, n) for qt in range(2, 4) for n in range(4)], 'vQB', g.byname); wq.due = -5
        g.add([wq])
        g.reads(op_QR(2, Q, vQa, 0, 'vQB') + op_QR(3, Q, vQa, 4096, 'vQB'), 'wQB', pos[('QK', 32)] + 8)
        for o in g.ops:
            if o.kind == 'ds': o.earliest = None; o.R.remove('PA'); o.R += [f'PA{q}_{p}' for q in range(4) for p in range(2)]
        for i in range(32):
            g.add([valu(f'v_accvgpr_mov_b32 a{i}, a{64+i}', [f'a{64+i}'], [f'a{i}'])])
    if drain and not fill:
        wq = wvm([('Q', qt, n) for qt in range(2, 4) for n in range(4)], 'PAw', g.byname); wq.earliest = 8
        g.add([wq])
    if fill:
        barp = pos[('QK', 35)] + 1
        g.spread(op_DMA('K', 11, None) + op_DMA('V', 10, None), 2, barp - 6)
    for k in order:
        if k[0] == 'RS':
            for qt in range(4): g.add(op_RS(7, qt))
            g.add(op_L())
        elif k[0] == 'PV':
            b = k[1]
            if b > 28: g.reads(op_RV(b), f'wV{b}', pos[k])
            g.add(op_PV(b), f'wV{b}')
            ep = op_EPI(b - 28, OPT['pk'] & 1 and (fill or b - 28 >= OPT['pkd']))
            for i, o in enumerate(ep): o.due = pos[k] + 16 + 4 + OPT['epi_len'] * i / len(ep)
            g.add(ep)
            if b % 2 == 1:
                R = (b - 28) // 2
                out = op_OUT(R) if not fill else op_OR(R, 0) + op_OR(R, 1)
                for i, o in enumerate(out): o.due = pos[k] + 16 + 4 + OPT['epi_len'] * (0.5 + 0.5 * i / len(out)) + (6 if o.kind != 'ds' else 0)
                g.add(out)
        else:
            a = k[1]
            if a == 32 and not drain:
                pass
            else: g.reads(op_RK(a), f'wK{a}', pos[k])
            qk = op_QK(a)
            if a == 32 and drain: qk[8].R.append('wQB')
            if a == 35: g.barrier(8, barp, [f'wK{a}'] + (['wV31'] if drain else []))
            g.add(qk, f'wK{a}' if (a > 32 or drain) else None)
            if a == 32: g.add(op_MAX())
            if a > 32: g.add(op_SM(a - 33, OPT['pk'] & 2 and (drain or a - 33 >= OPT['pkf'])))
    if fill:
        g.reads(op_RK(36), None, total + 4)
        if OPT['updin']: g.add(op_UPD())
    return g.ops

def resolve_waits(seqs):
    res = {}
    for kind, kinds, fmt, mx in (('wvm', ('dma', 'vld', 'vst'), 'vmcnt', 63), ('wlg', ('ds',), 'lgkmcnt', 15)):
        hist = []
        for si, sq in enumerate(seqs):
            for o in sq:
                if o.kind in kinds: hist.append(o.name)
                elif o.kind == kind:
                    last = max(len(hist) - 1 - hist[::-1].index(x) for x in o.prev_targets if x in hist)
                    res.setdefault(o, []).append(len(hist) - 1 - last)
        for o, l in res.items():
            if o.kind == kind: o.text = f's_waitcnt {fmt}({min(min(l), mx)})'
    return res

def lines(ops): return ''.join('    ' + o.text + '\n' for o in ops)
def padded(ops):
    build_deps(ops)
    out = []
    for o in ops:
        need = 0
        for p, d in o.preds.items():
            need = max(need, d - (len(out) - p.pos - 1))
        for _ in range(need): out.append(Op('salu', 's_nop 0'))
        o.pos = len(out); out.append(o)
    return out

def dbg_lines(ops, first):
    txt = ''; n = first
    for o in ops:
        txt += '    ' + o.text + '\n'
        if o.kind == 'bar':
            txt += f'    s_memtime s[{78+2*n}:{79+2*n}]\n'; n += 1
    return txt, n
DUMP = '    s_memtime s[96:97]\n    s_waitcnt lgkmcnt(0)\n' + ''.join(
    f'    v_writelane_b32 v28, s{78+2*i}, {i}\n' for i in range(11)) + \
    '    s_mov_b64 exec, 0xffff\n    buffer_store_dword v28, v29, s[60:63], s59 offen\n    s_mov_b64 exec, -1\n    s_add_u32 s59, s59, 64\n'

def main():
    segs = {}
    for nme, ops in (('A', seg_A()), ('B', seg_tail(True, True)), ('F', seg_tail(False, True)), ('D', seg_tail(True, False))):
        segs[nme], stats = schedule(ops, OPT['ds_lead'], OPT['ds_lat'], OPT['vm_space'])
        print(nme, stats, file=sys.stderr)
    A = []
    w = A.append
    w(f'''; GQA attention forward, B=16 Hq=32 Hkv=16 Sq=496 Sk=512 D=128, bf16.  Generated by gen/gen.py (own generator).
; 256 persistent workgroups x 4 waves; each wave 64 q rows; K/V tiles streamed through an LDS ring by LDS-DMA.
; Softmax reference point: max over the row's first 16 keys; a run-time check on the row sum redoes the rows
; @launch grid=(256,1,1) block=(256,1,1) lds=163840
.amdgcn_target "amdgcn-amd-amdhsa--gfx950"
.text
.globl {NAME}
.p2align 8
.type {NAME},@function
{NAME}:
    s_cmp_ge_u32 s2, 256
    s_cbranch_scc1 L_end
    s_load_dwordx4 s[56:59], s[0:1], 0
    s_load_dwordx4 s[60:63], s[0:1], 16
    v_lshrrev_b32 v20, 6, v0
    v_and_b32 v21, 63, v0                 ; lane
    v_readfirstlane_b32 s42, v20          ; wave
    v_and_b32 v22, 15, v21                ; i
    v_lshrrev_b32 v23, 4, v21             ; g
    v_lshrrev_b32 v26, 2, v22             ; i/4
    v_and_b32 v27, 3, v21                 ; i%4
    ; DMA lane part: (i/4)*256 + g*64 + ((i%4)^f(n))*16
    v_lshlrev_b32 v30, 8, v26
    v_lshl_add_u32 v30, v23, 6, v30
    v_lshl_add_u32 v{vKd[0]}, v27, 4, v30
    v_xor_b32 v{vKd[1]}, 48, v{vKd[0]}
    v_xor_b32 v{vKd[2]}, 32, v{vKd[0]}
    v_xor_b32 v{vKd[3]}, 16, v{vKd[0]}
    s_and_b32 s43, s2, 7                  ; xcd
    s_lshr_b32 s44, s2, 3
    s_lshr_b32 s45, s44, 2                ; group
    s_and_b32 s44, s44, 3                 ; qb
    s_lshl_b32 s43, s43, 5
    s_add_u32 s43, s43, s45               ; pair0
    s_lshl_b32 s{sW4k}, s42, 12
    s_lshl_b32 s{sKVn}, s43, 17
    s_add_u32 s{sKVn}, s{sKVn}, s{sW4k}
    s_mul_i32 s45, s43, {PAIRQ}
    s_lshl_b32 s46, s44, 16
    s_add_u32 s45, s45, s46
    s_lshl_b32 s46, s42, 14
    s_add_u32 s{sQn[0]}, s45, s46
    s_add_u32 s{sQn[1]}, s{sQn[0]}, 4096
    s_lshl_b32 s{sPA}, s42, 13
    s_add_u32 s{sPA}, s{sPA}, 131072
    s_lshl_b32 s46, s44, 2
    s_add_u32 s46, s46, s42
    s_cmp_eq_u32 s46, 15
    s_cselect_b32 s46, 0x40000000, 8192
    s_cselect_b32 s47, 0xff800000, 0
    s_cselect_b32 s45, 0, 8192
    s_cselect_b32 s{sQB+2}, 0, {QBYTES}
    s_add_u32 s{sQn[2]}, s{sQn[0]}, s45
    s_add_u32 s{sQn[3]}, s{sQn[1]}, s45
    s_mov_b32 s{sQ+2}, {QBYTES}
    s_mov_b32 s{sQ+3}, 0x20000
    s_mov_b32 s{sQB+3}, 0x20000
    s_mov_b32 s{sKn+2}, {KBYTES}
    s_mov_b32 s{sKn+3}, 0x20000
    s_mov_b32 s{sVn+2}, {KBYTES}
    s_mov_b32 s{sVn+3}, 0x20000
    s_waitcnt lgkmcnt(0)
    s_mov_b32 s{sKn}, s58
    s_mov_b32 s{sKn+1}, s59
    s_mov_b32 s{sQ}, s56
    s_mov_b32 s{sQ+1}, s57
    s_mov_b32 s{sQB}, s56
    s_mov_b32 s{sQB+1}, s57
    s_mov_b32 s{sVn}, s60
    s_mov_b32 s{sVn+1}, s61
''')
    if OPT['debug']:
        w('''    s_memtime s[100:101]
    s_memrealtime s[98:99]
    s_waitcnt lgkmcnt(0)
    s_mov_b32 s67, s98
''')
    QTMP = [None, None, VBASE + 3*16384, 3*16384]
    pro = op_DMA('K', 8, None)
    pro += op_QD(0, f's_add_u32 m0, s{sPA}, 0') + op_QD(1, f's_add_u32 m0, s{sPA}, 4096')
    pro += op_QD(2, f's_add_u32 m0, s{sW4k}, {QTMP[2]}') + op_QD(3, f's_add_u32 m0, s{sW4k}, {QTMP[3]}')
    pro += op_DMA('K', 9, None) + op_DMA('V', 8, None) + op_DMA('K', 10, None) + op_DMA('V', 9, None)
    pro = padded(pro)
    w(lines(pro))
    nwarm = 0
    if OPT['warm']:
        nwarm = 1
        w(f'''    s_getpc_b64 s[78:79]
L_pc:
    v_lshlrev_b32 v30, 7, v0
    v_min_u32 v30, L_end-L_pc, v30
    global_load_dword a255, v30, s[78:79]
''')
        pro.append(Op('vld', 'x', name=('warm', 0)))
    w(f'''    ; remaining setup under the load latency
    s_mov_b32 s{sK}, s58
    s_mov_b32 s{sK+1}, s59
    s_mov_b32 s{sK+2}, {KBYTES}
    s_mov_b32 s{sK+3}, 0x20000
    s_mov_b32 s{sV}, s60
    s_mov_b32 s{sV+1}, s61
    s_mov_b32 s{sV+2}, {KBYTES}
    s_mov_b32 s{sV+3}, 0x20000
    s_mov_b32 s{sO}, s62
    s_mov_b32 s{sO+1}, s63
    s_mov_b32 s{sO+2}, {QBYTES}
    s_mov_b32 s{sO+3}, 0x20000
    s_mov_b32 s{sOP}, s62
    s_mov_b32 s{sOP+1}, s63
    s_mov_b32 s{sOP+3}, 0x20000
    s_mov_b32 s{sOo[0]}, 0
    s_mov_b32 s{sOo[1]}, 0
    v_sub_u32 v30, 0, v26
    v_and_b32 v30, 3, v30                 ; f(i/4)
    v_xor_b32 v30, v30, v23
    v_lshlrev_b32 v30, 4, v30
    v_lshl_add_u32 v30, v27, 6, v30
    v_lshl_add_u32 v{vKa}, v26, 10, v30
    v_add_u32 v{vQa}, s{sPA}, v{vKa}
    v_lshlrev_b32 v30, 10, v23
    v_lshl_add_u32 v30, v26, 6, v30
    v_lshl_add_u32 v30, v27, 4, v30
    v_add_u32 v{vVa}, {VBASE}, v30
{'    v_and_b32 v30, 16, v21' + chr(10) + '    v_lshrrev_b32 v30, 1, v30' + chr(10) + f'    v_add_u32 v{vVa}, v{vVa}, v30' if 'conf' in OPT['abl'] else ''}
    ; O staging: write addr = PA + i*128 + ((g ^ (i&7))*16); read addr = PA + lane*16; store lane part = (l/8)*256 + ((l%8)^(l/8))*16
    v_and_b32 v30, 7, v21
    v_xor_b32 v31, v30, v23
    v_lshlrev_b32 v31, 4, v31
    v_lshl_add_u32 v31, v22, 7, v31
    v_add_u32 v{vWr[0]}, s{sPA}, v31
    v_xor_b32 v{vWr[1]}, 64, v{vWr[0]}
    v_lshlrev_b32 v31, 4, v21
    v_add_u32 v{vRd}, s{sPA}, v31
    v_lshrrev_b32 v31, 3, v21
    v_xor_b32 v30, v30, v31
    v_lshlrev_b32 v30, 4, v30
    v_lshl_add_u32 v{vOlo}, v31, 8, v30
    v_add_u32 v{vOhi}, s46, v{vOlo}
    v_mov_b32 v30, s47
    v_cmp_lt_u32 vcc, 31, v21
    v_mov_b32 v31, 0x3f803f80
    s_mov_b32 s{sC}, {hex(f32(CSCALE))}
    v_cndmask_b32 v{vBias}, 0, v30, vcc
    s_mov_b32 s{sNC}, {hex(f32(-CSCALE))}
    s_mov_b32 s{sThr}, {hex(f32(2.0**64) if not OPT['force_slow'] else f32(-1.0))}
    s_mov_b32 s{sB}, -1
    s_mov_b32 s{sFlag}, 0
    s_mov_b64 s[{sCmp[0]}:{sCmp[0]+1}], 0
    s_mov_b64 s[{sCmp[1]}:{sCmp[1]+1}], 0
    s_mov_b64 s[{sCmp[2]}:{sCmp[2]+1}], 0
    s_mov_b64 s[{sCmp[3]}:{sCmp[3]+1}], 0
    v_accvgpr_write_b32 a{ONES}, v31
    v_accvgpr_write_b32 a{ONES+1}, v31
    v_accvgpr_write_b32 a{ONES+2}, v31
    v_accvgpr_write_b32 a{ONES+3}, v31
    v_add_u32 v30, s{sW4k}, v{vKa}
    v_add_u32 v31, {VBASE}, v30
''')
    rk0 = op_RK(32)
    qr = [op_QR(0, Q, vQa, 0, 'x'), op_QR(1, Q, vQa, 4096, 'x'), op_QR(2, Q, 31, 3*16384, 'x'), op_QR(3, Q, 30, 3*16384, 'x')]
    dummies = lambda nd: [Op('vst', f'buffer_store_dword v31, v31, {srd(sO)}, 0 offen', name=('dummy', i)) for i in range(nd)]
    seqs0 = lambda nd: [pro + rk0, segs['F'], dummies(nd)] + [segs['A'], segs['B']] * 3 + [segs['A'], segs['D']]
    r = resolve_waits(seqs0(0))
    nd = max(min(l[-1], 63) - l[0] for o, l in r.items() if o.kind == 'wvm' and len(l) > 1)
    sq = seqs0(nd)
    r = resolve_waits(sq)
    print('dummies', nd, [(o.text, l) for o, l in r.items() if o.kind == 'wvm'], file=sys.stderr)
    tot = len([o for o in pro if o.kind in ('dma', 'vld')])
    w(f'    s_waitcnt vmcnt({tot - 4})\n    s_barrier\n')
    w(lines(rk0))
    for qt in range(4):
        w(f'    s_waitcnt vmcnt({tot - 4 - 4*(qt+1)})\n')
        w(lines(qr[qt]))
    w('    s_waitcnt lgkmcnt(0)\n    v_mov_b32 v31, 0x40000000\n')
    if OPT['debug']:
        w('''    s_load_dwordx2 s[60:61], s[0:1], 40
    s_mov_b32 s62, 0x1000000
    s_mov_b32 s63, 0x20000
    s_lshl_b32 s59, s2, 2
    s_add_u32 s59, s59, s42
    s_lshl_b32 s59, s59, 9
    v_lshlrev_b32 v29, 2, v21
    s_waitcnt lgkmcnt(0)
''')
    if 'rs' in OPT['abl']:
        segs['A'] = [o if not (o.kind == 'mfma' and o.text.split()[1].startswith('a[')) else Op('salu', 's_nop 0') for o in segs['A']]
    if 'dma' in OPT['abl']:
        for sg in 'AB':
            segs[sg] = [o if not (o.kind == 'dma' and o.name[0] in 'KV') else Op('salu', 's_nop 0') for o in segs[sg]]
    if 'ds' in OPT['abl'].split():
        for sg in 'AB':
            segs[sg] = [o if not (o.kind == 'ds' and o.name[0] in ('RK', 'RV')) else Op('salu', 's_nop 0') for o in segs[sg]]
    upd = 'L_next:\n' + ('' if OPT['updin'] else lines(op_UPD()))
    pad = lambda n: [Op('salu', 'x') for _ in range(n)]
    bad = check_hazards(segs['F'] + segs['A'] + pad(2) + segs['B'] + pad(1) + segs['A'] + pad(2) + segs['D'])
    assert bad == 0, bad
    if not OPT['debug']:
        w(lines(segs['F']))
        w(lines(sq[2]))
        w(upd)
        w(lines(segs['A']))
        w(f'    s_cmp_eq_u32 s{sB}, 3\n    s_cbranch_scc1 L_final\n')
        w(lines(segs['B']))
        w('    s_branch L_next\nL_final:\n')
        w(lines(segs['D']))
    else:
        w('    s_memtime s[92:93]\n')
        w(dbg_lines(segs['F'], 8)[0]); w(DUMP)
        w(lines(sq[2]))
        w(upd)
        w('    s_memtime s[78:79]\n    s_memrealtime s[98:99]\n')
        w(dbg_lines(segs['A'], 1)[0])
        w(f'    s_cmp_eq_u32 s{sB}, 3\n    s_cbranch_scc1 L_final\n')
        w(dbg_lines(segs['B'], 8)[0]); w(DUMP)
        w('    s_branch L_next\nL_final:\n')
        w(lines(segs['D'])); w('    s_memtime s[94:95]\n'); w(DUMP)
        w('''    s_waitcnt vmcnt(0)
    s_memtime s[78:79]
    s_memrealtime s[98:99]
    s_waitcnt lgkmcnt(0)
    v_mov_b32 v28, s78
    v_mov_b32 v29, s98
    v_mov_b32 v30, s100
    v_mov_b32 v31, s67
    s_mov_b64 exec, 1
    buffer_store_dwordx4 v[28:31], off, s[60:63], s59
    s_mov_b64 exec, -1
''')
    w(f'''    s_or_b64 s[{sCmp[0]}:{sCmp[0]+1}], s[{sCmp[0]}:{sCmp[0]+1}], s[{sCmp[1]}:{sCmp[1]+1}]
    s_or_b64 s[{sCmp[2]}:{sCmp[2]+1}], s[{sCmp[2]}:{sCmp[2]+1}], s[{sCmp[3]}:{sCmp[3]+1}]
    s_or_b64 s[{sCmp[0]}:{sCmp[0]+1}], s[{sCmp[0]}:{sCmp[0]+1}], s[{sCmp[2]}:{sCmp[2]+1}]
    s_cselect_b32 s42, 8, 0
    s_or_b32 s{sFlag}, s{sFlag}, s42
''')
    w(slow_path())
    w(f'''L_end:
    s_endpgm
.section .rodata,"a"
.p2align 6
.amdhsa_kernel {NAME}
  .amdhsa_next_free_vgpr 512
  .amdhsa_next_free_sgpr {102 if OPT['debug'] else 80}
  .amdhsa_accum_offset 256
  .amdhsa_group_segment_fixed_size 0
  .amdhsa_kernarg_size 48
  .amdhsa_user_sgpr_count 2
  .amdhsa_user_sgpr_kernarg_segment_ptr 1
  .amdhsa_system_sgpr_workgroup_id_x 1
.end_amdhsa_kernel
''')
    open(sys.argv[1], 'w').write(''.join(A))

def slow_path():
    raw = lambda t: Op('salu', t)
    T = []
    w = T.append
    sPair, sKoff, sJ = 56, 57, 58
    vF, vFh, vTr = 26, 27, 30
    w(f'''    s_cmp_eq_u32 s{sFlag}, 0
    s_cbranch_scc1 L_end
    s_waitcnt vmcnt(0) lgkmcnt(0)
    s_mov_b32 s{sQ+2}, {QBYTES}
    s_sub_u32 s42, s{sPA}, {VBASE}
    v_add_u32 v{vTr}, s42, v{vVa}
    v_and_b32 v20, 15, v0
    v_bfe_u32 v21, v0, 4, 2
    v_lshlrev_b32 v20, 8, v20
    v_lshl_add_u32 v{vF}, v21, 4, v20
    v_add_u32 v{vFh}, s46, v{vF}
    s_mov_b32 s{sB}, 0
L_slow_blk:
    s_lshr_b32 s42, s{sFlag}, s{sB}
    s_and_b32 s42, s42, 1
    s_cmp_eq_u32 s42, 0
    s_cbranch_scc1 L_slow_next
    s_lshl_b32 s42, s{sB}, 3
    s_add_u32 s{sPair}, s43, s42
    s_mul_i32 s42, s{sPair}, {PAIRQ}
    s_lshl_b32 s45, s44, 16
    s_add_u32 s42, s42, s45
    s_lshl_b32 s45, s{sW4k}, 2
    s_add_u32 s{sOo[0]}, s42, s45
    s_add_u32 s{sOo[1]}, s{sOo[0]}, 4096
''')
    for qt in range(4):
        for ks in range(4):
            w(f'    buffer_load_dwordx4 {ar(Q(qt,ks),4)}, v{vF if qt < 2 else vFh}, {srd(sQ)}, s{sOo[qt%2]} offen offset:{ks*64}\n')
    for qt in range(4): w(f'    v_mov_b32 v{vT[qt]}, 0xff800000\n')
    w(f'''    s_lshl_b32 s{sKoff}, s{sPair}, 17
    s_mov_b32 s{sJ}, 0
L_slow_p1:
''')
    def kload(buf):
        return [raw(f'buffer_load_dwordx4 {ar(KF(buf,ks),4)}, v{vF}, {srd(sK)}, s{sKoff} offen offset:{ks*64}') for ks in range(4)]
    w(lines(kload(0)))
    w('    s_waitcnt vmcnt(0)\n')
    l = op_QK(0)
    for qt in range(4):
        s = S(0, qt)
        l.append(valu(f'v_max3_f32 v{vT[qt]}, v{s}, v{s+1}, v{vT[qt]}', [f'v{s}', f'v{s+1}', f'v{vT[qt]}'], [f'v{vT[qt]}']))
        l.append(valu(f'v_max3_f32 v{vT[qt]}, v{s+2}, v{s+3}, v{vT[qt]}', [f'v{s+2}', f'v{s+3}', f'v{vT[qt]}'], [f'v{vT[qt]}']))
    w(lines(padded(l)))
    w(f'''    s_add_u32 s{sKoff}, s{sKoff}, 4096
    s_add_u32 s{sJ}, s{sJ}, 1
    s_cmp_lt_u32 s{sJ}, 32
    s_cbranch_scc1 L_slow_p1
''')
    w(lines(padded(op_reduce())))
    for i in range(128): w(f'    v_mov_b32 v{128+i}, 0\n')
    for i in range(16): w(f'    v_accvgpr_write_b32 a{RS(0)+i}, 0\n')
    w(f'''    s_lshl_b32 s{sKoff}, s{sPair}, 17
    s_mov_b32 s{sJ}, 0
L_slow_p2:
''')
    w(f'    s_mov_b32 m0, s{sPA}\n    s_nop 0\n')
    for n in range(4): w(f'    buffer_load_dwordx4 v{vKd[0]}, {srd(sV)}, s{sKoff} offen offset:{n*1024} lds\n')
    w(lines(kload(0)))
    w(f'    s_add_u32 s{sKoff}, s{sKoff}, 4096\n    s_add_u32 m0, s{sPA}, 4096\n    s_nop 0\n')
    for n in range(4): w(f'    buffer_load_dwordx4 v{vKd[0]}, {srd(sV)}, s{sKoff} offen offset:{n*1024} lds\n')
    w(lines(kload(1)))
    w(f'    s_add_u32 s{sKoff}, s{sKoff}, 4096\n    s_waitcnt vmcnt(0)\n')
    l = op_QK(0) + op_QK(1) + op_SM(0) + op_SM(1)
    for qt in range(4): l.append(mfma('a', RS(qt), 'a', ONES, 'v', P(0, 0, qt), False))
    w(lines(padded(l)))
    for u in range(4):
        for Tb in range(2):
            for jh in range(2):
                d = VF(0, Tb, 0) + 2*jh
                w(f'    ds_read_b64_tr_b16 {ar(d,2)}, v{vTr} offset:{jh*4096 + u*256 + Tb*8}\n')
        w('    s_waitcnt lgkmcnt(0)\n')
        for Tb in range(2):
            for qt in range(4):
                w('    ' + mfma('v', O(2*u+Tb, qt), 'a', VF(0, Tb, 0), 'v', P(0, 0, qt), False).text + '\n')
        w('    s_nop 7\n')
    w(f'''    s_add_u32 s{sJ}, s{sJ}, 1
    s_cmp_lt_u32 s{sJ}, 16
    s_cbranch_scc1 L_slow_p2
    s_nop 7
''')
    l = op_L()
    for u in range(4):
        l += op_EPI(u)
        if u % 2: l += op_OUT(u // 2)
    for o in l:
        if o.kind == 'wlg': o.text = 's_waitcnt lgkmcnt(0)'
    w(lines(padded(l)))
    w(f'''    s_waitcnt vmcnt(0)
L_slow_next:
    s_add_u32 s{sB}, s{sB}, 1
    s_cmp_lt_u32 s{sB}, 4
    s_cbranch_scc1 L_slow_blk
''')
    return ''.join(T)

main()
```

```python
import sys, struct, math
import sched
from sched import *

OPT = dict(store_flags='nt', ds_lead=8, ds_lat=120, vm_space=3, debug=0, force_slow=0, q_flags='nt', kv_flags='',
           ds_sp=3, vshift=0, st_lo=10, st_hi=900, last_flags='nt', epi_len=20, warm=1, abl='', bou=1, pk=0, vmc=4, stc=4, vm_due=4, pkf=1, pkd=4, vm_sp=0, updin=1)
for a in sys.argv[2:]:
    k, v = a.split('=')
    OPT[k] = int(v) if v.lstrip('-').isdigit() else v.replace('+', ' ')

sched.VM_COST = OPT['vmc']; sched.ST_COST = OPT['stc']
NAME = 'standalone__gqa_softmax__near_ridge_kernel'
def f32(x): return struct.unpack('<I', struct.pack('<f', x))[0]
CSCALE = math.log2(math.e) / math.sqrt(128.0)
QBYTES = 16*32*496*128*2
KBYTES = 16*16*512*128*2
PAIRQ = 992*256
PAIRK = 512*256

vKa, vVa, vOlo, vOhi = 1, 2, 3, 4
vKd = [5, 6, 7, 8]
vQa = 9
vNM = [10, 11, 12, 13]
vRL = [14, 15, 16, 17]
vBias = 18
vRd = 19
vT = [20, 21, 22, 23]
vWr = [24, 25]
def S(buf, qt): return 32 + 16*buf + 4*qt
def P(par, h, qt): return 64 + 32*par + 16*h + 4*qt
def O(T, qt): return 128 + 16*T + 4*qt
def Q(qt, ks): return 16*qt + 4*ks
def QN(qt, ks): return 64 + 16*qt + 4*ks
def KF(buf, ks): return 128 + 16*buf + 4*ks
def VF(buf, Tb, h): return 160 + 16*buf + 8*Tb + 4*h
def RS(qt): return 192 + 4*qt
ONES = 208
def OST(R, n): return (96 if R == 0 else 212) + 4*n
sQ, sK, sV, sO, sKn, sVn, sQB = 4, 8, 12, 16, 20, 24, 68
sKV, sKVn = 28, 29
sQn = [30, 31, 64, 65]
sOo = [32, 33]
sC, sNC, sThr, sB, sFlag, sW4k = 34, 35, 36, 37, 38, 39
sTK, sTV = 40, 41
sCmp = [48, 50, 52, 54]
sOP = 72
sOp = [76, 77]
sPA = 66
VBASE = 65536

def vr(a, n): return f'v[{a}:{a+n-1}]'
def ar(a, n): return f'a[{a}:{a+n-1}]'
def srd(a): return f's[{a}:{a+3}]'

def mfma(dp, d, ap, a, bp, b, zero):
    c = '0' if zero else f'{dp}[{d}:{d+3}]'
    D = rng(dp, d, 4)
    return Op('mfma', f'v_mfma_f32_16x16x32_bf16 {dp}[{d}:{d+3}], {ap}[{a}:{a+3}], {bp}[{b}:{b+3}], {c}',
              R=rng(ap, a, 4) + rng(bp, b, 4) + ([] if zero else D), W=D, C=([] if zero else D))
def valu(text, R, W, kind='valu', **kw): return Op(kind, text, R=R, W=W, **kw)

def op_RK(a):
    tile, kt = divmod(a, 4)
    slot = tile % 4
    l = []
    for ks in range(4):
        d = KF(a % 2, ks)
        l.append(Op('ds', f'ds_read_b128 {ar(d,4)}, v{vKa} offset:{slot*16384 + kt*4096 + ks*256}',
                    R=[f'v{vKa}', f'Krdy{tile}'], W=rng('a', d, 4), name=('RK', a % 32, ks)))
    return l
def op_RV(b):
    tile, u = divmod(b, 4)
    slot = tile % 4
    l = []
    for Tb in range(2):
        for h in range(2):
            for jh in range(2):
                d = VF(b % 2, Tb, h) + 2*jh
                off = slot*16384 + h*8192 + jh*4096 + u*256 + Tb*8
                l.append(Op('ds', f'ds_read_b64_tr_b16 {ar(d,2)}, v{vVa} offset:{off}',
                            R=[f'v{vVa}', f'Vrdy{tile}'], W=rng('a', d, 2), name=('RV', b % 32, Tb, h, jh)))
    return l
def op_QK(a):
    l = []
    for qt in range(4):
        for i in range(4):
            ks = 3 - i if (OPT['bou'] and qt % 2) else i
            l.append(mfma('v', S(a % 2, qt), 'a', KF(a % 2, ks), 'a', Q(qt, ks), i == 0))
    return l
def op_PV(b):
    t, u = divmod(b, 4)
    l = []
    for Tb in range(2):
        for qt in range(4):
            for i in range(2):
                h = 1 - i if (OPT['bou'] and qt % 2) else i
                l.append(mfma('v', O(2*u+Tb, qt), 'a', VF(b % 2, Tb, h), 'v', P(t % 2, h, qt), t == 0 and i == 0))
    return l
def op_RS(t, qt):
    return [mfma('a', RS(qt), 'a', ONES, 'v', P(t % 2, h, qt), t == 0 and h == 0) for h in range(2)]
def pksel(r):
    return (r & ~1, r & 1)
def op_SM(a, pk=False):
    t, kt = divmod(a, 4)
    l = []
    for qt in range(4):
        s = S(a % 2, qt)
        for r in range(4):
            if 'fma' in OPT['abl']: continue
            if pk:
                if r % 2 == 0:
                    b, e = pksel(vNM[qt])
                    l.append(valu(f'v_pk_fma_f32 {vr(s+r,2)}, {vr(s+r,2)}, s[{sC}:{sC+1}], {vr(b,2)} op_sel:[0,0,{e}] op_sel_hi:[1,0,{e}]',
                                  rng('v', s+r, 2) + [f'v{vNM[qt]}'], rng('v', s+r, 2), kind='pk'))
                continue
            l.append(valu(f'v_fma_f32 v{s+r}, v{s+r}, s{sC}, v{vNM[qt]}', [f'v{s+r}', f'v{vNM[qt]}'], [f'v{s+r}']))
        for r in range(4):
            if 'exp' in OPT['abl']: continue
            l.append(valu(f'v_exp_f32 v{s+r}, v{s+r}', [f'v{s+r}'], [f'v{s+r}'], kind='trans'))
        p = P(t % 2, kt // 2, qt) + 2*(kt % 2)
        for i in range(2):
            l.append(valu(f'v_cvt_pk_bf16_f32 v{p+i}, v{s+2*i}, v{s+2*i+1}', [f'v{s+2*i}', f'v{s+2*i+1}'], [f'v{p+i}']))
    return l
def perm(n, a, b): return valu(f'v_permlane{n}_swap_b32 v{a}, v{b}', [f'v{a}', f'v{b}'], [f'v{a}', f'v{b}'], kind='perm')
def op_reduce():
    t = vT; n = vNM
    mx = lambda d, a, b: valu(f'v_max_f32 v{d}, v{a}, v{b}', [f'v{a}', f'v{b}'], [f'v{d}'])
    mv = lambda d, a: valu(f'v_mov_b32 v{d}, v{a}', [f'v{a}'], [f'v{d}'])
    return [perm(16, t[0], t[1]), perm(16, t[2], t[3]), mx(t[0], t[0], t[1]), mx(t[2], t[2], t[3]),
            perm(32, t[0], t[2]), mx(t[0], t[0], t[2]),
            valu(f'v_fma_f32 v{n[0]}, v{t[0]}, s{sNC}, v{vBias}', [f'v{t[0]}', f'v{vBias}'], [f'v{n[0]}']),
            mv(n[2], n[0]), perm(32, n[0], n[2]), mv(n[1], n[0]), mv(n[3], n[2]),
            perm(16, n[0], n[1]), perm(16, n[2], n[3])]
def op_MAX():
    l = []
    for qt in range(4):
        s = S(0, qt)
        l.append(valu(f'v_max3_f32 v{vT[qt]}, v{s}, v{s+1}, v{s+2}', rng('v', s, 3), [f'v{vT[qt]}']))
        l.append(valu(f'v_max_f32 v{vT[qt]}, v{vT[qt]}, v{s+3}', [f'v{vT[qt]}', f'v{s+3}'], [f'v{vT[qt]}']))
    return l + op_reduce()
def op_DMA(which, tile, bar):
    slot = tile % 4
    nxt = tile >= 8
    base = sKVn if nxt else sKV
    st = sTK if which == 'K' else sTV
    d = (sKn if nxt else sK) if which == 'K' else (sVn if nxt else sV)
    l = [Op('salu', f's_add_u32 s{st}, s{base}, {(tile % 8)*16384}', R=[f's{base}'], W=[f's{st}', 'scc']),
         Op('salu', f's_add_u32 m0, s{sW4k}, {slot*16384 + (VBASE if which == "V" else 0)}', R=[], W=['m0', 'scc'])]
    for n in range(4):
        va = vKd[n] if which == 'K' else vKd[0]
        l.append(Op('dma', f'buffer_load_dwordx4 v{va}, {srd(d)}, s{st} offen offset:{n*1024} {OPT["kv_flags"]} lds',
                    R=[f'v{va}', f's{st}', 'm0', 'srdn'] + ([bar] if bar else []), W=[], name=(which, tile % 8, n)))
    return l
def op_QD(qt, m0txt, dep=None):
    l = [Op('salu', m0txt, R=[], W=['m0', 'scc'])]
    for n in range(4):
        l.append(Op('dma', f'buffer_load_dwordx4 v{vKd[n]}, {srd(sQ if qt < 2 else sQB)}, s{sQn[qt]} offen offset:{n*1024} {OPT["q_flags"]} lds',
                    R=[f'v{vKd[n]}', f's{sQn[qt]}', 'm0'] + ([dep] if dep else []), W=[], name=('Q', qt, n)))
    return l
def op_QR(qt, dst, va, off, dep):
    return [Op('ds', f'ds_read_b128 {ar(dst(qt,ks),4)}, v{va} offset:{off + ks*256}',
               R=[f'v{va}', dep, 'PA'], W=rng('a', dst(qt, ks), 4), name=('QR', qt, ks)) for ks in range(4)]
def op_L():
    l = []
    for qt in range(4):
        r = vRL[qt]
        l.append(valu(f'v_accvgpr_read_b32 v{r}, a{RS(qt)}', [f'a{RS(qt)}'], [f'v{r}']))
        l.append(valu(f'v_cmp_nge_f32 s[{sCmp[qt]}:{sCmp[qt]+1}], s{sThr}, v{r}', [f'v{r}'], [f's{sCmp[qt]}']))
        l.append(valu(f'v_rcp_f32 v{r}, v{r}', [f'v{r}'], [f'v{r}'], kind='trans'))
    return l
def op_EPI(u, pk=False):
    l = []
    for qt in range(4):
        a, b = O(2*u, qt), O(2*u+1, qt)
        for x in list(range(a, a+4)) + list(range(b, b+4)):
            if pk:
                if x % 2 == 0:
                    rb, e = pksel(vRL[qt])
                    l.append(valu(f'v_pk_mul_f32 {vr(x,2)}, {vr(x,2)}, {vr(rb,2)} op_sel:[0,{e}] op_sel_hi:[1,{e}]',
                                  rng('v', x, 2) + [f'v{vRL[qt]}'], rng('v', x, 2), kind='pk'))
                continue
            l.append(valu(f'v_mul_f32 v{x}, v{x}, v{vRL[qt]}', [f'v{x}', f'v{vRL[qt]}'], [f'v{x}']))
        for i, x in enumerate([a, a+2, b, b+2]):
            l.append(valu(f'v_cvt_pk_bf16_f32 v{a+i}, v{x}, v{x+1}', [f'v{x}', f'v{x+1}'], [f'v{a+i}']))
        l.append(Op('ds', f'ds_write_b128 v{vWr[u%2]}, {vr(a,4)} offset:{qt*2048}',
                    R=rng('v', a, 4) + [f'v{vWr[u%2]}', 'PAw'], W=[f'PA{qt}_{u%2}'], name=('OW', u, qt)))
    return l
def op_OR(R, half):
    return [Op('ds', f'ds_read_b128 {ar(OST(R,n),4)}, v{vRd} offset:{n*1024}',
               R=[f'v{vRd}', f'PA{n//2}_0', f'PA{n//2}_1'], W=rng('a', OST(R, n), 4), name=('OR', R, n)) for n in range(4*half, 4*half+4)]
def op_ST(R, half, dep, prev):
    l = []
    for n in range(4*half, 4*half+4):
        va = vOlo if n < 4 else vOhi
        so = (sOp if prev else sOo)[(n//2) % 2]
        l.append(Op('vst', f'buffer_store_dwordx4 {ar(OST(R,n),4)}, v{va}, {srd(sOP if prev else sO)}, s{so} offen offset:{(n%2)*2048 + R*128} {OPT["store_flags" if prev else "last_flags"]}'.rstrip(),
                    R=rng('a', OST(R, n), 4) + [f'v{va}', f's{so}', dep], W=[], name=('O', R, n)))
    return l
def op_OUT(R):
    l = []
    for half in range(2):
        rd = op_OR(R, half)
        l += rd + [wlg(rd, f'wO{R}_{half}')] + op_ST(R, half, f'wO{R}_{half}', False)
    return l
def wlg(targets, tag, prev=None):
    o = Op('wlg', None, W=[tag], targets=targets)
    o.prev_targets = [t.name for t in targets] if prev is None else prev
    return o
def wvm(names, tag, byname):
    o = Op('wvm', None, W=[tag], targets=[byname[x] for x in names if x in byname])
    o.prev_targets = names
    return o

def op_UPD():
    sa = lambda t, R, W: Op('salu', t, R=R, W=W)
    c = [f's{x}' for x in sCmp]
    p = lambda x: f's[{x}:{x+1}]'
    l = [sa(f's_or_b64 {p(sCmp[0])}, {p(sCmp[0])}, {p(sCmp[1])}', [c[0], c[1]], [c[0], 'scc']),
         sa(f's_or_b64 {p(sCmp[2])}, {p(sCmp[2])}, {p(sCmp[3])}', [c[2], c[3]], [c[2], 'scc']),
         sa(f's_or_b64 {p(sCmp[0])}, {p(sCmp[0])}, {p(sCmp[2])}', [c[0], c[2]], [c[0], 'scc']),
         sa('s_cselect_b32 s42, 1, 0', ['scc'], ['s42']),
         sa(f's_lshl_b32 s42, s42, s{sB}', ['s42', f's{sB}'], ['s42', 'scc']),
         sa(f's_or_b32 s{sFlag}, s{sFlag}, s42', ['s42'], [f's{sFlag}', 'scc']),
         sa(f's_mov_b64 {p(sOp[0])}, {p(sOo[0])}', [f's{sOo[0]}'], [f's{sOp[0]}']),
         sa(f's_mov_b64 {p(sOo[0])}, {p(sQn[0])}', [f's{sQn[0]}', f's{sQn[1]}'], [f's{sOo[0]}']),
         sa(f's_mov_b32 s{sKV}, s{sKVn}', [f's{sKVn}'], [f's{sKV}']),
         sa(f's_add_u32 s{sB}, s{sB}, 1', [f's{sB}'], [f's{sB}', 'scc']),
         sa(f's_cselect_b32 s{sOP+2}, 0, {QBYTES}', ['scc'], [f's{sOP+2}']),
         sa(f's_cmp_lt_u32 s{sB}, 3', [f's{sB}'], ['scc']),
         sa(f's_cselect_b32 s42, {8*PAIRQ}, 0', ['scc'], ['s42']),
         sa(f's_cselect_b32 s45, {8*PAIRK}, 0', ['scc'], ['s45']),
         sa(f's_cselect_b32 s{sQ+2}, s{sQ+2}, 0', ['scc'], [f's{sQ+2}']),
         sa(f's_cselect_b32 s{sQB+2}, s{sQB+2}, 0', ['scc'], [f's{sQB+2}']),
         sa(f's_cselect_b32 s{sKn+2}, s{sKn+2}, 0', ['scc'], ['srdn']),
         sa(f's_cselect_b32 s{sVn+2}, s{sVn+2}, 0', ['scc'], ['srdn'])]
    l += [sa(f's_add_u32 s{x}, s{x}, s42', ['s42', f's{x}'], [f's{x}', 'scc']) for x in sQn]
    l += [sa(f's_add_u32 s{sKVn}, s{sKVn}, s45', ['s45', f's{sKVn}'], [f's{sKVn}', 'scc'])]
    return l

class Seg:
    def __init__(self):
        self.ops = []; self.nm = 0; self.byname = {}
    def add(self, l, need=None):
        for i, o in enumerate(l):
            if need and i == 0: o.R += need if isinstance(need, list) else [need]
            if o.kind == 'mfma': self.nm += 1
            if o.kind in ('dma', 'vld', 'vst'): self.byname[o.name] = o
            self.ops.append(o)
        return l
    def reads(self, l, tag, at):
        n = len(l)
        for i, o in enumerate(l):
            o.due = at - OPT['ds_lead'] - (n - 1 - i) * OPT['ds_sp']
            o.earliest = o.due - 2
        self.add(l)
        if tag: self.add([wlg(l, tag)])
    def spread(self, l, lo, hi, sp=None):
        mem = [o for o in l if o.kind in MEM_KINDS]
        for i, o in enumerate(mem):
            pos = lo + min(sp or OPT['vm_sp'] or 1000, (hi - lo) / len(mem)) * (i + 0.5)
            o.earliest = int(pos) - 2; o.due = pos + OPT['vm_due']
        for i, o in enumerate(l):
            if o.kind == 'salu':
                nx = next(x for x in l[i:] if x.kind in MEM_KINDS)
                o.earliest = nx.earliest - 6
        self.add(l)
    def barrier(self, nn, pos, waits):
        names = [('K', (nn+1) % 8, i) for i in range(4)] + [('V', nn % 8, i) for i in range(4)]
        wv = wvm(names, f'wvm{nn}', self.byname); wv.earliest = pos - 3
        bo = Op('bar', 's_barrier', R=[f'wvm{nn}'] + waits, W=[f'bar{nn}', f'Krdy{nn+1}', f'Vrdy{nn}'])
        bo.earliest = pos - 1; bo.due = pos + 1
        self.add([wv, bo])

def seg_A():
    g = Seg()
    start = {s: (s - 4) * 34 for s in range(4, 33)}
    barpos = {nn: start[4*nn+3] + 16 for nn in range(1, 8)}
    barpos[0] = -2
    def interval(nn, extra):
        bar = f'bar{nn}' if nn >= 1 else None
        l = op_DMA('K', nn + 4, bar) + op_DMA('V', nn + 3, bar) + extra
        g.spread(l, barpos[nn] + 2, barpos[nn+1] - 6)
    qm0 = lambda j: f's_add_u32 m0, s{sPA}, {4096*j}'
    extras = {0: op_QD(0, qm0(0), 'wK4'), 1: op_QD(1, qm0(1), 'wK4'), 4: op_QD(2, qm0(0), 'wQA'), 5: op_QD(3, qm0(1), 'wQA')}
    w = wlg([], 'wK4', prev=[('RK', 4, ks) for ks in range(4)] + [('OR', R, n) for R in range(2) for n in range(8)]); w.due = -1
    g.add([w])
    sts = sum([op_ST(R, hf, 'wK4', True) for hf in range(2) for R in range(2)], [])
    sts.sort(key=lambda o: (o.name[2], o.name[1]))
    g.spread(sts, OPT['st_lo'], OPT['st_hi'], 1000)
    interval(0, extras[0])
    for s in range(4, 32):
        if s > 4: g.reads(op_RK(s), f'wK{s}', start[s])
        g.add(op_QK(s), f'wK{s}')
        g.add(op_SM(s - 1))
        b = s - 4
        g.reads(op_RV(b), f'wV{b}', start[s] + 16)
        if s % 4 == 3: g.barrier(s // 4, barpos[s // 4], [f'wK{s}', f'wV{b}'])
        g.add(op_PV(b), f'wV{b}')
        g.add(op_RS(b // 4, b % 4))
        if s == 17:
            wq = wvm([('Q', qt, n) for qt in range(2) for n in range(4)], 'vQA', g.byname); wq.earliest = start[17]
            g.add([wq])
            g.reads(op_QR(0, QN, vQa, 0, 'vQA') + op_QR(1, QN, vQa, 4096, 'vQA'), 'wQA', barpos[4] + 8)
        if s % 4 == 3 and s // 4 <= 6: interval(s // 4, extras.get(s // 4, []))
    g.reads(op_RV(28), None, start[32] + 12)
    return g.ops

def seg_tail(drain, fill):
    g = Seg()
    pos = {}; n = 0
    order = []
    if drain: order += [('RS', 0), ('PV', 28), ('PV', 29)]
    for i in range(4):
        if fill: order.append(('QK', 32 + i))
        if drain and i < 2: order.append(('PV', 30 + i))
    for k in order:
        pos[k] = n; n += 8 if k[0] == 'RS' else 16
    total = n
    if drain:
        g.add(op_SM(31, OPT['pk'] & 2 and fill))
        w = wlg([], 'wV28', prev=[o.name for o in op_RV(28)]); g.add([w])
    if drain and fill:
        wq = wvm([('Q', qt, n) for qt in range(2, 4) for n in range(4)], 'vQB', g.byname); wq.due = -5
        g.add([wq])
        g.reads(op_QR(2, Q, vQa, 0, 'vQB') + op_QR(3, Q, vQa, 4096, 'vQB'), 'wQB', pos[('QK', 32)] + 8)
        for o in g.ops:
            if o.kind == 'ds': o.earliest = None; o.R.remove('PA'); o.R += [f'PA{q}_{p}' for q in range(4) for p in range(2)]
        for i in range(32):
            g.add([valu(f'v_accvgpr_mov_b32 a{i}, a{64+i}', [f'a{64+i}'], [f'a{i}'])])
    if drain and not fill:
        wq = wvm([('Q', qt, n) for qt in range(2, 4) for n in range(4)], 'PAw', g.byname); wq.earliest = 8
        g.add([wq])
    if fill:
        barp = pos[('QK', 35)] + 1
        first = [] if drain else op_DMA('K', 10, None) + op_DMA('V', 9, None)
        g.spread(first + op_DMA('K', 11, None) + op_DMA('V', 10, None), 2, (barp - 6) if drain else total - 2)
    for k in order:
        if k[0] == 'RS':
            for qt in range(4): g.add(op_RS(7, qt))
            g.add(op_L())
        elif k[0] == 'PV':
            b = k[1]
            if b > 28: g.reads(op_RV(b), f'wV{b}', pos[k])
            g.add(op_PV(b), f'wV{b}')
            ep = op_EPI(b - 28, OPT['pk'] & 1 and (fill or b - 28 >= OPT['pkd']))
            for i, o in enumerate(ep): o.due = pos[k] + 16 + 4 + OPT['epi_len'] * i / len(ep)
            g.add(ep)
            if b % 2 == 1:
                R = (b - 28) // 2
                out = op_OUT(R) if not fill else op_OR(R, 0) + op_OR(R, 1)
                for i, o in enumerate(out): o.due = pos[k] + 16 + 4 + OPT['epi_len'] * (0.5 + 0.5 * i / len(out)) + (6 if o.kind != 'ds' else 0)
                g.add(out)
        else:
            a = k[1]
            if a == 32 and not drain:
                pass
            else: g.reads(op_RK(a), f'wK{a}', pos[k])
            qk = op_QK(a)
            if a == 32 and drain: qk[8].R.append('wQB')
            if a == 35: g.barrier(8, barp, [f'wK{a}'] + (['wV31'] if drain else []))
            g.add(qk, f'wK{a}' if (a > 32 or drain) else None)
            if a == 32: g.add(op_MAX())
            if a > 32: g.add(op_SM(a - 33, OPT['pk'] & 2 and (drain or a - 33 >= OPT['pkf'])))
    if fill:
        g.reads(op_RK(36), None, total + 4)
        if OPT['updin']: g.add(op_UPD())
    return g.ops

def resolve_waits(seqs):
    res = {}
    for kind, kinds, fmt, mx in (('wvm', ('dma', 'vld', 'vst'), 'vmcnt', 63), ('wlg', ('ds',), 'lgkmcnt', 15)):
        hist = []
        for si, sq in enumerate(seqs):
            for o in sq:
                if o.kind in kinds: hist.append(o.name)
                elif o.kind == kind:
                    last = max(len(hist) - 1 - hist[::-1].index(x) for x in o.prev_targets if x in hist)
                    res.setdefault(o, []).append(len(hist) - 1 - last)
        for o, l in res.items():
            if o.kind == kind: o.text = f's_waitcnt {fmt}({min(min(l), mx)})'
    return res

def lines(ops): return ''.join('    ' + o.text + '\n' for o in ops)
def padded(ops):
    build_deps(ops)
    out = []
    for o in ops:
        need = 0
        for p, d in o.preds.items():
            need = max(need, d - (len(out) - p.pos - 1))
        for _ in range(need): out.append(Op('salu', 's_nop 0'))
        o.pos = len(out); out.append(o)
    return out

def dbg_lines(ops, first):
    txt = ''; n = first
    for o in ops:
        txt += '    ' + o.text + '\n'
        if o.kind == 'bar':
            txt += f'    s_memtime s[{78+2*n}:{79+2*n}]\n'; n += 1
    return txt, n
DUMP = '    s_memtime s[96:97]\n    s_waitcnt lgkmcnt(0)\n' + ''.join(
    f'    v_writelane_b32 v28, s{78+2*i}, {i}\n' for i in range(11)) + \
    '    s_mov_b64 exec, 0xffff\n    buffer_store_dword v28, v29, s[60:63], s59 offen\n    s_mov_b64 exec, -1\n    s_add_u32 s59, s59, 64\n'

def main():
    segs = {}
    for nme, ops in (('A', seg_A()), ('B', seg_tail(True, True)), ('F', seg_tail(False, True)), ('D', seg_tail(True, False))):
        segs[nme], stats = schedule(ops, OPT['ds_lead'], OPT['ds_lat'], OPT['vm_space'])
        print(nme, stats, file=sys.stderr)
    A = []
    w = A.append
    WARM1 = '''    s_getpc_b64 s[94:95]
L_pc:
    s_bfe_u32 s64, s2, 0x20003            ; (wg >> 3) & 3
    s_lshl_b32 s64, s64, 13
    v_lshlrev_b32 v28, 7, v0
    v_cmp_lt_u32 vcc, 63, v0
    v_mov_b32 v29, s64
    s_nop 0
    v_cndmask_b32 v29, 0, v29, vcc
    v_add_u32 v28, v28, v29
    v_min_u32 v28, L_end-L_pc, v28
    v_cmp_gt_u32 vcc, 128, v0
    s_and_saveexec_b64 s[64:65], vcc
    s_cbranch_execz L_w1
    global_load_dword a255, v28, s[94:95]
L_w1:
    s_mov_b64 exec, -1
''' if OPT['warm'] else ''
    w(f'''; GQA attention forward, B=16 Hq=32 Hkv=16 Sq=496 Sk=512 D=128, bf16.  Generated by gen/gen.py (own generator).
; 256 persistent workgroups x 4 waves; each wave 64 q rows; K/V tiles streamed through an LDS ring by LDS-DMA.
; Softmax reference point: max over the row's first 16 keys; a run-time check on the row sum redoes the rows
; @launch grid=(256,1,1) block=(256,1,1) lds=163840
.amdgcn_target "amdgcn-amd-amdhsa--gfx950"
.text
.globl {NAME}
.p2align 8
.type {NAME},@function
{NAME}:
    s_cmp_ge_u32 s2, 256
    s_cbranch_scc1 L_end
{'    s_memtime s[100:101]' if OPT['debug'] else ''}
    s_load_dwordx4 s[56:59], s[0:1], 0
    s_load_dwordx4 s[60:63], s[0:1], 16
{WARM1}    v_lshrrev_b32 v20, 6, v0
    v_and_b32 v21, 63, v0                 ; lane
    v_readfirstlane_b32 s42, v20          ; wave
    v_and_b32 v22, 15, v21                ; i
    v_lshrrev_b32 v23, 4, v21             ; g
    v_lshrrev_b32 v26, 2, v22             ; i/4
    v_and_b32 v27, 3, v21                 ; i%4
    ; DMA lane part: (i/4)*256 + g*64 + ((i%4)^f(n))*16
    v_lshlrev_b32 v30, 8, v26
    v_lshl_add_u32 v30, v23, 6, v30
    v_lshl_add_u32 v{vKd[0]}, v27, 4, v30
    v_xor_b32 v{vKd[1]}, 48, v{vKd[0]}
    v_xor_b32 v{vKd[2]}, 32, v{vKd[0]}
    v_xor_b32 v{vKd[3]}, 16, v{vKd[0]}
    s_and_b32 s43, s2, 7                  ; xcd
    s_lshr_b32 s44, s2, 3
    s_lshr_b32 s45, s44, 2                ; group
    s_and_b32 s44, s44, 3                 ; qb
    s_lshl_b32 s43, s43, 5
    s_add_u32 s43, s43, s45               ; pair0
    s_lshl_b32 s{sW4k}, s42, 12
    s_lshl_b32 s{sKVn}, s43, 17
    s_add_u32 s{sKVn}, s{sKVn}, s{sW4k}
    s_mul_i32 s45, s43, {PAIRQ}
    s_lshl_b32 s46, s44, 16
    s_add_u32 s45, s45, s46
    s_lshl_b32 s46, s42, 14
    s_add_u32 s{sQn[0]}, s45, s46
    s_add_u32 s{sQn[1]}, s{sQn[0]}, 4096
    s_lshl_b32 s{sPA}, s42, 13
    s_add_u32 s{sPA}, s{sPA}, 131072
    s_lshl_b32 s46, s44, 2
    s_add_u32 s46, s46, s42
    s_cmp_eq_u32 s46, 15
    s_cselect_b32 s46, 0x40000000, 8192
    s_cselect_b32 s47, 0xff800000, 0
    s_cselect_b32 s45, 0, 8192
    s_cselect_b32 s{sQB+2}, 0, {QBYTES}
    s_add_u32 s{sQn[2]}, s{sQn[0]}, s45
    s_add_u32 s{sQn[3]}, s{sQn[1]}, s45
    s_mov_b32 s{sQ+2}, {QBYTES}
    s_mov_b32 s{sQ+3}, 0x20000
    s_mov_b32 s{sQB+3}, 0x20000
    s_mov_b32 s{sKn+2}, {KBYTES}
    s_mov_b32 s{sKn+3}, 0x20000
    s_mov_b32 s{sVn+2}, {KBYTES}
    s_mov_b32 s{sVn+3}, 0x20000
    s_waitcnt lgkmcnt(0)
    s_mov_b32 s{sKn}, s58
    s_mov_b32 s{sKn+1}, s59
    s_mov_b32 s{sQ}, s56
    s_mov_b32 s{sQ+1}, s57
    s_mov_b32 s{sQB}, s56
    s_mov_b32 s{sQB+1}, s57
    s_mov_b32 s{sVn}, s60
    s_mov_b32 s{sVn+1}, s61
''')
    if OPT['debug']:
        w('''    s_memrealtime s[98:99]
    s_waitcnt lgkmcnt(0)
    s_mov_b32 s67, s98
''')
    QTMP = [None, None, VBASE + 3*16384, 3*16384]
    pro = op_DMA('K', 8, None)
    pro += op_QD(0, f's_add_u32 m0, s{sPA}, 0') + op_QD(1, f's_add_u32 m0, s{sPA}, 4096')
    pro += op_QD(2, f's_add_u32 m0, s{sW4k}, {QTMP[2]}') + op_QD(3, f's_add_u32 m0, s{sW4k}, {QTMP[3]}')
    late = [padded(op_DMA(*x, None)) for x in (('K', 9), ('V', 8))]
    pro = padded(pro)
    w(lines(pro))
    w(f'''    ; remaining setup under the load latency
    s_mov_b32 s{sK}, s58
    s_mov_b32 s{sK+1}, s59
    s_mov_b32 s{sK+2}, {KBYTES}
    s_mov_b32 s{sK+3}, 0x20000
    s_mov_b32 s{sV}, s60
    s_mov_b32 s{sV+1}, s61
    s_mov_b32 s{sV+2}, {KBYTES}
    s_mov_b32 s{sV+3}, 0x20000
    s_mov_b32 s{sO}, s62
    s_mov_b32 s{sO+1}, s63
    s_mov_b32 s{sO+2}, {QBYTES}
    s_mov_b32 s{sO+3}, 0x20000
    s_mov_b32 s{sOP}, s62
    s_mov_b32 s{sOP+1}, s63
    s_mov_b32 s{sOP+3}, 0x20000
    s_mov_b32 s{sOo[0]}, 0
    s_mov_b32 s{sOo[1]}, 0
    v_sub_u32 v30, 0, v26
    v_and_b32 v30, 3, v30                 ; f(i/4)
    v_xor_b32 v30, v30, v23
    v_lshlrev_b32 v30, 4, v30
    v_lshl_add_u32 v30, v27, 6, v30
    v_lshl_add_u32 v{vKa}, v26, 10, v30
    v_add_u32 v{vQa}, s{sPA}, v{vKa}
    v_lshlrev_b32 v30, 10, v23
    v_lshl_add_u32 v30, v26, 6, v30
    v_lshl_add_u32 v30, v27, 4, v30
    v_add_u32 v{vVa}, {VBASE}, v30
{'    v_and_b32 v30, 16, v21' + chr(10) + '    v_lshrrev_b32 v30, 1, v30' + chr(10) + f'    v_add_u32 v{vVa}, v{vVa}, v30' if 'conf' in OPT['abl'] else ''}
    ; O staging: write addr = PA + i*128 + ((g ^ (i&7))*16); read addr = PA + lane*16; store lane part = (l/8)*256 + ((l%8)^(l/8))*16
    v_and_b32 v30, 7, v21
    v_xor_b32 v31, v30, v23
    v_lshlrev_b32 v31, 4, v31
    v_lshl_add_u32 v31, v22, 7, v31
    v_add_u32 v{vWr[0]}, s{sPA}, v31
    v_xor_b32 v{vWr[1]}, 64, v{vWr[0]}
    v_lshlrev_b32 v31, 4, v21
    v_add_u32 v{vRd}, s{sPA}, v31
    v_lshrrev_b32 v31, 3, v21
    v_xor_b32 v30, v30, v31
    v_lshlrev_b32 v30, 4, v30
    v_lshl_add_u32 v{vOlo}, v31, 8, v30
    v_add_u32 v{vOhi}, s46, v{vOlo}
    v_mov_b32 v30, s47
    v_cmp_lt_u32 vcc, 31, v21
    v_mov_b32 v31, 0x3f803f80
    s_mov_b32 s{sC}, {hex(f32(CSCALE))}
    v_cndmask_b32 v{vBias}, 0, v30, vcc
    s_mov_b32 s{sNC}, {hex(f32(-CSCALE))}
    s_mov_b32 s{sThr}, {hex(f32(2.0**64) if not OPT['force_slow'] else f32(-1.0))}
    s_mov_b32 s{sB}, -1
    s_mov_b32 s{sFlag}, 0
    s_mov_b64 s[{sCmp[0]}:{sCmp[0]+1}], 0
    s_mov_b64 s[{sCmp[1]}:{sCmp[1]+1}], 0
    s_mov_b64 s[{sCmp[2]}:{sCmp[2]+1}], 0
    s_mov_b64 s[{sCmp[3]}:{sCmp[3]+1}], 0
    v_accvgpr_write_b32 a{ONES}, v31
    v_accvgpr_write_b32 a{ONES+1}, v31
    v_accvgpr_write_b32 a{ONES+2}, v31
    v_accvgpr_write_b32 a{ONES+3}, v31
    v_add_u32 v30, s{sW4k}, v{vKa}
    v_add_u32 v31, {VBASE}, v30
''')
    rk0 = op_RK(32)
    qr = [op_QR(0, Q, vQa, 0, 'x'), op_QR(1, Q, vQa, 4096, 'x'), op_QR(2, Q, 31, 3*16384, 'x'), op_QR(3, Q, 30, 3*16384, 'x')]
    dummies = lambda nd: [Op('vst', f'buffer_store_dword v31, v31, {srd(sO)}, 0 offen', name=('dummy', i)) for i in range(nd)]
    seqs0 = lambda nd: [pro + sum(late, []) + rk0, segs['F'], dummies(nd)] + [segs['A'], segs['B']] * 3 + [segs['A'], segs['D']]
    r = resolve_waits(seqs0(0))
    nd = max(min(l[-1], 63) - l[0] for o, l in r.items() if o.kind == 'wvm' and len(l) > 1)
    sq = seqs0(nd)
    r = resolve_waits(sq)
    print('dummies', nd, [(o.text, l) for o, l in r.items() if o.kind == 'wvm'], file=sys.stderr)
    tot = len([o for o in pro if o.kind in ('dma', 'vld')])
    if OPT['debug']: w('    s_memtime s[78:79]\n')
    w(f'    s_waitcnt vmcnt({tot - 4})\n')
    if OPT['debug']: w('    s_memtime s[80:81]\n')
    w('    s_barrier\n')
    if OPT['debug']: w('    s_memtime s[82:83]\n')
    w(lines(rk0))
    w(lines(late[0]))
    for qt in range(4):
        w(f'    s_waitcnt vmcnt({tot - 4 - 4*max(0, qt - 1)})\n')
        if OPT['debug']: w(f'    s_memtime s[{84+2*qt}:{85+2*qt}]\n')
        w(lines(qr[qt]))
        if qt < 1: w(lines(late[qt + 1]))
    w('    s_waitcnt lgkmcnt(0)\n')
    if OPT['debug']:
        w('''    s_load_dwordx2 s[60:61], s[0:1], 40
    s_mov_b32 s62, 0x1000000
    s_mov_b32 s63, 0x20000
    s_lshl_b32 s59, s2, 2
    s_add_u32 s59, s59, s42
    s_lshl_b32 s59, s59, 9
    v_lshlrev_b32 v29, 2, v21
    s_waitcnt lgkmcnt(0)
''')
    if 'rs' in OPT['abl']:
        segs['A'] = [o if not (o.kind == 'mfma' and o.text.split()[1].startswith('a[')) else Op('salu', 's_nop 0') for o in segs['A']]
    if 'dma' in OPT['abl']:
        for sg in 'AB':
            segs[sg] = [o if not (o.kind == 'dma' and o.name[0] in 'KV') else Op('salu', 's_nop 0') for o in segs[sg]]
    if 'ds' in OPT['abl'].split():
        for sg in 'AB':
            segs[sg] = [o if not (o.kind == 'ds' and o.name[0] in ('RK', 'RV')) else Op('salu', 's_nop 0') for o in segs[sg]]
    upd = 'L_next:\n' + ('' if OPT['updin'] else lines(op_UPD()))
    pad = lambda n: [Op('salu', 'x') for _ in range(n)]
    bad = check_hazards(segs['F'] + segs['A'] + pad(2) + segs['B'] + pad(1) + segs['A'] + pad(2) + segs['D'])
    assert bad == 0, bad
    if not OPT['debug']:
        w(lines(segs['F']))
        w(lines(sq[2]))
        w(upd)
        w(lines(segs['A']))
        w(f'    s_cmp_eq_u32 s{sB}, 3\n    s_cbranch_scc1 L_final\n')
        w(lines(segs['B']))
        w('    s_branch L_next\nL_final:\n')
        w(lines(segs['D']))
    else:
        w('    s_memtime s[92:93]\n')
        w(dbg_lines(segs['F'], 8)[0]); w(DUMP)
        w(lines(sq[2]))
        w(upd)
        w('    s_memtime s[78:79]\n    s_memrealtime s[98:99]\n')
        w(dbg_lines(segs['A'], 1)[0])
        w(f'    s_cmp_eq_u32 s{sB}, 3\n    s_cbranch_scc1 L_final\n')
        w(dbg_lines(segs['B'], 8)[0]); w(DUMP)
        w('    s_branch L_next\nL_final:\n')
        w(lines(segs['D'])); w('    s_memtime s[94:95]\n'); w(DUMP)
        w('''    s_waitcnt vmcnt(0)
    s_memtime s[78:79]
    s_memrealtime s[98:99]
    s_waitcnt lgkmcnt(0)
    v_mov_b32 v28, s78
    v_mov_b32 v29, s98
    v_mov_b32 v30, s100
    v_mov_b32 v31, s67
    s_mov_b64 exec, 1
    buffer_store_dwordx4 v[28:31], off, s[60:63], s59
    s_mov_b64 exec, -1
''')
    w(f'''    s_or_b64 s[{sCmp[0]}:{sCmp[0]+1}], s[{sCmp[0]}:{sCmp[0]+1}], s[{sCmp[1]}:{sCmp[1]+1}]
    s_or_b64 s[{sCmp[2]}:{sCmp[2]+1}], s[{sCmp[2]}:{sCmp[2]+1}], s[{sCmp[3]}:{sCmp[3]+1}]
    s_or_b64 s[{sCmp[0]}:{sCmp[0]+1}], s[{sCmp[0]}:{sCmp[0]+1}], s[{sCmp[2]}:{sCmp[2]+1}]
    s_cselect_b32 s42, 8, 0
    s_or_b32 s{sFlag}, s{sFlag}, s42
''')
    w(slow_path())
    w(f'''L_end:
    s_endpgm
.section .rodata,"a"
.p2align 6
.amdhsa_kernel {NAME}
  .amdhsa_next_free_vgpr 512
  .amdhsa_next_free_sgpr {102 if OPT['debug'] else 96}
  .amdhsa_accum_offset 256
  .amdhsa_group_segment_fixed_size 0
  .amdhsa_kernarg_size 48
  .amdhsa_user_sgpr_count 2
  .amdhsa_user_sgpr_kernarg_segment_ptr 1
  .amdhsa_system_sgpr_workgroup_id_x 1
.end_amdhsa_kernel
''')
    open(sys.argv[1], 'w').write(''.join(A))

def slow_path():
    raw = lambda t: Op('salu', t)
    T = []
    w = T.append
    sPair, sKoff, sJ = 56, 57, 58
    vF, vFh, vTr = 26, 27, 30
    w(f'''    s_cmp_eq_u32 s{sFlag}, 0
    s_cbranch_scc1 L_end
    s_waitcnt vmcnt(0) lgkmcnt(0)
    s_mov_b32 s{sQ+2}, {QBYTES}
    s_sub_u32 s42, s{sPA}, {VBASE}
    v_add_u32 v{vTr}, s42, v{vVa}
    v_and_b32 v20, 15, v0
    v_bfe_u32 v21, v0, 4, 2
    v_lshlrev_b32 v20, 8, v20
    v_lshl_add_u32 v{vF}, v21, 4, v20
    v_add_u32 v{vFh}, s46, v{vF}
    s_mov_b32 s{sB}, 0
L_slow_blk:
    s_lshr_b32 s42, s{sFlag}, s{sB}
    s_and_b32 s42, s42, 1
    s_cmp_eq_u32 s42, 0
    s_cbranch_scc1 L_slow_next
    s_lshl_b32 s42, s{sB}, 3
    s_add_u32 s{sPair}, s43, s42
    s_mul_i32 s42, s{sPair}, {PAIRQ}
    s_lshl_b32 s45, s44, 16
    s_add_u32 s42, s42, s45
    s_lshl_b32 s45, s{sW4k}, 2
    s_add_u32 s{sOo[0]}, s42, s45
    s_add_u32 s{sOo[1]}, s{sOo[0]}, 4096
''')
    for qt in range(4):
        for ks in range(4):
            w(f'    buffer_load_dwordx4 {ar(Q(qt,ks),4)}, v{vF if qt < 2 else vFh}, {srd(sQ)}, s{sOo[qt%2]} offen offset:{ks*64}\n')
    for qt in range(4): w(f'    v_mov_b32 v{vT[qt]}, 0xff800000\n')
    w(f'''    s_lshl_b32 s{sKoff}, s{sPair}, 17
    s_mov_b32 s{sJ}, 0
L_slow_p1:
''')
    def kload(buf):
        return [raw(f'buffer_load_dwordx4 {ar(KF(buf,ks),4)}, v{vF}, {srd(sK)}, s{sKoff} offen offset:{ks*64}') for ks in range(4)]
    w(lines(kload(0)))
    w('    s_waitcnt vmcnt(0)\n')
    l = op_QK(0)
    for qt in range(4):
        s = S(0, qt)
        l.append(valu(f'v_max3_f32 v{vT[qt]}, v{s}, v{s+1}, v{vT[qt]}', [f'v{s}', f'v{s+1}', f'v{vT[qt]}'], [f'v{vT[qt]}']))
        l.append(valu(f'v_max3_f32 v{vT[qt]}, v{s+2}, v{s+3}, v{vT[qt]}', [f'v{s+2}', f'v{s+3}', f'v{vT[qt]}'], [f'v{vT[qt]}']))
    w(lines(padded(l)))
    w(f'''    s_add_u32 s{sKoff}, s{sKoff}, 4096
    s_add_u32 s{sJ}, s{sJ}, 1
    s_cmp_lt_u32 s{sJ}, 32
    s_cbranch_scc1 L_slow_p1
''')
    w(lines(padded(op_reduce())))
    for i in range(128): w(f'    v_mov_b32 v{128+i}, 0\n')
    for i in range(16): w(f'    v_accvgpr_write_b32 a{RS(0)+i}, 0\n')
    w(f'''    s_lshl_b32 s{sKoff}, s{sPair}, 17
    s_mov_b32 s{sJ}, 0
L_slow_p2:
''')
    w(f'    s_mov_b32 m0, s{sPA}\n    s_nop 0\n')
    for n in range(4): w(f'    buffer_load_dwordx4 v{vKd[0]}, {srd(sV)}, s{sKoff} offen offset:{n*1024} lds\n')
    w(lines(kload(0)))
    w(f'    s_add_u32 s{sKoff}, s{sKoff}, 4096\n    s_add_u32 m0, s{sPA}, 4096\n    s_nop 0\n')
    for n in range(4): w(f'    buffer_load_dwordx4 v{vKd[0]}, {srd(sV)}, s{sKoff} offen offset:{n*1024} lds\n')
    w(lines(kload(1)))
    w(f'    s_add_u32 s{sKoff}, s{sKoff}, 4096\n    s_waitcnt vmcnt(0)\n')
    l = op_QK(0) + op_QK(1) + op_SM(0) + op_SM(1)
    for qt in range(4): l.append(mfma('a', RS(qt), 'a', ONES, 'v', P(0, 0, qt), False))
    w(lines(padded(l)))
    for u in range(4):
        for Tb in range(2):
            for jh in range(2):
                d = VF(0, Tb, 0) + 2*jh
                w(f'    ds_read_b64_tr_b16 {ar(d,2)}, v{vTr} offset:{jh*4096 + u*256 + Tb*8}\n')
        w('    s_waitcnt lgkmcnt(0)\n')
        for Tb in range(2):
            for qt in range(4):
                w('    ' + mfma('v', O(2*u+Tb, qt), 'a', VF(0, Tb, 0), 'v', P(0, 0, qt), False).text + '\n')
        w('    s_nop 7\n')
    w(f'''    s_add_u32 s{sJ}, s{sJ}, 1
    s_cmp_lt_u32 s{sJ}, 16
    s_cbranch_scc1 L_slow_p2
    s_nop 7
''')
    l = op_L()
    for u in range(4):
        l += op_EPI(u)
        if u % 2: l += op_OUT(u // 2)
    for o in l:
        if o.kind == 'wlg': o.text = 's_waitcnt lgkmcnt(0)'
    w(lines(padded(l)))
    w(f'''    s_waitcnt vmcnt(0)
L_slow_next:
    s_add_u32 s{sB}, s{sB}, 1
    s_cmp_lt_u32 s{sB}, 4
    s_cbranch_scc1 L_slow_blk
''')
    return ''.join(T)

main()
```

```python
import re, sys

DSW_COST = 20
VM_COST = 8
ST_COST = 8
PK_LEAD = 20
PK_MIN = 2
VALU_KINDS = ('valu', 'trans', 'perm', 'pk')
NORM_KINDS = ('valu', 'trans', 'perm')
MEM_KINDS = ('ds', 'dma', 'vld', 'vst')
SALU_KINDS = ('salu', 'wlg', 'wvm', 'bar')

def rng(p, a, n):
    return [f'{p}{i}' for i in range(a, a + n)]

class Op:
    __slots__ = ('kind', 'text', 'R', 'W', 'C', 'due', 'earliest', 'targets', 'preds', 'succs', 'idx',
                 'pos', 'cyc', 'name', 'midx', 'extra', 'prev_targets')
    def __init__(self, kind, text, R=(), W=(), C=(), due=None, earliest=None, targets=None, name=None, after=()):
        self.kind = kind; self.text = text
        self.R = list(R); self.W = list(W); self.C = list(C)
        self.due = due; self.earliest = earliest
        self.targets = targets; self.prev_targets = None
        self.preds = {}; self.succs = []
        self.pos = None; self.cyc = None; self.name = name; self.midx = None
        self.extra = list(after)
    def cost(self):
        if self.kind == 'ds' and self.text.startswith('ds_write'): return DSW_COST
        if self.kind == 'dma': return VM_COST
        if self.kind == 'vst': return ST_COST
        return 8 if self.kind in ('trans', 'mfma') else 4

def is_reg(r):
    return re.match(r'^[va]\d+$', r) is not None

def hz_raw(p, c, r):
    if r == 'm0':
        return 1 if c.kind == 'dma' else 0
    if not is_reg(r):
        if p.kind in VALU_KINDS and c.kind in MEM_KINDS: return 5
        if p.kind in VALU_KINDS and c.kind in VALU_KINDS: return 2
        if p.kind in VALU_KINDS: return 1
        return 0
    if p.kind == 'mfma':
        if c.kind == 'mfma':
            return 0 if (r in c.C and set(c.C) == set(p.W)) else 8
        return 8
    if p.kind in VALU_KINDS:
        if c.kind == 'mfma': return 2
        if c.kind == 'perm': return 2
        if p.kind == 'trans' and c.kind != 'trans': return 1
        return 0
    return 0
def hz_waw(p, c, r):
    if is_reg(r) and p.kind == 'mfma' and c.kind != 'mfma': return 8
    return 0
def hz_war(p, c, r):
    if not is_reg(r): return 0
    if p.kind == 'mfma' and r in p.C and c.kind in VALU_KINDS: return 3
    if p.kind == 'vst' and c.kind in VALU_KINDS: return 2
    if p.kind == 'vst': return 1
    return 0

def build_deps(ops):
    lastw = {}; readers = {}
    prev_m = None
    mi = 0
    for i, o in enumerate(ops):
        o.idx = i
        def add(p, d):
            if p is o: return
            o.preds[p] = max(o.preds.get(p, 0), d)
        for r in o.R:
            if r in lastw: add(lastw[r], hz_raw(lastw[r], o, r))
        for r in o.W:
            if r in lastw: add(lastw[r], hz_waw(lastw[r], o, r))
            for p in readers.get(r, []): add(p, hz_war(p, o, r))
        for p in o.extra: add(p, 0)
        if o.targets:
            for p in o.targets: add(p, 0)
        if o.kind == 'mfma':
            if prev_m is not None: add(prev_m, 0)
            prev_m = o; o.midx = mi; mi += 1
        for r in o.R: readers.setdefault(r, []).append(o)
        for r in o.W:
            lastw[r] = o; readers[r] = []
    for o in ops:
        for p in o.preds: p.succs.append(o)
    return mi

def compute_due(ops, nm, ds_lead):
    INF = nm + 1000
    for o in reversed(ops):
        if o.kind == 'mfma':
            o.due = o.midx; continue
        d = INF
        for s in o.succs:
            sd = s.due
            if s.kind == 'wlg' and o.kind == 'ds': sd -= ds_lead
            elif s.kind != 'mfma': sd -= 0.25
            d = min(d, sd)
        if o.due is not None: d = min(d, o.due)
        o.due = d

def schedule(ops, ds_lead=10, ds_lat=160, vm_space=3, pace_end=None, nop_win=1000):
    nm = build_deps(ops)
    compute_due(ops, nm, ds_lead)
    mf = [o for o in ops if o.kind == 'mfma']
    pend = [o for o in ops if o.kind != 'mfma']
    out = []
    st = dict(cyc=0, lastvm=-100, k=-1, lds_out=[])
    def emit(o):
        o.pos = len(out); o.cyc = st['cyc']; out.append(o)
        if o.kind in ('dma', 'vld', 'vst'): st['lastvm'] = st['k']
    def ready(o):
        n = len(out)
        for p, d in o.preds.items():
            if p.pos is None or n - p.pos - 1 < d: return False
        return True
    def allowed(o):
        if o.earliest is not None and st['k'] < o.earliest: return False
        if o.kind in ('dma', 'vld', 'vst') and st['k'] - st['lastvm'] < vm_space and o.due > st['k'] + 1: return False
        return True
    def cands(kinds, force=False):
        c = [o for o in pend if o.kind in kinds and ready(o) and (force or allowed(o))]
        c.sort(key=lambda o: (o.due, o.idx))
        return c
    def take(o):
        pend.remove(o); emit(o)
        if o.kind not in SALU_KINDS: st['fill'] += o.cost()
    def nop():
        o = Op('salu', 's_nop 0'); emit(o); st['cyc'] += 4
    def wait_ok(o):
        if o.kind == 'wlg':
            if o.due <= st['k'] + 1.01: return True
            return st['cyc'] - max([t.cyc for t in o.targets] or [-1000]) >= ds_lat and o.due <= st['k'] + 6
        if o.kind in ('wvm', 'bar'):
            return o.earliest is None or st['k'] >= o.earliest
        return True
    def needed_closure(m):
        seen = set(); stack = [m]
        while stack:
            x = stack.pop()
            for p in x.preds:
                if p.pos is None and p not in seen and p.kind != 'mfma':
                    seen.add(p); stack.append(p)
        return seen
    stats = dict(under=0, over=0, pen=0, nops=0)
    total_fill = sum(o.cost() for o in pend if o.kind not in SALU_KINDS)
    st['fill'] = 0
    pe = pace_end or nm
    def chained(k):
        return k + 1 < nm and mf[k+1].C and set(mf[k+1].C) == set(mf[k].W)
    def fill_gap():
        used = 0; valu_seen = False
        ch = chained(st['k'])
        c = [o for o in cands(SALU_KINDS) if wait_ok(o)]
        free_slot = not c
        if c: take(c[0])
        while used < 8:
            c = cands(NORM_KINDS + (MEM_KINDS if not valu_seen else ()))
            if ch: c = [o for o in c if o.cost() <= 8 or o.due <= st['k'] - 4]
            if used > 0:
                c = [o for o in c if o.cost() + used <= 8]
                nv = [o for o in c if o.kind in VALU_KINDS or o.due <= st['k'] - 3]
                if nv: c = nv
            if not c:
                if any(o.kind in NORM_KINDS and o.due <= st['k'] + nop_win and all(p.pos is not None for p in o.preds) and allowed(o) for o in pend):
                    emit(Op('salu', 's_nop 0')); stats['nops'] += 1
                    if free_slot and used == 0: free_slot = False
                    else:
                        used += 4; st['cyc'] += 4; stats['under'] += 4
                    continue
                break
            o = c[0]
            if used == 0:
                if not ch:
                    big = [x for x in c if x.cost() > 8]
                    if big: o = big[0]
                small = [x for x in c if x.cost() == 4]
                if o.cost() == 4:
                    if len(small) < 2:
                        ex = [x for x in c if x.cost() == 8]
                        if ex and o.due > st['k'] + 2: o = ex[0]
                    else:
                        a, b = small[0], small[1]
                        if a.kind in VALU_KINDS and b.kind in MEM_KINDS: o = b
            take(o); used += o.cost(); st['cyc'] += o.cost()
            if o.kind in VALU_KINDS: valu_seen = True
        if not ch:
            j = st['k'] + 1
            while chained(j): j += 1
            tgt = total_fill * min(1.0, j / pe) - 8 * (j - st['k'] - 1)
            while True:
                pk = cands(('pk',))
                behind = st['fill'] + 2 < tgt
                if used >= PK_LEAD and pk: o = pk[0]
                else:
                    c = cands(NORM_KINDS)
                    want = len(pk) >= PK_MIN and used < PK_LEAD and sum(x.cost() for x in c) >= PK_LEAD - used + 8 * (j - st['k'] - 1)
                    if not c or not (behind or want): break
                    o = c[0]
                take(o); used += o.cost(); st['cyc'] += o.cost(); valu_seen = True
        return used, valu_seen
    used, valu_seen = 0, True
    gapstart = 0
    for k, m in enumerate(mf + [None]):
        while True:
            if m is None:
                if not pend: break
                need = set(pend)
            else:
                if ready(m): break
                need = needed_closure(m)
            c = [o for o in cands(VALU_KINDS + MEM_KINDS + SALU_KINDS, force=True) if o in need]
            if c:
                o = c[0]
                if o.kind == 'wlg' and st['cyc'] - max([t.cyc for t in o.targets] or [-1000]) < ds_lat:
                    alt = [x for x in c if x.kind != 'wlg'] or cands(VALU_KINDS)
                    if alt: o = alt[0]
            else:
                c2 = cands(VALU_KINDS) or [x for x in cands(SALU_KINDS) if wait_ok(x) and x.kind == 'salu']
                if c2: o = c2[0]
                else:
                    nop(); used += 4; stats['nops'] += 1; continue
            if o.kind == 'pk' and used < PK_LEAD and k > 0:
                alt = cands(NORM_KINDS)
                if alt: o = alt[0]
                else:
                    st['cyc'] += PK_LEAD - used; stats['under'] += PK_LEAD - used; used = PK_LEAD
            if o.kind in MEM_KINDS and valu_seen:
                st['cyc'] += 8; used += 8; stats['pen'] += 1
            take(o); used += o.cost(); st['cyc'] += o.cost()
            valu_seen = o.kind in VALU_KINDS or (valu_seen and o.kind not in MEM_KINDS)
        if k > 0:
            if used < 8:
                stats['under'] += 8 - used; st['cyc'] += 8 - used
            else: stats['over'] += used - 8
        if m is None: break
        st['k'] = k
        emit(m); st['cyc'] += 8
        used, valu_seen = fill_gap()
    stats['cycles'] = st['cyc']; stats['ninst'] = len(out)
    return out, stats

def check_hazards(seq):
    lastw = {}; readers = {}
    bad = 0
    for n, o in enumerate(seq):
        def chk(pn, p, d, what, r):
            nonlocal bad
            if n - pn - 1 < d:
                print(f'HAZARD {what} {r}: [{pn}] {p.text} -> [{n}] {o.text} need {d}', file=sys.stderr); bad += 1
        for r in o.R:
            if r in lastw: chk(*lastw[r], hz_raw(lastw[r][1], o, r), 'RAW', r)
        for r in o.W:
            if r in lastw: chk(*lastw[r], hz_waw(lastw[r][1], o, r), 'WAW', r)
            for pn, p in readers.get(r, []):
                if p is not o: chk(pn, p, hz_war(p, o, r), 'WAR', r)
        for r in o.R: readers.setdefault(r, []).append((n, o))
        for r in o.W:
            lastw[r] = (n, o); readers[r] = []
    return bad
```

```python
import sys, struct, math
import sched
from sched import *

OPT = dict(store_flags='nt', ds_lead=8, ds_lat=120, vm_space=3, debug=0, force_slow=0, q_flags='nt', kv_flags='',
           ds_sp=3, vshift=0, st_lo=10, st_hi=900, last_flags='nt', epi_len=20, warm=1, abl='', bou=1, pk=0, vmc=4, stc=4, vm_due=4, pkf=1, pkd=4, vm_sp=0, updin=1, fo=0, finq=1, fin_len=18, fin_st=4)
for a in sys.argv[2:]:
    k, v = a.split('=')
    OPT[k] = int(v) if v.lstrip('-').isdigit() else v.replace('+', ' ')

sched.VM_COST = OPT['vmc']; sched.ST_COST = OPT['stc']
NAME = 'standalone__gqa_softmax__near_ridge_kernel'
def f32(x): return struct.unpack('<I', struct.pack('<f', x))[0]
CSCALE = math.log2(math.e) / math.sqrt(128.0)
QBYTES = 16*32*496*128*2
KBYTES = 16*16*512*128*2
PAIRQ = 992*256
PAIRK = 512*256

vKa, vVa, vOlo, vOhi = 1, 2, 3, 4
vKd = [5, 6, 7, 8]
vQa = 9
vNM = [10, 11, 12, 13]
vRL = [14, 15, 16, 17]
vBias = 18
vRd = 19
vT = [20, 21, 22, 23]
vWr = [24, 25]
def S(buf, qt): return 32 + 16*buf + 4*qt
def P(par, h, qt): return 64 + 32*par + 16*h + 4*qt
def O(T, qt): return 128 + 16*T + 4*qt
def Q(qt, ks): return 16*qt + 4*ks
def QN(qt, ks): return 64 + 16*qt + 4*ks
def KF(buf, ks): return 128 + 16*buf + 4*ks
def VF(buf, Tb, h): return 160 + 16*buf + 8*Tb + 4*h
def RS(qt): return 192 + 4*qt
ONES = 208
def OST(R, n): return (96 if R == 0 else 212) + 4*n
sQ, sK, sV, sO, sKn, sVn, sQB = 4, 8, 12, 16, 20, 24, 68
sKV, sKVn = 28, 29
sQn = [30, 31, 64, 65]
sOo = [32, 33]
sC, sNC, sThr, sB, sFlag, sW4k = 34, 35, 36, 37, 38, 39
sTK, sTV = 40, 41
sCmp = [48, 50, 52, 54]
sOP = 72
sOp = [76, 77]
sPA = 66
VBASE = 65536

def vr(a, n): return f'v[{a}:{a+n-1}]'
def ar(a, n): return f'a[{a}:{a+n-1}]'
def srd(a): return f's[{a}:{a+3}]'

def mfma(dp, d, ap, a, bp, b, zero):
    c = '0' if zero else f'{dp}[{d}:{d+3}]'
    D = rng(dp, d, 4)
    return Op('mfma', f'v_mfma_f32_16x16x32_bf16 {dp}[{d}:{d+3}], {ap}[{a}:{a+3}], {bp}[{b}:{b+3}], {c}',
              R=rng(ap, a, 4) + rng(bp, b, 4) + ([] if zero else D), W=D, C=([] if zero else D))
def valu(text, R, W, kind='valu', **kw): return Op(kind, text, R=R, W=W, **kw)

def op_RK(a):
    tile, kt = divmod(a, 4)
    slot = tile % 4
    l = []
    for ks in range(4):
        d = KF(a % 2, ks)
        l.append(Op('ds', f'ds_read_b128 {ar(d,4)}, v{vKa} offset:{slot*16384 + kt*4096 + ks*256}',
                    R=[f'v{vKa}', f'Krdy{tile}'], W=rng('a', d, 4), name=('RK', a % 32, ks)))
    return l
def op_RV(b):
    tile, u = divmod(b, 4)
    slot = tile % 4
    l = []
    for Tb in range(2):
        for h in range(2):
            for jh in range(2):
                d = VF(b % 2, Tb, h) + 2*jh
                off = slot*16384 + h*8192 + jh*4096 + u*256 + Tb*8
                l.append(Op('ds', f'ds_read_b64_tr_b16 {ar(d,2)}, v{vVa} offset:{off}',
                            R=[f'v{vVa}', f'Vrdy{tile}'], W=rng('a', d, 2), name=('RV', b % 32, Tb, h, jh)))
    return l
def op_QK(a):
    l = []
    for qt in range(4):
        for i in range(4):
            ks = 3 - i if (OPT['bou'] and qt % 2) else i
            l.append(mfma('v', S(a % 2, qt), 'a', KF(a % 2, ks), 'a', Q(qt, ks), i == 0))
    return l
def op_PV(b):
    t, u = divmod(b, 4)
    l = []
    for Tb in range(2):
        for qt in range(4):
            for i in range(2):
                h = 1 - i if (OPT['bou'] and qt % 2) else i
                l.append(mfma('v', O(2*u+Tb, qt), 'a', VF(b % 2, Tb, h), 'v', P(t % 2, h, qt), t == 0 and i == 0))
    return l
def op_RS(t, qt):
    return [mfma('a', RS(qt), 'a', ONES, 'v', P(t % 2, h, qt), t == 0 and h == 0) for h in range(2)]
def pksel(r):
    return (r & ~1, r & 1)
def op_SM(a, pk=False):
    t, kt = divmod(a, 4)
    l = []
    for qt in range(4):
        s = S(a % 2, qt)
        for r in range(4):
            if 'fma' in OPT['abl']: continue
            if pk:
                if r % 2 == 0:
                    b, e = pksel(vNM[qt])
                    l.append(valu(f'v_pk_fma_f32 {vr(s+r,2)}, {vr(s+r,2)}, s[{sC}:{sC+1}], {vr(b,2)} op_sel:[0,0,{e}] op_sel_hi:[1,0,{e}]',
                                  rng('v', s+r, 2) + [f'v{vNM[qt]}'], rng('v', s+r, 2), kind='pk'))
                continue
            l.append(valu(f'v_fma_f32 v{s+r}, v{s+r}, s{sC}, v{vNM[qt]}', [f'v{s+r}', f'v{vNM[qt]}'], [f'v{s+r}']))
        for r in range(4):
            if 'exp' in OPT['abl']: continue
            l.append(valu(f'v_exp_f32 v{s+r}, v{s+r}', [f'v{s+r}'], [f'v{s+r}'], kind='trans'))
        p = P(t % 2, kt // 2, qt) + 2*(kt % 2)
        for i in range(2):
            l.append(valu(f'v_cvt_pk_bf16_f32 v{p+i}, v{s+2*i}, v{s+2*i+1}', [f'v{s+2*i}', f'v{s+2*i+1}'], [f'v{p+i}']))
    return l
def perm(n, a, b): return valu(f'v_permlane{n}_swap_b32 v{a}, v{b}', [f'v{a}', f'v{b}'], [f'v{a}', f'v{b}'], kind='perm')
def op_reduce():
    t = vT; n = vNM
    mx = lambda d, a, b: valu(f'v_max_f32 v{d}, v{a}, v{b}', [f'v{a}', f'v{b}'], [f'v{d}'])
    mv = lambda d, a: valu(f'v_mov_b32 v{d}, v{a}', [f'v{a}'], [f'v{d}'])
    return [perm(16, t[0], t[1]), perm(16, t[2], t[3]), mx(t[0], t[0], t[1]), mx(t[2], t[2], t[3]),
            perm(32, t[0], t[2]), mx(t[0], t[0], t[2]),
            valu(f'v_fma_f32 v{n[0]}, v{t[0]}, s{sNC}, v{vBias}', [f'v{t[0]}', f'v{vBias}'], [f'v{n[0]}']),
            mv(n[2], n[0]), perm(32, n[0], n[2]), mv(n[1], n[0]), mv(n[3], n[2]),
            perm(16, n[0], n[1]), perm(16, n[2], n[3])]
def op_MAX():
    l = []
    for qt in range(4):
        s = S(0, qt)
        l.append(valu(f'v_max3_f32 v{vT[qt]}, v{s}, v{s+1}, v{s+2}', rng('v', s, 3), [f'v{vT[qt]}']))
        l.append(valu(f'v_max_f32 v{vT[qt]}, v{vT[qt]}, v{s+3}', [f'v{vT[qt]}', f'v{s+3}'], [f'v{vT[qt]}']))
    return l + op_reduce()
def op_DMA(which, tile, bar):
    slot = tile % 4
    nxt = tile >= 8
    base = sKVn if nxt else sKV
    st = sTK if which == 'K' else sTV
    d = (sKn if nxt else sK) if which == 'K' else (sVn if nxt else sV)
    l = [Op('salu', f's_add_u32 s{st}, s{base}, {(tile % 8)*16384}', R=[f's{base}'], W=[f's{st}', 'scc']),
         Op('salu', f's_add_u32 m0, s{sW4k}, {slot*16384 + (VBASE if which == "V" else 0)}', R=[], W=['m0', 'scc'])]
    for n in range(4):
        va = vKd[n] if which == 'K' else vKd[0]
        l.append(Op('dma', f'buffer_load_dwordx4 v{va}, {srd(d)}, s{st} offen offset:{n*1024} {OPT["kv_flags"]} lds',
                    R=[f'v{va}', f's{st}', 'm0', 'srdn'] + ([bar] if bar else []), W=[], name=(which, tile % 8, n)))
    return l
def op_QD(qt, m0txt, dep=None):
    l = [Op('salu', m0txt, R=[], W=['m0', 'scc'])]
    for n in range(4):
        l.append(Op('dma', f'buffer_load_dwordx4 v{vKd[n]}, {srd(sQ if qt < 2 else sQB)}, s{sQn[qt]} offen offset:{n*1024} {OPT["q_flags"]} lds',
                    R=[f'v{vKd[n]}', f's{sQn[qt]}', 'm0'] + ([dep] if dep else []), W=[], name=('Q', qt, n)))
    return l
def op_QR(qt, dst, va, off, dep):
    return [Op('ds', f'ds_read_b128 {ar(dst(qt,ks),4)}, v{va} offset:{off + ks*256}',
               R=[f'v{va}', dep, 'PA'], W=rng('a', dst(qt, ks), 4), name=('QR', qt, ks)) for ks in range(4)]
def op_L():
    l = []
    for qt in range(4):
        r = vRL[qt]
        l.append(valu(f'v_accvgpr_read_b32 v{r}, a{RS(qt)}', [f'a{RS(qt)}'], [f'v{r}']))
        l.append(valu(f'v_cmp_nge_f32 s[{sCmp[qt]}:{sCmp[qt]+1}], s{sThr}, v{r}', [f'v{r}'], [f's{sCmp[qt]}']))
        l.append(valu(f'v_rcp_f32 v{r}, v{r}', [f'v{r}'], [f'v{r}'], kind='trans'))
    return l
def op_EPI(u, pk=False):
    l = []
    for qt in range(4):
        a, b = O(2*u, qt), O(2*u+1, qt)
        for x in list(range(a, a+4)) + list(range(b, b+4)):
            if pk:
                if x % 2 == 0:
                    rb, e = pksel(vRL[qt])
                    l.append(valu(f'v_pk_mul_f32 {vr(x,2)}, {vr(x,2)}, {vr(rb,2)} op_sel:[0,{e}] op_sel_hi:[1,{e}]',
                                  rng('v', x, 2) + [f'v{vRL[qt]}'], rng('v', x, 2), kind='pk'))
                continue
            l.append(valu(f'v_mul_f32 v{x}, v{x}, v{vRL[qt]}', [f'v{x}', f'v{vRL[qt]}'], [f'v{x}']))
        for i, x in enumerate([a, a+2, b, b+2]):
            l.append(valu(f'v_cvt_pk_bf16_f32 v{a+i}, v{x}, v{x+1}', [f'v{x}', f'v{x+1}'], [f'v{a+i}']))
        l.append(Op('ds', f'ds_write_b128 v{vWr[u%2]}, {vr(a,4)} offset:{qt*2048}',
                    R=rng('v', a, 4) + [f'v{vWr[u%2]}', 'PAw'], W=[f'PA{qt}_{u%2}'], name=('OW', u, qt)))
    return l
def op_OR(R, half):
    return [Op('ds', f'ds_read_b128 {ar(OST(R,n),4)}, v{vRd} offset:{n*1024}',
               R=[f'v{vRd}', f'PA{n//2}_0', f'PA{n//2}_1'], W=rng('a', OST(R, n), 4), name=('OR', R, n)) for n in range(4*half, 4*half+4)]
def op_ST(R, half, dep, prev):
    l = []
    for n in range(4*half, 4*half+4):
        va = vOlo if n < 4 else vOhi
        so = (sOp if prev else sOo)[(n//2) % 2]
        l.append(Op('vst', f'buffer_store_dwordx4 {ar(OST(R,n),4)}, v{va}, {srd(sOP if prev else sO)}, s{so} offen offset:{(n%2)*2048 + R*128} {OPT["store_flags" if prev else "last_flags"]}'.rstrip(),
                    R=rng('a', OST(R, n), 4) + [f'v{va}', f's{so}', dep], W=[], name=('O', R, n)))
    return l
def op_OUT(R):
    l = []
    for half in range(2):
        rd = op_OR(R, half)
        l += rd + [wlg(rd, f'wO{R}_{half}')] + op_ST(R, half, f'wO{R}_{half}', False)
    return l
def wlg(targets, tag, prev=None):
    o = Op('wlg', None, W=[tag], targets=targets)
    o.prev_targets = [t.name for t in targets] if prev is None else prev
    return o
def wvm(names, tag, byname):
    o = Op('wvm', None, W=[tag], targets=[byname[x] for x in names if x in byname])
    o.prev_targets = names
    return o

def op_UPD():
    sa = lambda t, R, W: Op('salu', t, R=R, W=W)
    c = [f's{x}' for x in sCmp]
    p = lambda x: f's[{x}:{x+1}]'
    l = [sa(f's_or_b64 {p(sCmp[0])}, {p(sCmp[0])}, {p(sCmp[1])}', [c[0], c[1]], [c[0], 'scc']),
         sa(f's_or_b64 {p(sCmp[2])}, {p(sCmp[2])}, {p(sCmp[3])}', [c[2], c[3]], [c[2], 'scc']),
         sa(f's_or_b64 {p(sCmp[0])}, {p(sCmp[0])}, {p(sCmp[2])}', [c[0], c[2]], [c[0], 'scc']),
         sa('s_cselect_b32 s42, 1, 0', ['scc'], ['s42']),
         sa(f's_lshl_b32 s42, s42, s{sB}', ['s42', f's{sB}'], ['s42', 'scc']),
         sa(f's_or_b32 s{sFlag}, s{sFlag}, s42', ['s42'], [f's{sFlag}', 'scc']),
         sa(f's_mov_b64 {p(sOp[0])}, {p(sOo[0])}', [f's{sOo[0]}'], [f's{sOp[0]}']),
         sa(f's_mov_b64 {p(sOo[0])}, {p(sQn[0])}', [f's{sQn[0]}', f's{sQn[1]}'], [f's{sOo[0]}']),
         sa(f's_mov_b32 s{sKV}, s{sKVn}', [f's{sKVn}'], [f's{sKV}']),
         sa(f's_add_u32 s{sB}, s{sB}, 1', [f's{sB}'], [f's{sB}', 'scc']),
         sa(f's_cselect_b32 s{sOP+2}, 0, {QBYTES}', ['scc'], [f's{sOP+2}']),
         sa(f's_cmp_lt_u32 s{sB}, 3', [f's{sB}'], ['scc']),
         sa(f's_cselect_b32 s42, {8*PAIRQ}, 0', ['scc'], ['s42']),
         sa(f's_cselect_b32 s45, {8*PAIRK}, 0', ['scc'], ['s45']),
         sa(f's_cselect_b32 s{sQ+2}, s{sQ+2}, 0', ['scc'], [f's{sQ+2}']),
         sa(f's_cselect_b32 s{sQB+2}, s{sQB+2}, 0', ['scc'], [f's{sQB+2}']),
         sa(f's_cselect_b32 s{sKn+2}, s{sKn+2}, 0', ['scc'], ['srdn']),
         sa(f's_cselect_b32 s{sVn+2}, s{sVn+2}, 0', ['scc'], ['srdn'])]
    l += [sa(f's_add_u32 s{x}, s{x}, s42', ['s42', f's{x}'], [f's{x}', 'scc']) for x in sQn]
    l += [sa(f's_add_u32 s{sKVn}, s{sKVn}, s45', ['s45', f's{sKVn}'], [f's{sKVn}', 'scc'])]
    return l

class Seg:
    def __init__(self):
        self.ops = []; self.nm = 0; self.byname = {}
    def add(self, l, need=None):
        for i, o in enumerate(l):
            if need and i == 0: o.R += need if isinstance(need, list) else [need]
            if o.kind == 'mfma': self.nm += 1
            if o.kind in ('dma', 'vld', 'vst'): self.byname[o.name] = o
            self.ops.append(o)
        return l
    def reads(self, l, tag, at):
        n = len(l)
        for i, o in enumerate(l):
            o.due = at - OPT['ds_lead'] - (n - 1 - i) * OPT['ds_sp']
            o.earliest = o.due - 2
        self.add(l)
        if tag: self.add([wlg(l, tag)])
    def spread(self, l, lo, hi, sp=None):
        mem = [o for o in l if o.kind in MEM_KINDS]
        for i, o in enumerate(mem):
            pos = lo + min(sp or OPT['vm_sp'] or 1000, (hi - lo) / len(mem)) * (i + 0.5)
            o.earliest = int(pos) - 2; o.due = pos + OPT['vm_due']
        for i, o in enumerate(l):
            if o.kind == 'salu':
                nx = next(x for x in l[i:] if x.kind in MEM_KINDS)
                o.earliest = nx.earliest - 6
        self.add(l)
    def barrier(self, nn, pos, waits):
        names = [('K', (nn+1) % 8, i) for i in range(4)] + [('V', nn % 8, i) for i in range(4)]
        wv = wvm(names, f'wvm{nn}', self.byname); wv.earliest = pos - 3
        bo = Op('bar', 's_barrier', R=[f'wvm{nn}'] + waits, W=[f'bar{nn}', f'Krdy{nn+1}', f'Vrdy{nn}'])
        bo.earliest = pos - 1; bo.due = pos + 1
        self.add([wv, bo])

def seg_A():
    g = Seg()
    start = {s: (s - 4) * 34 for s in range(4, 33)}
    barpos = {nn: start[4*nn+3] + 16 for nn in range(1, 8)}
    barpos[0] = -2
    def interval(nn, extra):
        bar = f'bar{nn}' if nn >= 1 else None
        l = op_DMA('K', nn + 4, bar) + op_DMA('V', nn + 3, bar) + extra
        g.spread(l, barpos[nn] + 2, barpos[nn+1] - 6)
    qm0 = lambda j: f's_add_u32 m0, s{sPA}, {4096*j}'
    extras = {0: op_QD(0, qm0(0), 'wK4'), 1: op_QD(1, qm0(1), 'wK4'), 4: op_QD(2, qm0(0), 'wQA'), 5: op_QD(3, qm0(1), 'wQA')}
    w = wlg([], 'wK4', prev=[('RK', 4, ks) for ks in range(4)] + [('OR', R, n) for R in range(2) for n in range(8)]); w.due = -1
    g.add([w])
    sts = sum([op_ST(R, hf, 'wK4', True) for hf in range(2) for R in range(2)], [])
    sts.sort(key=lambda o: (o.name[2], o.name[1]))
    g.spread(sts, OPT['st_lo'], OPT['st_hi'], 1000)
    interval(0, extras[0])
    for s in range(4, 32):
        if s > 4: g.reads(op_RK(s), f'wK{s}', start[s])
        g.add(op_QK(s), f'wK{s}')
        g.add(op_SM(s - 1))
        b = s - 4
        g.reads(op_RV(b), f'wV{b}', start[s] + 16)
        if s % 4 == 3: g.barrier(s // 4, barpos[s // 4], [f'wK{s}', f'wV{b}'])
        g.add(op_PV(b), f'wV{b}')
        g.add(op_RS(b // 4, b % 4))
        if s == 17:
            wq = wvm([('Q', qt, n) for qt in range(2) for n in range(4)], 'vQA', g.byname); wq.earliest = start[17]
            g.add([wq])
            g.reads(op_QR(0, QN, vQa, 0, 'vQA') + op_QR(1, QN, vQa, 4096, 'vQA'), 'wQA', barpos[4] + 8)
        if s % 4 == 3 and s // 4 <= 6: interval(s // 4, extras.get(s // 4, []))
    g.reads(op_RV(28), None, start[32] + 12)
    return g.ops

def seg_tail(drain, fill):
    g = Seg()
    pos = {}; n = 0
    order = []
    if drain: order += [('RS', 0), ('PV', 28), ('PV', 29)]
    for i in range(4):
        if fill: order.append(('QK', 32 + i))
        if drain and i < 2: order.append(('PV', 30 + i))
    for k in order:
        pos[k] = n; n += 8 if k[0] == 'RS' else 16
    total = n
    if drain:
        g.add(op_SM(31, OPT['pk'] & 2 and fill))
        w = wlg([], 'wV28', prev=[o.name for o in op_RV(28)]); g.add([w])
    if drain and fill:
        wq = wvm([('Q', qt, n) for qt in range(2, 4) for n in range(4)], 'vQB', g.byname); wq.due = -5
        g.add([wq])
        g.reads(op_QR(2, Q, vQa, 0, 'vQB') + op_QR(3, Q, vQa, 4096, 'vQB'), 'wQB', pos[('QK', 32)] + 8)
        for o in g.ops:
            if o.kind == 'ds': o.earliest = None; o.R.remove('PA'); o.R += [f'PA{q}_{p}' for q in range(4) for p in range(2)]
        for i in range(32):
            g.add([valu(f'v_accvgpr_mov_b32 a{i}, a{64+i}', [f'a{64+i}'], [f'a{i}'])])
    if drain and not fill:
        wq = wvm([('Q', qt, n) for qt in range(2, 4) for n in range(4)], 'PAw', g.byname); wq.earliest = 8
        g.add([wq])
    if fill:
        barp = pos[('QK', 35)] + 1
        first = [] if drain else op_DMA('K', 10, None) + op_DMA('V', 9, None)
        g.spread(first + op_DMA('K', 11, None) + op_DMA('V', 10, None), 2, (barp - 6) if drain else total - 2)
    for k in order:
        if k[0] == 'RS':
            for qt in range(4): g.add(op_RS(7, qt))
            g.add(op_L())
        elif k[0] == 'PV':
            b = k[1]
            if b > 28: g.reads(op_RV(b), f'wV{b}', pos[k])
            g.add(op_PV(b), f'wV{b}')
            ep = op_EPI(b - 28, OPT['pk'] & 1 and (fill or b - 28 >= OPT['pkd']))
            for i, o in enumerate(ep): o.due = pos[k] + 16 + 4 + OPT['epi_len'] * i / len(ep)
            g.add(ep)
            if b % 2 == 1:
                R = (b - 28) // 2
                out = op_OUT(R) if not fill else op_OR(R, 0) + op_OR(R, 1)
                for i, o in enumerate(out): o.due = pos[k] + 16 + 4 + OPT['epi_len'] * (0.5 + 0.5 * i / len(out)) + (6 if o.kind != 'ds' else 0)
                g.add(out)
        else:
            a = k[1]
            if a == 32 and not drain:
                pass
            else: g.reads(op_RK(a), f'wK{a}', pos[k])
            qk = op_QK(a)
            if a == 32 and drain: qk[8].R.append('wQB')
            if a == 35: g.barrier(8, barp, [f'wK{a}'] + (['wV31'] if drain else []))
            g.add(qk, f'wK{a}' if (a > 32 or drain) else None)
            if a == 32: g.add(op_MAX())
            if a > 32: g.add(op_SM(a - 33, OPT['pk'] & 2 and (drain or a - 33 >= OPT['pkf'])))
    if fill:
        g.reads(op_RK(36), None, total + 4)
        if OPT['updin']: g.add(op_UPD())
    return g.ops

def seg_final():
    g = Seg()
    VFq = lambda u, Tb, h: [160, 176, 128, 144][u] + 8*Tb + 4*h
    x0 = P(0, 0, 0)
    vL, vI, vG, vW0, vW1, vS0, vS1, vX = [x0 + i for i in range(8)]
    va = lambda t, R, W: valu(t, [f'v{r}' for r in R], [f'v{W}'])
    adr = [va(f'v_and_b32 v{vI}, 15, v0', [], vI), va(f'v_bfe_u32 v{vG}, v0, 4, 2', [], vG),
           va(f'v_and_b32 v{vX}, 7, v0', [], vX), va(f'v_xor_b32 v{vX}, v{vX}, v{vG}', [vX, vG], vX),
           va(f'v_lshlrev_b32 v{vX}, 4, v{vX}', [vX], vX), va(f'v_lshl_add_u32 v{vX}, v{vI}, 8, v{vX}', [vX, vI], vX),
           va(f'v_add_u32 v{vW0}, s{sPA}, v{vX}', [vX], vW0), va(f'v_xor_b32 v{vW1}, 64, v{vW0}', [vW0], vW1),
           va(f'v_xor_b32 v{vL}, v{vI}, v{vG}', [vI, vG], vL), va(f'v_lshlrev_b32 v{vL}, 4, v{vL}', [vL], vL),
           va(f'v_lshl_add_u32 v{vS0}, v{vG}, 8, v{vL}', [vG, vL], vS0), va(f'v_xor_b32 v{vS1}, 64, v{vS0}', [vS0], vS1)]
    sm = op_SM(31)
    g.add([wlg([], 'wV0', prev=[o.name for o in op_RV(28)])])
    wq = wvm([('Q', qt, n) for qt in range(2, 4) for n in range(4)], 'PAw', g.byname); wq.earliest = 4
    g.add([wq])
    for u in range(1, 4):
        rv = op_RV(28 + u)
        for o, (Tb, h, jh) in zip(rv, [(a, b, c) for a in range(2) for b in range(2) for c in range(2)]):
            d = VFq(u, Tb, h) + 2*jh
            o.text = f'ds_read_b64_tr_b16 {ar(d,2)},' + o.text.split(',', 1)[1]; o.W = rng('a', d, 2)
            o.due = -20 + u
        g.add(rv); g.add([wlg(rv, f'wV{u}')])
    for i, o in enumerate(adr): o.due = 10
    g.add(adr)
    Lops = op_L()
    for qt in range(4):
        base = 18 * qt
        g.add(sm[10*qt:10*qt+10])
        g.add(op_RS(7, qt))
        g.add(Lops[3*qt:3*qt+3])
        for u in range(4):
            for Tb in range(2):
                for h in range(2):
                    m = mfma('v', O(2*u+Tb, qt), 'a', VFq(u, Tb, h), 'v', P(1, h, qt), False)
                    if qt == 0 and Tb == 0 and h == 0: m.R.append(f'wV{u}')
                    g.add([m])
        ep = []
        for u in range(4):
            a, b = O(2*u, qt), O(2*u+1, qt)
            for x in list(range(a, a+4)) + list(range(b, b+4)):
                ep.append(valu(f'v_mul_f32 v{x}, v{x}, v{vRL[qt]}', [f'v{x}', f'v{vRL[qt]}'], [f'v{x}']))
            for i, x in enumerate([a, a+2, b, b+2]):
                ep.append(valu(f'v_cvt_pk_bf16_f32 v{a+i}, v{x}, v{x+1}', [f'v{x}', f'v{x+1}'], [f'v{a+i}']))
            w_ = [vW0, vW1][u % 2]
            ep.append(Op('ds', f'ds_write_b128 v{w_}, {vr(a,4)} offset:{(qt%2)*4096 + (u//2)*128}',
                         R=rng('v', a, 4) + [f'v{w_}', 'PAw'], W=[f'PB{qt%2}_{u}'], name=('OW', u, qt)))
        st = lambda n: OST(qt // 2, 4*(qt % 2) + n)
        rd = [Op('ds', f'ds_read_b128 {ar(st(n),4)}, v{vRd} offset:{(qt%2)*4096 + n*1024}',
                 R=[f'v{vRd}'] + [f'PB{qt%2}_{u}' for u in range(4)], W=rng('a', st(n), 4), name=('OR', qt, n)) for n in range(4)]
        ep += rd + [wlg(rd, f'wO{qt}')]
        if qt == 2:
            ep += [va(f'v_add_u32 v{x}, s46, v{x}', [x], x) for x in (vS0, vS1)]
        for n in range(4):
            s_ = [vS0, vS1][n % 2]
            ep.append(Op('vst', f'buffer_store_dwordx4 {ar(st(n),4)}, v{s_}, {srd(sO)}, s{sOo[qt%2]} offen offset:{n*1024} {OPT["last_flags"]}'.rstrip(),
                         R=rng('a', st(n), 4) + [f'v{s_}', f'wO{qt}'], W=[], name=('O', qt, n)))
        for i, o in enumerate(ep):
            o.due = base + 8 + OPT['fin_len'] * i / len(ep) + (OPT['fin_st'] * (1 + o.name[2]) if o.kind == 'vst' else 0)
            if o.kind == 'vst': o.earliest = o.due - 1
            if o.kind == 'wlg': o.due = None
        g.add(ep)
    return g.ops

def seg_first(qt, qr, dmas):
    g = Seg()
    g.add(qr); g.add([wlg(qr, 'wq')])
    tmp = lambda kt: S(1, qt) if kt == 3 else [S(0, qt), P(1, 0, qt), P(1, 1, qt)][kt]
    for kt in range(4):
        g.add([mfma('v', tmp(kt), 'a', 128 + 16*kt + 4*ks, 'a', Q(qt, ks), ks == 0) for ks in range(4)], 'wq' if kt == 0 else None)
    s = tmp(0); t, u, n = vT[0], vT[1], vNM[qt]
    mx = lambda d, a, b: valu(f'v_max_f32 v{d}, v{a}, v{b}', [f'v{a}', f'v{b}'], [f'v{d}'])
    mv = lambda d, a: valu(f'v_mov_b32 v{d}, v{a}', [f'v{a}'], [f'v{d}'])
    g.add([valu(f'v_max3_f32 v{t}, v{s}, v{s+1}, v{s+2}', rng('v', s, 3), [f'v{t}']), mx(t, t, s+3),
           mv(u, t), perm(16, t, u), mx(t, t, u), mv(u, t), perm(32, t, u), mx(t, t, u),
           valu(f'v_mul_f32 v{n}, s{sNC}, v{t}', [f'v{t}'], [f'v{n}'])])
    if qt >= 2: g.add([valu(f'v_add_f32 v{n}, s47, v{n}', [f'v{n}'], [f'v{n}'])])
    for kt in range(3):
        s = tmp(kt)
        for r in range(4): g.add([valu(f'v_fma_f32 v{s+r}, v{s+r}, s{sC}, v{n}', [f'v{s+r}', f'v{n}'], [f'v{s+r}'])])
        for r in range(4): g.add([valu(f'v_exp_f32 v{s+r}, v{s+r}', [f'v{s+r}'], [f'v{s+r}'], kind='trans')])
        p = P(0, kt // 2, qt) + 2*(kt % 2)
        for i in range(2): g.add([valu(f'v_cvt_pk_bf16_f32 v{p+i}, v{s+2*i}, v{s+2*i+1}', [f'v{s+2*i}', f'v{s+2*i+1}'], [f'v{p+i}'])])
    if dmas: g.spread(dmas, 0, 8)
    return g.ops

def resolve_waits(seqs):
    res = {}
    for kind, kinds, fmt, mx in (('wvm', ('dma', 'vld', 'vst'), 'vmcnt', 63), ('wlg', ('ds',), 'lgkmcnt', 15)):
        hist = []
        for si, sq in enumerate(seqs):
            for o in sq:
                if o.kind in kinds: hist.append(o.name)
                elif o.kind == kind:
                    last = max(len(hist) - 1 - hist[::-1].index(x) for x in o.prev_targets if x in hist)
                    res.setdefault(o, []).append(len(hist) - 1 - last)
        for o, l in res.items():
            if o.kind == kind: o.text = f's_waitcnt {fmt}({min(min(l), mx)})'
    return res

def lines(ops): return ''.join('    ' + o.text + '\n' for o in ops)
def padded(ops):
    build_deps(ops)
    out = []
    for o in ops:
        need = 0
        for p, d in o.preds.items():
            need = max(need, d - (len(out) - p.pos - 1))
        for _ in range(need): out.append(Op('salu', 's_nop 0'))
        o.pos = len(out); out.append(o)
    return out

def dbg_lines(ops, first):
    txt = ''; n = first
    for o in ops:
        txt += '    ' + o.text + '\n'
        if o.kind == 'bar':
            txt += f'    s_memtime s[{78+2*n}:{79+2*n}]\n'; n += 1
    return txt, n
DUMP = '    s_memtime s[96:97]\n    s_waitcnt lgkmcnt(0)\n' + ''.join(
    f'    v_writelane_b32 v28, s{78+2*i}, {i}\n' for i in range(11)) + \
    '    s_mov_b64 exec, 0xffff\n    buffer_store_dword v28, v29, s[60:63], s59 offen\n    s_mov_b64 exec, -1\n    s_add_u32 s59, s59, 64\n'

def main():
    segs = {}
    for nme, ops in (('A', seg_A()), ('B', seg_tail(True, True)), ('D', seg_final() if OPT['finq'] else seg_tail(True, False))):
        segs[nme], stats = schedule(ops, OPT['ds_lead'], OPT['ds_lat'], OPT['vm_space'])
        print(nme, stats, file=sys.stderr)
    A = []
    w = A.append
    WARM1 = '''    s_getpc_b64 s[94:95]
L_pc:
    s_bfe_u32 s64, s2, 0x20003            ; (wg >> 3) & 3
    s_lshl_b32 s64, s64, 13
    v_lshlrev_b32 v28, 7, v0
    v_cmp_lt_u32 vcc, 63, v0
    v_mov_b32 v29, s64
    s_nop 0
    v_cndmask_b32 v29, 0, v29, vcc
    v_add_u32 v28, v28, v29
    v_min_u32 v28, L_end-L_pc, v28
    v_cmp_gt_u32 vcc, 128, v0
    s_and_saveexec_b64 s[64:65], vcc
    s_cbranch_execz L_w1
    global_load_dword a255, v28, s[94:95]
L_w1:
    s_mov_b64 exec, -1
''' if OPT['warm'] else ''
    w(f'''; GQA attention forward, B=16 Hq=32 Hkv=16 Sq=496 Sk=512 D=128, bf16.  Generated by gen/gen.py (own generator).
; 256 persistent workgroups x 4 waves; each wave 64 q rows; K/V tiles streamed through an LDS ring by LDS-DMA.
; Softmax reference point: max over the row's first 16 keys; a run-time check on the row sum redoes the rows
; @launch grid=(256,1,1) block=(256,1,1) lds=163840
.amdgcn_target "amdgcn-amd-amdhsa--gfx950"
.text
.globl {NAME}
.p2align 8
.type {NAME},@function
{NAME}:
    s_cmp_ge_u32 s2, 256
    s_cbranch_scc1 L_end
{'    s_memtime s[100:101]' if OPT['debug'] else ''}
    s_load_dwordx4 s[56:59], s[0:1], 0
    s_load_dwordx4 s[60:63], s[0:1], 16
{WARM1}    v_lshrrev_b32 v20, 6, v0
    v_and_b32 v21, 63, v0                 ; lane
    v_readfirstlane_b32 s42, v20          ; wave
    v_and_b32 v22, 15, v21                ; i
    v_lshrrev_b32 v23, 4, v21             ; g
    v_lshrrev_b32 v26, 2, v22             ; i/4
    v_and_b32 v27, 3, v21                 ; i%4
    ; DMA lane part: (i/4)*256 + g*64 + ((i%4)^f(n))*16
    v_lshlrev_b32 v30, 8, v26
    v_lshl_add_u32 v30, v23, 6, v30
    v_lshl_add_u32 v{vKd[0]}, v27, 4, v30
    v_xor_b32 v{vKd[1]}, 48, v{vKd[0]}
    v_xor_b32 v{vKd[2]}, 32, v{vKd[0]}
    v_xor_b32 v{vKd[3]}, 16, v{vKd[0]}
    s_and_b32 s43, s2, 7                  ; xcd
    s_lshr_b32 s44, s2, 3
    s_lshr_b32 s45, s44, 2                ; group
    s_and_b32 s44, s44, 3                 ; qb
    s_lshl_b32 s43, s43, 5
    s_add_u32 s43, s43, s45               ; pair0
    s_lshl_b32 s{sW4k}, s42, 12
    s_lshl_b32 s{sKVn}, s43, 17
    s_add_u32 s{sKVn}, s{sKVn}, s{sW4k}
    s_mul_i32 s45, s43, {PAIRQ}
    s_lshl_b32 s46, s44, 16
    s_add_u32 s45, s45, s46
    s_lshl_b32 s46, s42, 14
    s_add_u32 s{sQn[0]}, s45, s46
    s_add_u32 s{sQn[1]}, s{sQn[0]}, 4096
    s_lshl_b32 s{sPA}, s42, 13
    s_add_u32 s{sPA}, s{sPA}, 131072
    s_lshl_b32 s46, s44, 2
    s_add_u32 s46, s46, s42
    s_cmp_eq_u32 s46, 15
    s_cselect_b32 s46, 0x40000000, 8192
    s_cselect_b32 s47, 0xff800000, 0
    s_cselect_b32 s45, 0, 8192
    s_cselect_b32 s{sQB+2}, 0, {QBYTES}
    s_add_u32 s{sQn[2]}, s{sQn[0]}, s45
    s_add_u32 s{sQn[3]}, s{sQn[1]}, s45
    s_mov_b32 s{sQ+2}, {QBYTES}
    s_mov_b32 s{sQ+3}, 0x20000
    s_mov_b32 s{sQB+3}, 0x20000
    s_mov_b32 s{sKn+2}, {KBYTES}
    s_mov_b32 s{sKn+3}, 0x20000
    s_mov_b32 s{sVn+2}, {KBYTES}
    s_mov_b32 s{sVn+3}, 0x20000
    s_waitcnt lgkmcnt(0)
    s_mov_b32 s{sKn}, s58
    s_mov_b32 s{sKn+1}, s59
    s_mov_b32 s{sQ}, s56
    s_mov_b32 s{sQ+1}, s57
    s_mov_b32 s{sQB}, s56
    s_mov_b32 s{sQB+1}, s57
    s_mov_b32 s{sVn}, s60
    s_mov_b32 s{sVn+1}, s61
''')
    if OPT['debug']:
        w('''    s_memrealtime s[98:99]
    s_waitcnt lgkmcnt(0)
    s_mov_b32 s67, s98
''')
    QTMP = [None, None, VBASE + 3*16384, 3*16384]
    pro = op_DMA('K', 8, None)
    pro += op_QD(0, f's_add_u32 m0, s{sPA}, 0') + op_QD(1, f's_add_u32 m0, s{sPA}, 4096')
    pro += op_QD(2, f's_add_u32 m0, s{sW4k}, {QTMP[2]}') + op_QD(3, f's_add_u32 m0, s{sW4k}, {QTMP[3]}')
    pro = padded(pro)
    w(lines(pro))
    w(f'''    ; remaining setup under the load latency
    s_mov_b32 s{sK}, s58
    s_mov_b32 s{sK+1}, s59
    s_mov_b32 s{sK+2}, {KBYTES}
    s_mov_b32 s{sK+3}, 0x20000
    s_mov_b32 s{sV}, s60
    s_mov_b32 s{sV+1}, s61
    s_mov_b32 s{sV+2}, {KBYTES}
    s_mov_b32 s{sV+3}, 0x20000
    s_mov_b32 s{sO}, s62
    s_mov_b32 s{sO+1}, s63
    s_mov_b32 s{sO+2}, {QBYTES}
    s_mov_b32 s{sO+3}, 0x20000
    s_mov_b32 s{sOP}, s62
    s_mov_b32 s{sOP+1}, s63
    s_mov_b32 s{sOP+3}, 0x20000
    s_mov_b32 s{sOo[0]}, 0
    s_mov_b32 s{sOo[1]}, 0
    v_sub_u32 v30, 0, v26
    v_and_b32 v30, 3, v30                 ; f(i/4)
    v_xor_b32 v30, v30, v23
    v_lshlrev_b32 v30, 4, v30
    v_lshl_add_u32 v30, v27, 6, v30
    v_lshl_add_u32 v{vKa}, v26, 10, v30
    v_add_u32 v{vQa}, s{sPA}, v{vKa}
    v_lshlrev_b32 v30, 10, v23
    v_lshl_add_u32 v30, v26, 6, v30
    v_lshl_add_u32 v30, v27, 4, v30
    v_add_u32 v{vVa}, {VBASE}, v30
{'    v_and_b32 v30, 16, v21' + chr(10) + '    v_lshrrev_b32 v30, 1, v30' + chr(10) + f'    v_add_u32 v{vVa}, v{vVa}, v30' if 'conf' in OPT['abl'] else ''}
    ; O staging: write addr = PA + i*128 + ((g ^ (i&7))*16); read addr = PA + lane*16; store lane part = (l/8)*256 + ((l%8)^(l/8))*16
    v_and_b32 v30, 7, v21
    v_xor_b32 v31, v30, v23
    v_lshlrev_b32 v31, 4, v31
    v_lshl_add_u32 v31, v22, 7, v31
    v_add_u32 v{vWr[0]}, s{sPA}, v31
    v_xor_b32 v{vWr[1]}, 64, v{vWr[0]}
    v_lshlrev_b32 v31, 4, v21
    v_add_u32 v{vRd}, s{sPA}, v31
    v_lshrrev_b32 v31, 3, v21
    v_xor_b32 v30, v30, v31
    v_lshlrev_b32 v30, 4, v30
    v_lshl_add_u32 v{vOlo}, v31, 8, v30
    v_add_u32 v{vOhi}, s46, v{vOlo}
    v_mov_b32 v30, s47
    v_cmp_lt_u32 vcc, 31, v21
    v_mov_b32 v31, 0x3f803f80
    s_mov_b32 s{sC}, {hex(f32(CSCALE))}
    v_cndmask_b32 v{vBias}, 0, v30, vcc
    s_mov_b32 s{sNC}, {hex(f32(-CSCALE))}
    s_mov_b32 s{sThr}, {hex(f32(2.0**64) if not OPT['force_slow'] else f32(-1.0))}
    s_mov_b32 s{sB}, -1
    s_mov_b32 s{sFlag}, 0
    s_mov_b64 s[{sCmp[0]}:{sCmp[0]+1}], 0
    s_mov_b64 s[{sCmp[1]}:{sCmp[1]+1}], 0
    s_mov_b64 s[{sCmp[2]}:{sCmp[2]+1}], 0
    s_mov_b64 s[{sCmp[3]}:{sCmp[3]+1}], 0
    v_accvgpr_write_b32 a{ONES}, v31
    v_accvgpr_write_b32 a{ONES+1}, v31
    v_accvgpr_write_b32 a{ONES+2}, v31
    v_accvgpr_write_b32 a{ONES+3}, v31
    v_add_u32 v30, s{sW4k}, v{vKa}
    v_add_u32 v31, {VBASE}, v30
''')
    w(lines(op_UPD()))
    stamp = lambda i: [Op('salu', f's_memtime s[{78+2*i}:{79+2*i}]')] if OPT['debug'] else []
    qr = [op_QR(0, Q, vQa, 0, 'x'), op_QR(1, Q, vQa, 4096, 'x'), op_QR(2, Q, 31, 3*16384, 'x'), op_QR(3, Q, 30, 3*16384, 'x')]
    names = lambda t, *idx: [(t, i, n) for i in idx for n in range(4)]
    F = stamp(0) + [wvm(names('K', 0), 'x', {})] + stamp(1) + [Op('salu', 's_barrier')] + stamp(2)
    F += [Op('ds', f'ds_read_b128 {ar(128 + 16*kt + 4*ks, 4)}, v{vKa} offset:{kt*4096 + ks*256}', name=('RK0', kt, ks)) for kt in range(4) for ks in range(4)]
    F += padded(op_DMA('K', 1, None))
    fd = [op_DMA('V', 0, None), op_DMA('K', 2, None), op_DMA('V', 1, None), op_DMA('K', 3, None) + op_DMA('V', 2, None)]
    if OPT['fo'] == 1: fd = [fd[0], [], [], fd[1] + fd[2]]
    for qt in range(4):
        F += [wvm(names('Q', qt), 'x', {})] + stamp(3 + qt)
        sg, stats = schedule(seg_first(qt, qr[qt], None), OPT['ds_lead'], OPT['ds_lat'], 1)
        F += sg + (stamp(7) if qt == 3 else []) + padded(fd[qt])
    F += [wvm(names('K', 1) + names('V', 0), 'x', {}), Op('bar', 's_barrier')] + op_RK(4)
    if OPT['fo'] == 1: F += padded(op_DMA('K', 3, None) + op_DMA('V', 2, None))
    segs['F'] = F
    sq = [pro, segs['F'], []] + [segs['A'], segs['B']] * 3 + [segs['A'], segs['D']]
    r = resolve_waits(sq)
    print([(o.text, l) for o, l in r.items() if o.kind == 'wvm'], file=sys.stderr)
    if OPT['debug']:
        w('''    s_load_dwordx2 s[60:61], s[0:1], 40
    s_mov_b32 s62, 0x1000000
    s_mov_b32 s63, 0x20000
    s_lshl_b32 s59, s2, 14
    s_add_u32 s59, s59, s39
    s_lshr_b32 s59, s59, 3
    v_lshlrev_b32 v29, 2, v21
    s_waitcnt lgkmcnt(0)
''')
    if 'rs' in OPT['abl']:
        segs['A'] = [o if not (o.kind == 'mfma' and o.text.split()[1].startswith('a[')) else Op('salu', 's_nop 0') for o in segs['A']]
    if 'dma' in OPT['abl']:
        for sg in 'AB':
            segs[sg] = [o if not (o.kind == 'dma' and o.name[0] in 'KV') else Op('salu', 's_nop 0') for o in segs[sg]]
    if 'ds' in OPT['abl'].split():
        for sg in 'AB':
            segs[sg] = [o if not (o.kind == 'ds' and o.name[0] in ('RK', 'RV')) else Op('salu', 's_nop 0') for o in segs[sg]]
    upd = 'L_next:\n' + ('' if OPT['updin'] else lines(op_UPD()))
    pad = lambda n: [Op('salu', 'x') for _ in range(n)]
    bad = check_hazards(segs['F'] + segs['A'] + pad(2) + segs['B'] + pad(1) + segs['A'] + pad(2) + segs['D'])
    assert bad == 0, bad
    if not OPT['debug']:
        w(lines(segs['F']))
        w(lines(sq[2]))
        w(upd)
        w(lines(segs['A']))
        w(f'    s_cmp_eq_u32 s{sB}, 3\n    s_cbranch_scc1 L_final\n')
        w(lines(segs['B']))
        w('    s_branch L_next\nL_final:\n')
        w(lines(segs['D']))
    else:
        w(dbg_lines(segs['F'], 8)[0]); w(DUMP)
        w(lines(sq[2]))
        w(upd)
        w('    s_memtime s[78:79]\n    s_memrealtime s[98:99]\n')
        w(dbg_lines(segs['A'], 1)[0])
        w(f'    s_cmp_eq_u32 s{sB}, 3\n    s_cbranch_scc1 L_final\n')
        w(dbg_lines(segs['B'], 8)[0]); w(DUMP)
        w('    s_branch L_next\nL_final:\n')
        w(lines(segs['D'])); w('    s_memtime s[94:95]\n'); w(DUMP)
        w('''    s_waitcnt vmcnt(0)
    s_memtime s[78:79]
    s_memrealtime s[98:99]
    s_waitcnt lgkmcnt(0)
    v_mov_b32 v28, s78
    v_mov_b32 v29, s98
    v_mov_b32 v30, s100
    v_mov_b32 v31, s67
    s_mov_b64 exec, 1
    buffer_store_dwordx4 v[28:31], off, s[60:63], s59
    s_mov_b64 exec, -1
''')
    w(f'''    s_or_b64 s[{sCmp[0]}:{sCmp[0]+1}], s[{sCmp[0]}:{sCmp[0]+1}], s[{sCmp[1]}:{sCmp[1]+1}]
    s_or_b64 s[{sCmp[2]}:{sCmp[2]+1}], s[{sCmp[2]}:{sCmp[2]+1}], s[{sCmp[3]}:{sCmp[3]+1}]
    s_or_b64 s[{sCmp[0]}:{sCmp[0]+1}], s[{sCmp[0]}:{sCmp[0]+1}], s[{sCmp[2]}:{sCmp[2]+1}]
    s_cselect_b32 s42, 8, 0
    s_or_b32 s{sFlag}, s{sFlag}, s42
''')
    w(slow_path())
    w(f'''L_end:
    s_endpgm
.section .rodata,"a"
.p2align 6
.amdhsa_kernel {NAME}
  .amdhsa_next_free_vgpr 512
  .amdhsa_next_free_sgpr {102 if OPT['debug'] else 96}
  .amdhsa_accum_offset 256
  .amdhsa_group_segment_fixed_size 0
  .amdhsa_kernarg_size 48
  .amdhsa_user_sgpr_count 2
  .amdhsa_user_sgpr_kernarg_segment_ptr 1
  .amdhsa_system_sgpr_workgroup_id_x 1
.end_amdhsa_kernel
''')
    open(sys.argv[1], 'w').write(''.join(A))

def slow_path():
    raw = lambda t: Op('salu', t)
    T = []
    w = T.append
    sPair, sKoff, sJ = 56, 57, 58
    vF, vFh, vTr = 26, 27, 30
    w(f'''    s_cmp_eq_u32 s{sFlag}, 0
    s_cbranch_scc1 L_end
    s_waitcnt vmcnt(0) lgkmcnt(0)
    s_mov_b32 s{sQ+2}, {QBYTES}
    s_sub_u32 s42, s{sPA}, {VBASE}
    v_add_u32 v{vTr}, s42, v{vVa}
    v_and_b32 v20, 15, v0
    v_bfe_u32 v21, v0, 4, 2
    v_lshlrev_b32 v20, 8, v20
    v_lshl_add_u32 v{vF}, v21, 4, v20
    v_add_u32 v{vFh}, s46, v{vF}
    s_mov_b32 s{sB}, 0
L_slow_blk:
    s_lshr_b32 s42, s{sFlag}, s{sB}
    s_and_b32 s42, s42, 1
    s_cmp_eq_u32 s42, 0
    s_cbranch_scc1 L_slow_next
    s_lshl_b32 s42, s{sB}, 3
    s_add_u32 s{sPair}, s43, s42
    s_mul_i32 s42, s{sPair}, {PAIRQ}
    s_lshl_b32 s45, s44, 16
    s_add_u32 s42, s42, s45
    s_lshl_b32 s45, s{sW4k}, 2
    s_add_u32 s{sOo[0]}, s42, s45
    s_add_u32 s{sOo[1]}, s{sOo[0]}, 4096
''')
    for qt in range(4):
        for ks in range(4):
            w(f'    buffer_load_dwordx4 {ar(Q(qt,ks),4)}, v{vF if qt < 2 else vFh}, {srd(sQ)}, s{sOo[qt%2]} offen offset:{ks*64}\n')
    for qt in range(4): w(f'    v_mov_b32 v{vT[qt]}, 0xff800000\n')
    w(f'''    s_lshl_b32 s{sKoff}, s{sPair}, 17
    s_mov_b32 s{sJ}, 0
L_slow_p1:
''')
    def kload(buf):
        return [raw(f'buffer_load_dwordx4 {ar(KF(buf,ks),4)}, v{vF}, {srd(sK)}, s{sKoff} offen offset:{ks*64}') for ks in range(4)]
    w(lines(kload(0)))
    w('    s_waitcnt vmcnt(0)\n')
    l = op_QK(0)
    for qt in range(4):
        s = S(0, qt)
        l.append(valu(f'v_max3_f32 v{vT[qt]}, v{s}, v{s+1}, v{vT[qt]}', [f'v{s}', f'v{s+1}', f'v{vT[qt]}'], [f'v{vT[qt]}']))
        l.append(valu(f'v_max3_f32 v{vT[qt]}, v{s+2}, v{s+3}, v{vT[qt]}', [f'v{s+2}', f'v{s+3}', f'v{vT[qt]}'], [f'v{vT[qt]}']))
    w(lines(padded(l)))
    w(f'''    s_add_u32 s{sKoff}, s{sKoff}, 4096
    s_add_u32 s{sJ}, s{sJ}, 1
    s_cmp_lt_u32 s{sJ}, 32
    s_cbranch_scc1 L_slow_p1
''')
    w(lines(padded(op_reduce())))
    for i in range(128): w(f'    v_mov_b32 v{128+i}, 0\n')
    for i in range(16): w(f'    v_accvgpr_write_b32 a{RS(0)+i}, 0\n')
    w(f'''    s_lshl_b32 s{sKoff}, s{sPair}, 17
    s_mov_b32 s{sJ}, 0
L_slow_p2:
''')
    w(f'    s_mov_b32 m0, s{sPA}\n    s_nop 0\n')
    for n in range(4): w(f'    buffer_load_dwordx4 v{vKd[0]}, {srd(sV)}, s{sKoff} offen offset:{n*1024} lds\n')
    w(lines(kload(0)))
    w(f'    s_add_u32 s{sKoff}, s{sKoff}, 4096\n    s_add_u32 m0, s{sPA}, 4096\n    s_nop 0\n')
    for n in range(4): w(f'    buffer_load_dwordx4 v{vKd[0]}, {srd(sV)}, s{sKoff} offen offset:{n*1024} lds\n')
    w(lines(kload(1)))
    w(f'    s_add_u32 s{sKoff}, s{sKoff}, 4096\n    s_waitcnt vmcnt(0)\n')
    l = op_QK(0) + op_QK(1) + op_SM(0) + op_SM(1)
    for qt in range(4): l.append(mfma('a', RS(qt), 'a', ONES, 'v', P(0, 0, qt), False))
    w(lines(padded(l)))
    for u in range(4):
        for Tb in range(2):
            for jh in range(2):
                d = VF(0, Tb, 0) + 2*jh
                w(f'    ds_read_b64_tr_b16 {ar(d,2)}, v{vTr} offset:{jh*4096 + u*256 + Tb*8}\n')
        w('    s_waitcnt lgkmcnt(0)\n')
        for Tb in range(2):
            for qt in range(4):
                w('    ' + mfma('v', O(2*u+Tb, qt), 'a', VF(0, Tb, 0), 'v', P(0, 0, qt), False).text + '\n')
        w('    s_nop 7\n')
    w(f'''    s_add_u32 s{sJ}, s{sJ}, 1
    s_cmp_lt_u32 s{sJ}, 16
    s_cbranch_scc1 L_slow_p2
    s_nop 7
''')
    l = op_L()
    for u in range(4):
        l += op_EPI(u)
        if u % 2: l += op_OUT(u // 2)
    for o in l:
        if o.kind == 'wlg': o.text = 's_waitcnt lgkmcnt(0)'
    w(lines(padded(l)))
    w(f'''    s_waitcnt vmcnt(0)
L_slow_next:
    s_add_u32 s{sB}, s{sB}, 1
    s_cmp_lt_u32 s{sB}, 4
    s_cbranch_scc1 L_slow_blk
''')
    return ''.join(T)

main()
```

```python
import sys, struct, math
import sched
from sched import *

OPT = dict(store_flags='nt', ds_lead=8, ds_lat=120, vm_space=3, debug=0, force_slow=0, q_flags='nt', kv_flags='nt',
           ds_sp=3, vshift=0, st_lo=10, st_hi=900, last_flags='nt', epi_len=20, warm=1, abl='', bou=1, pk=0, vmc=12, stc=20, vm_due=4, pkf=1, pkd=4, vm_sp=0, updin=1, fo=0, pst=8, nopw=6, finq=1, fin_len=18, fin_st=4)
for a in sys.argv[2:]:
    k, v = a.split('=')
    OPT[k] = int(v) if v.lstrip('-').isdigit() else v.replace('+', ' ')

sched.VM_COST = OPT['vmc']; sched.ST_COST = OPT['stc']
NAME = 'standalone__gqa_softmax__near_ridge_kernel'
def bf16(x):
    u = struct.unpack('<I', struct.pack('<f', x))[0]
    return (u + 0x7fff + ((u >> 16) & 1)) >> 16
def unbf(h): return struct.unpack('<f', struct.pack('<I', h << 16))[0]
def f32(x): return struct.unpack('<I', struct.pack('<f', x))[0]
CSCALE = math.log2(math.e) / math.sqrt(128.0)
CHI = bf16(CSCALE); CLO = bf16(CSCALE - unbf(CHI))
QBYTES = 16*32*496*128*2
KBYTES = 16*16*512*128*2
PAIRQ = 992*256
PAIRK = 512*256

vKa, vVa, vOlo, vOhi = 1, 2, 3, 4
vKd = [5, 6, 7, 8]
vQa = 9
vBias = 10
vRd = 11
vWr = [12, 13]
vRL = [14, 15, 16, 17]
vNM = [20, 24, 28, 32]
vT = [21, 25, 29, 33]
vX0, vX1, vD0, vD1 = 36, 37, 38, 39
def S(buf, qt): return 40 + 4*qt if qt < 2 else 48 + 8*(qt - 2) + 4*buf
def P(par, h, qt): return 64 + 32*par + 16*h + 4*qt
def O(T, qt): return 128 + 16*T + 4*qt
def Q(qt, ks): return 16*qt + 4*ks
def QN(qt, ks): return 64 + 16*qt + 4*ks
def KF(buf, ks): return 128 + 16*buf + 4*ks
def VF(buf, Tb, h): return 160 + 16*buf + 8*Tb + 4*h
def RS(qt): return 192 + 4*qt
ONES = 208
SEL = 244
def OST(R, n): return (96 if R == 0 else 212) + 4*n
sQ, sK, sV, sO, sKn, sVn, sQB = 4, 8, 12, 16, 20, 24, 68
sKV, sKVn = 28, 29
sQn = [30, 31, 64, 65]
sOo = [32, 33]
sC, sNC, sThr, sB, sFlag, sW4k = 34, 35, 36, 37, 38, 39
sTK, sTV = 40, 41
sCmp = [48, 50, 52, 54]
sOP = 72
sOp = [76, 77]
sPA = 66
VBASE = 65536

def vr(a, n): return f'v[{a}:{a+n-1}]'
def ar(a, n): return f'a[{a}:{a+n-1}]'
def srd(a): return f's[{a}:{a+3}]'

def mfma(dp, d, ap, a, bp, b, zero, cin=None):
    cr = d if cin is None else cin
    zero = zero and cin is None
    c = '0' if zero else f'{dp}[{cr}:{cr+3}]'
    D = rng(dp, d, 4); C = [] if zero else rng(dp, cr, 4)
    return Op('mfma', f'v_mfma_f32_16x16x32_bf16 {dp}[{d}:{d+3}], {ap}[{a}:{a+3}], {bp}[{b}:{b+3}], {c}',
              R=rng(ap, a, 4) + rng(bp, b, 4) + C, W=D, C=C)
def valu(text, R, W, kind='valu', **kw): return Op(kind, text, R=R, W=W, **kw)

def op_RK(a):
    tile, kt = divmod(a, 4)
    slot = tile % 4
    l = []
    for ks in range(4):
        d = KF(a % 2, ks)
        l.append(Op('ds', f'ds_read_b128 {ar(d,4)}, v{vKa} offset:{slot*16384 + kt*4096 + ks*256}',
                    R=[f'v{vKa}', f'Krdy{tile}'], W=rng('a', d, 4), name=('RK', a % 32, ks)))
    return l
def op_RV(b):
    tile, u = divmod(b, 4)
    slot = tile % 4
    l = []
    for Tb in range(2):
        for h in range(2):
            for jh in range(2):
                d = VF(b % 2, Tb, h) + 2*jh
                off = slot*16384 + h*8192 + jh*4096 + u*256 + Tb*8
                l.append(Op('ds', f'ds_read_b64_tr_b16 {ar(d,2)}, v{vVa} offset:{off}',
                            R=[f'v{vVa}', f'Vrdy{tile}'], W=rng('a', d, 2), name=('RV', b % 32, Tb, h, jh)))
    return l
def op_QK(a, raw=False):
    l = []
    for qt in range(4):
        for i in range(4):
            ks = 3 - i if (OPT['bou'] and qt % 2) else i
            l.append(mfma('v', S(a % 2, qt), 'a', KF(a % 2, ks), 'a', Q(qt, ks), i == 0, vNM[qt] if (i == 0 and a % 32 and not raw) else None))
    return l
def op_PV(b):
    t, u = divmod(b, 4)
    l = []
    for Tb in range(2):
        for qt in range(4):
            for i in range(2):
                h = 1 - i if (OPT['bou'] and qt % 2) else i
                l.append(mfma('v', O(2*u+Tb, qt), 'a', VF(b % 2, Tb, h), 'v', P(t % 2, h, qt), t == 0 and i == 0))
    return l
def op_RS(t, qt):
    return [mfma('a', RS(qt), 'a', ONES, 'v', P(t % 2, h, qt), t == 0 and h == 0) for h in range(2)]
def op_SM(a, raw=False):
    t, kt = divmod(a, 4)
    l = []
    for qt in range(4):
        s = S(a % 2, qt)
        for r in range(4):
            if raw: l.append(valu(f'v_fma_f32 v{s+r}, v{s+r}, s{sC}, v{vNM[qt]}', [f'v{s+r}', f'v{vNM[qt]}'], [f'v{s+r}']))
            elif a == 0: l.append(valu(f'v_add_f32 v{s+r}, v{s+r}, v{vNM[qt]}', [f'v{s+r}', f'v{vNM[qt]}'], [f'v{s+r}']))
        for r in range(4):
            l.append(valu(f'v_exp_f32 v{s+r}, v{s+r}', [f'v{s+r}'], [f'v{s+r}'], kind='trans'))
        p = P(t % 2, kt // 2, qt) + 2*(kt % 2)
        for i in range(2):
            l.append(valu(f'v_cvt_pk_bf16_f32 v{p+i}, v{s+2*i}, v{s+2*i+1}', [f'v{s+2*i}', f'v{s+2*i+1}'], [f'v{p+i}']))
    return l
def op_PS(qt, src, tmp):
    l = []
    for ks in range(4):
        t = tmp + 8*ks
        for x in range(2):
            l.append(mfma('v', t + 4*x, 'a', SEL + 2 - 2*x, 'a', src(qt, ks), True))
            l.append(mfma('v', t + 4*x, 'a', SEL + 6 - 2*x, 'a', src(qt, ks), False))
        for i in range(4):
            l.append(valu(f'v_cvt_pk_bf16_f32 v{t+2*i}, v{t+2*i}, v{t+2*i+1}', [f'v{t+2*i}', f'v{t+2*i+1}'], [f'v{t+2*i}']))
            l.append(valu(f'v_accvgpr_write_b32 a{Q(qt,ks)+i}, v{t+2*i}', [f'v{t+2*i}'], [f'a{Q(qt,ks)+i}']))
    return l
def perm(n, a, b): return valu(f'v_permlane{n}_swap_b32 v{a}, v{b}', [f'v{a}', f'v{b}'], [f'v{a}', f'v{b}'], kind='perm')
def op_reduce(raw=False):
    t = vT; n = vNM
    mx = lambda d, a, b: valu(f'v_max_f32 v{d}, v{a}, v{b}', [f'v{a}', f'v{b}'], [f'v{d}'])
    mv = lambda d, a: valu(f'v_mov_b32 v{d}, v{a}', [f'v{a}'], [f'v{d}'])
    return [perm(16, t[0], t[1]), perm(16, t[2], t[3]), mx(t[0], t[0], t[1]), mx(t[2], t[2], t[3]),
            perm(32, t[0], t[2]), mx(t[0], t[0], t[2]),
            valu(f'v_fma_f32 v{n[0]}, v{t[0]}, s{sNC}, v{vBias}' if raw else f'v_sub_f32 v{n[0]}, v{vBias}, v{t[0]}', [f'v{t[0]}', f'v{vBias}'], [f'v{n[0]}']),
            mv(n[2], n[0]), perm(32, n[0], n[2]), mv(n[1], n[0]), mv(n[3], n[2]),
            perm(16, n[0], n[1]), perm(16, n[2], n[3])] + ([] if raw else [mv(n[q] + i, n[q]) for q in range(4) for i in range(1, 4)])
def op_MAX():
    l = []
    for qt in range(4):
        s = S(0, qt)
        l.append(valu(f'v_max3_f32 v{vT[qt]}, v{s}, v{s+1}, v{s+2}', rng('v', s, 3), [f'v{vT[qt]}']))
        l.append(valu(f'v_max_f32 v{vT[qt]}, v{vT[qt]}, v{s+3}', [f'v{vT[qt]}', f'v{s+3}'], [f'v{vT[qt]}']))
    return l + op_reduce()
def op_DMA(which, tile, bar):
    slot = tile % 4
    nxt = tile >= 8
    base = sKVn if nxt else sKV
    st = sTK if which == 'K' else sTV
    d = (sKn if nxt else sK) if which == 'K' else (sVn if nxt else sV)
    l = [Op('salu', f's_add_u32 s{st}, s{base}, {(tile % 8)*16384}', R=[f's{base}'], W=[f's{st}', 'scc']),
         Op('salu', f's_add_u32 m0, s{sW4k}, {slot*16384 + (VBASE if which == "V" else 0)}', R=[], W=['m0', 'scc'])]
    for n in range(4):
        va = vKd[n] if which == 'K' else vKd[0]
        l.append(Op('dma', f'buffer_load_dwordx4 v{va}, {srd(d)}, s{st} offen offset:{n*1024} {OPT["kv_flags"]} lds',
                    R=[f'v{va}', f's{st}', 'm0', 'srdn'] + ([bar] if bar else []), W=[], name=(which, tile % 8, n)))
    return l
def op_QD(qt, m0txt, dep=None):
    l = [Op('salu', m0txt, R=[], W=['m0', 'scc'])]
    for n in range(4):
        l.append(Op('dma', f'buffer_load_dwordx4 v{vKd[n]}, {srd(sQ if qt < 2 else sQB)}, s{sQn[qt]} offen offset:{n*1024} {OPT["q_flags"]} lds',
                    R=[f'v{vKd[n]}', f's{sQn[qt]}', 'm0'] + ([dep] if dep else []), W=[], name=('Q', qt, n)))
    return l
def op_QR(qt, dst, va, off, dep):
    return [Op('ds', f'ds_read_b128 {ar(dst(qt,ks),4)}, v{va} offset:{off + ks*256}',
               R=[f'v{va}', dep, 'PA'], W=rng('a', dst(qt, ks), 4), name=('QR', qt, ks)) for ks in range(4)]
def op_L():
    l = []
    for qt in range(4):
        r = vRL[qt]
        l.append(valu(f'v_accvgpr_read_b32 v{r}, a{RS(qt)}', [f'a{RS(qt)}'], [f'v{r}']))
        l.append(valu(f'v_cmp_nge_f32 s[{sCmp[qt]}:{sCmp[qt]+1}], s{sThr}, v{r}', [f'v{r}'], [f's{sCmp[qt]}']))
        l.append(valu(f'v_rcp_f32 v{r}, v{r}', [f'v{r}'], [f'v{r}'], kind='trans'))
    return l
def op_EPI(u):
    l = []
    for qt in range(4):
        a, b = O(2*u, qt), O(2*u+1, qt)
        for x in list(range(a, a+4)) + list(range(b, b+4)):
            l.append(valu(f'v_mul_f32 v{x}, v{x}, v{vRL[qt]}', [f'v{x}', f'v{vRL[qt]}'], [f'v{x}']))
        for i, x in enumerate([a, a+2, b, b+2]):
            l.append(valu(f'v_cvt_pk_bf16_f32 v{a+i}, v{x}, v{x+1}', [f'v{x}', f'v{x+1}'], [f'v{a+i}']))
        l.append(Op('ds', f'ds_write_b128 v{vWr[u%2]}, {vr(a,4)} offset:{qt*2048}',
                    R=rng('v', a, 4) + [f'v{vWr[u%2]}', 'PAw'], W=[f'PA{qt}_{u%2}'], name=('OW', u, qt)))
    return l
def op_OR(R, half):
    return [Op('ds', f'ds_read_b128 {ar(OST(R,n),4)}, v{vRd} offset:{n*1024}',
               R=[f'v{vRd}', f'PA{n//2}_0', f'PA{n//2}_1'], W=rng('a', OST(R, n), 4), name=('OR', R, n)) for n in range(4*half, 4*half+4)]
def op_ST(R, half, dep, prev):
    l = []
    for n in range(4*half, 4*half+4):
        va = vOlo if n < 4 else vOhi
        so = (sOp if prev else sOo)[(n//2) % 2]
        l.append(Op('vst', f'buffer_store_dwordx4 {ar(OST(R,n),4)}, v{va}, {srd(sOP if prev else sO)}, s{so} offen offset:{(n%2)*2048 + R*128} {OPT["store_flags" if prev else "last_flags"]}'.rstrip(),
                    R=rng('a', OST(R, n), 4) + [f'v{va}', f's{so}', dep], W=[], name=('O', R, n)))
    return l
def op_OUT(R):
    l = []
    for half in range(2):
        rd = op_OR(R, half)
        l += rd + [wlg(rd, f'wO{R}_{half}')] + op_ST(R, half, f'wO{R}_{half}', False)
    return l
def wlg(targets, tag, prev=None):
    o = Op('wlg', None, W=[tag], targets=targets)
    o.prev_targets = [t.name for t in targets] if prev is None else prev
    return o
def wvm(names, tag, byname):
    o = Op('wvm', None, W=[tag], targets=[byname[x] for x in names if x in byname])
    o.prev_targets = names
    return o

def op_UPD():
    sa = lambda t, R, W: Op('salu', t, R=R, W=W)
    c = [f's{x}' for x in sCmp]
    p = lambda x: f's[{x}:{x+1}]'
    l = [sa(f's_or_b64 {p(sCmp[0])}, {p(sCmp[0])}, {p(sCmp[1])}', [c[0], c[1]], [c[0], 'scc']),
         sa(f's_or_b64 {p(sCmp[2])}, {p(sCmp[2])}, {p(sCmp[3])}', [c[2], c[3]], [c[2], 'scc']),
         sa(f's_or_b64 {p(sCmp[0])}, {p(sCmp[0])}, {p(sCmp[2])}', [c[0], c[2]], [c[0], 'scc']),
         sa('s_cselect_b32 s42, 1, 0', ['scc'], ['s42']),
         sa(f's_lshl_b32 s42, s42, s{sB}', ['s42', f's{sB}'], ['s42', 'scc']),
         sa(f's_or_b32 s{sFlag}, s{sFlag}, s42', ['s42'], [f's{sFlag}', 'scc']),
         sa(f's_mov_b64 {p(sOp[0])}, {p(sOo[0])}', [f's{sOo[0]}'], [f's{sOp[0]}']),
         sa(f's_mov_b64 {p(sOo[0])}, {p(sQn[0])}', [f's{sQn[0]}', f's{sQn[1]}'], [f's{sOo[0]}']),
         sa(f's_mov_b32 s{sKV}, s{sKVn}', [f's{sKVn}'], [f's{sKV}']),
         sa(f's_add_u32 s{sB}, s{sB}, 1', [f's{sB}'], [f's{sB}', 'scc']),
         sa(f's_cselect_b32 s{sOP+2}, 0, {QBYTES}', ['scc'], [f's{sOP+2}']),
         sa(f's_cmp_lt_u32 s{sB}, 3', [f's{sB}'], ['scc']),
         sa(f's_cselect_b32 s42, {OPT["pst"]*PAIRQ}, 0', ['scc'], ['s42']),
         sa(f's_cselect_b32 s45, {OPT["pst"]*PAIRK}, 0', ['scc'], ['s45']),
         sa(f's_cselect_b32 s{sQ+2}, s{sQ+2}, 0', ['scc'], [f's{sQ+2}']),
         sa(f's_cselect_b32 s{sQB+2}, s{sQB+2}, 0', ['scc'], [f's{sQB+2}']),
         sa(f's_cselect_b32 s{sKn+2}, s{sKn+2}, 0', ['scc'], ['srdn']),
         sa(f's_cselect_b32 s{sVn+2}, s{sVn+2}, 0', ['scc'], ['srdn'])]
    l += [sa(f's_add_u32 s{x}, s{x}, s42', ['s42', f's{x}'], [f's{x}', 'scc']) for x in sQn]
    l += [sa(f's_add_u32 s{sKVn}, s{sKVn}, s45', ['s45', f's{sKVn}'], [f's{sKVn}', 'scc'])]
    return l

class Seg:
    def __init__(self):
        self.ops = []; self.nm = 0; self.byname = {}
    def add(self, l, need=None):
        for i, o in enumerate(l):
            if need and i == 0: o.R += need if isinstance(need, list) else [need]
            if o.kind == 'mfma': self.nm += 1
            if o.kind in ('dma', 'vld', 'vst'): self.byname[o.name] = o
            self.ops.append(o)
        return l
    def reads(self, l, tag, at):
        n = len(l)
        for i, o in enumerate(l):
            o.due = at - OPT['ds_lead'] - (n - 1 - i) * OPT['ds_sp']
            o.earliest = o.due - 2
        self.add(l)
        if tag: self.add([wlg(l, tag)])
    def spread(self, l, lo, hi, sp=None):
        mem = [o for o in l if o.kind in MEM_KINDS]
        for i, o in enumerate(mem):
            pos = lo + min(sp or OPT['vm_sp'] or 1000, (hi - lo) / len(mem)) * (i + 0.5)
            o.earliest = int(pos) - 2; o.due = pos + OPT['vm_due']
        for i, o in enumerate(l):
            if o.kind == 'salu':
                nx = next(x for x in l[i:] if x.kind in MEM_KINDS)
                o.earliest = nx.earliest - 6
        self.add(l)
    def barrier(self, nn, pos, waits):
        names = [('K', (nn+1) % 8, i) for i in range(4)] + [('V', nn % 8, i) for i in range(4)]
        wv = wvm(names, f'wvm{nn}', self.byname); wv.earliest = pos - 3
        bo = Op('bar', 's_barrier', R=[f'wvm{nn}'] + waits, W=[f'bar{nn}', f'Krdy{nn+1}', f'Vrdy{nn}'])
        bo.earliest = pos - 1; bo.due = pos + 1
        self.add([wv, bo])

def seg_A():
    g = Seg()
    start = {s: (s - 4) * 34 for s in range(4, 33)}
    barpos = {nn: start[4*nn+3] + 16 for nn in range(1, 8)}
    barpos[0] = -2
    def interval(nn, extra):
        bar = f'bar{nn}' if nn >= 1 else None
        l = op_DMA('K', nn + 4, bar) + op_DMA('V', nn + 3, bar) + extra
        g.spread(l, barpos[nn] + 2, barpos[nn+1] - 6)
    qm0 = lambda j: f's_add_u32 m0, s{sPA}, {4096*j}'
    extras = {0: op_QD(0, qm0(0), 'wK4'), 1: op_QD(1, qm0(1), 'wK4'), 4: op_QD(2, qm0(0), 'wQA'), 5: op_QD(3, qm0(1), 'wQA')}
    w = wlg([], 'wK4', prev=[('RK', 4, ks) for ks in range(4)] + [('OR', R, n) for R in range(2) for n in range(8)]); w.due = -1
    g.add([w])
    sts = sum([op_ST(R, hf, 'wK4', True) for hf in range(2) for R in range(2)], [])
    sts.sort(key=lambda o: (o.name[2], o.name[1]))
    g.spread(sts, OPT['st_lo'], OPT['st_hi'], 1000)
    interval(0, extras[0])
    for s in range(4, 32):
        if s > 4: g.reads(op_RK(s), f'wK{s}', start[s])
        g.add(op_SM(s - 1))
        g.add(op_QK(s), f'wK{s}')
        b = s - 4
        g.reads(op_RV(b), f'wV{b}', start[s] + 16)
        if s % 4 == 3: g.barrier(s // 4, barpos[s // 4], [f'wK{s}', f'wV{b}'])
        g.add(op_PV(b), f'wV{b}')
        g.add(op_RS(b // 4, b % 4))
        if s == 17:
            wq = wvm([('Q', qt, n) for qt in range(2) for n in range(4)], 'vQA', g.byname); wq.earliest = start[17]
            g.add([wq])
            g.reads(op_QR(0, QN, vQa, 0, 'vQA') + op_QR(1, QN, vQa, 4096, 'vQA'), 'wQA', barpos[4] + 8)
        if s % 4 == 3 and s // 4 <= 6: interval(s // 4, extras.get(s // 4, []))
    g.reads(op_RV(28), None, start[32] + 12)
    return g.ops

def seg_B():
    g = Seg()
    order = [('RS', 0), ('PV', 28), ('PS', 0), ('PV', 29), ('PS', 1), ('PS', 2), ('PV', 30), ('PS', 3), ('QK', 32), ('PV', 31),
             ('QK', 33), ('QK', 34), ('QK', 35)]
    pos = {}; n = 0
    for k in order:
        pos[k] = n; n += 8 if k[0] == 'RS' else 16
    total = n
    g.add(op_SM(31))
    g.add([wlg([], 'wV28', prev=[o.name for o in op_RV(28)])])
    wq = wvm([('Q', qt, n) for qt in range(2, 4) for n in range(4)], 'vQB', g.byname); wq.due = -5
    g.add([wq])
    g.reads(op_QR(2, Q, vQa, 0, 'vQB') + op_QR(3, Q, vQa, 4096, 'vQB'), 'wQB', pos[('PS', 0)] + 8)
    for o in g.ops:
        if o.kind == 'ds': o.earliest = None; o.R.remove('PA'); o.R += [f'PA{q}_{p}' for q in range(4) for p in range(2)]
    barp = pos[('QK', 35)] - 1
    g.spread(op_DMA('K', 11, None) + op_DMA('V', 10, None), 2, barp - 40)
    for k in order:
        if k[0] == 'RS':
            for qt in range(4): g.add(op_RS(7, qt))
            g.add(op_L())
        elif k[0] == 'PS':
            g.add(op_PS(k[1], QN if k[1] < 2 else Q, P(0, 0, 0)), 'wQB' if k[1] == 2 else None)
        elif k[0] == 'PV':
            b = k[1]
            if b > 28: g.reads(op_RV(b), f'wV{b}', pos[k])
            g.add(op_PV(b), f'wV{b}')
            ep = op_EPI(b - 28)
            for i, o in enumerate(ep): o.due = pos[k] + 16 + 4 + OPT['epi_len'] * i / len(ep)
            g.add(ep)
            if b % 2 == 1:
                R = (b - 28) // 2
                out = op_OR(R, 0) + op_OR(R, 1)
                for i, o in enumerate(out): o.due = pos[k] + 16 + 4 + OPT['epi_len'] * (0.5 + 0.5 * i / len(out))
                g.add(out)
        else:
            a = k[1]
            g.reads(op_RK(a), f'wK{a}', pos[k])
            if a > 32: g.add(op_SM(a - 33))
            if a == 35: g.barrier(8, barp, [f'wK{a}', 'wV31'])
            g.add(op_QK(a), f'wK{a}')
            if a == 32: g.add(op_MAX())
    g.reads(op_RK(36), None, total + 4)
    g.add(op_UPD())
    return g.ops

def seg_final():
    g = Seg()
    VFq = lambda u, Tb, h: [160, 176, 128, 144][u] + 8*Tb + 4*h
    x0 = P(0, 0, 0)
    vL, vI, vG, vW0, vW1, vS0, vS1, vX = [x0 + i for i in range(8)]
    va = lambda t, R, W: valu(t, [f'v{r}' for r in R], [f'v{W}'])
    adr = [va(f'v_and_b32 v{vI}, 15, v0', [], vI), va(f'v_bfe_u32 v{vG}, v0, 4, 2', [], vG),
           va(f'v_and_b32 v{vX}, 7, v0', [], vX), va(f'v_xor_b32 v{vX}, v{vX}, v{vG}', [vX, vG], vX),
           va(f'v_lshlrev_b32 v{vX}, 4, v{vX}', [vX], vX), va(f'v_lshl_add_u32 v{vX}, v{vI}, 8, v{vX}', [vX, vI], vX),
           va(f'v_add_u32 v{vW0}, s{sPA}, v{vX}', [vX], vW0), va(f'v_xor_b32 v{vW1}, 64, v{vW0}', [vW0], vW1),
           va(f'v_xor_b32 v{vL}, v{vI}, v{vG}', [vI, vG], vL), va(f'v_lshlrev_b32 v{vL}, 4, v{vL}', [vL], vL),
           va(f'v_lshl_add_u32 v{vS0}, v{vG}, 8, v{vL}', [vG, vL], vS0), va(f'v_xor_b32 v{vS1}, 64, v{vS0}', [vS0], vS1)]
    sm = op_SM(31)
    g.add([wlg([], 'wV0', prev=[o.name for o in op_RV(28)])])
    wq = wvm([('Q', qt, n) for qt in range(2, 4) for n in range(4)], 'PAw', g.byname); wq.earliest = 4
    g.add([wq])
    for u in range(1, 4):
        rv = op_RV(28 + u)
        for o, (Tb, h, jh) in zip(rv, [(a, b, c) for a in range(2) for b in range(2) for c in range(2)]):
            d = VFq(u, Tb, h) + 2*jh
            o.text = f'ds_read_b64_tr_b16 {ar(d,2)},' + o.text.split(',', 1)[1]; o.W = rng('a', d, 2)
            o.due = -20 + u
        g.add(rv); g.add([wlg(rv, f'wV{u}')])
    for i, o in enumerate(adr): o.due = 10
    g.add(adr)
    Lops = op_L()
    for qt in range(4):
        base = 18 * qt
        g.add(sm[6*qt:6*qt+6])
        g.add(op_RS(7, qt))
        g.add(Lops[3*qt:3*qt+3])
        for u in range(4):
            for Tb in range(2):
                for h in range(2):
                    m = mfma('v', O(2*u+Tb, qt), 'a', VFq(u, Tb, h), 'v', P(1, h, qt), False)
                    if qt == 0 and Tb == 0 and h == 0: m.R.append(f'wV{u}')
                    g.add([m])
        ep = []
        for u in range(4):
            a, b = O(2*u, qt), O(2*u+1, qt)
            for x in list(range(a, a+4)) + list(range(b, b+4)):
                ep.append(valu(f'v_mul_f32 v{x}, v{x}, v{vRL[qt]}', [f'v{x}', f'v{vRL[qt]}'], [f'v{x}']))
            for i, x in enumerate([a, a+2, b, b+2]):
                ep.append(valu(f'v_cvt_pk_bf16_f32 v{a+i}, v{x}, v{x+1}', [f'v{x}', f'v{x+1}'], [f'v{a+i}']))
            w_ = [vW0, vW1][u % 2]
            ep.append(Op('ds', f'ds_write_b128 v{w_}, {vr(a,4)} offset:{(qt%2)*4096 + (u//2)*128}',
                         R=rng('v', a, 4) + [f'v{w_}', 'PAw'], W=[f'PB{qt%2}_{u}'], name=('OW', u, qt)))
        st = lambda n: OST(qt // 2, 4*(qt % 2) + n)
        rd = [Op('ds', f'ds_read_b128 {ar(st(n),4)}, v{vRd} offset:{(qt%2)*4096 + n*1024}',
                 R=[f'v{vRd}'] + [f'PB{qt%2}_{u}' for u in range(4)], W=rng('a', st(n), 4), name=('OR', qt, n)) for n in range(4)]
        ep += rd + [wlg(rd, f'wO{qt}')]
        if qt == 2:
            ep += [va(f'v_add_u32 v{x}, s46, v{x}', [x], x) for x in (vS0, vS1)]
        for n in range(4):
            s_ = [vS0, vS1][n % 2]
            ep.append(Op('vst', f'buffer_store_dwordx4 {ar(st(n),4)}, v{s_}, {srd(sO)}, s{sOo[qt%2]} offen offset:{n*1024} {OPT["last_flags"]}'.rstrip(),
                         R=rng('a', st(n), 4) + [f'v{s_}', f'wO{qt}'], W=[], name=('O', qt, n)))
        for i, o in enumerate(ep):
            o.due = base + 8 + OPT['fin_len'] * i / len(ep) + (OPT['fin_st'] * (1 + o.name[2]) if o.kind == 'vst' else 0)
            if o.kind == 'vst': o.earliest = o.due - 1
            if o.kind == 'wlg': o.due = None
        g.add(ep)
    return g.ops

def seg_first(qt, qr, dmas):
    g = Seg()
    g.add(qr); g.add([wlg(qr, 'wq')])
    g.add(op_PS(qt, Q, O(4, 0)), 'wq')
    tmp = lambda kt: S(1, qt) if kt == 3 else O(kt, qt)
    for kt in range(4):
        g.add([mfma('v', tmp(kt), 'a', 128 + 16*kt + 4*ks, 'a', Q(qt, ks), ks == 0) for ks in range(4)])
    s = tmp(0); n = vNM[qt]; t, u = n + 1, n + 2
    mx = lambda d, a, b: valu(f'v_max_f32 v{d}, v{a}, v{b}', [f'v{a}', f'v{b}'], [f'v{d}'])
    mv = lambda d, a: valu(f'v_mov_b32 v{d}, v{a}', [f'v{a}'], [f'v{d}'])
    g.add([valu(f'v_max3_f32 v{t}, v{s}, v{s+1}, v{s+2}', rng('v', s, 3), [f'v{t}']), mx(t, t, s+3),
           mv(u, t), perm(16, t, u), mx(t, t, u), mv(u, t), perm(32, t, u), mx(t, t, u),
           valu(f'v_sub_f32 v{n}, {"s47" if qt >= 2 else "0"}, v{t}', [f'v{t}'], [f'v{n}'])])
    for kt in range(4):
        s = tmp(kt)
        for r in range(4): g.add([valu(f'v_add_f32 v{s+r}, v{s+r}, v{n}', [f'v{s+r}', f'v{n}'], [f'v{s+r}'])])
        if kt == 3: break
        for r in range(4): g.add([valu(f'v_exp_f32 v{s+r}, v{s+r}', [f'v{s+r}'], [f'v{s+r}'], kind='trans')])
        p = P(0, kt // 2, qt) + 2*(kt % 2)
        for i in range(2): g.add([valu(f'v_cvt_pk_bf16_f32 v{p+i}, v{s+2*i}, v{s+2*i+1}', [f'v{s+2*i}', f'v{s+2*i+1}'], [f'v{p+i}'])])
    g.add([mv(n + i, n) for i in range(1, 4)])
    if dmas: g.spread(dmas, 0, 8)
    return g.ops

def resolve_waits(seqs):
    res = {}
    for kind, kinds, fmt, mx in (('wvm', ('dma', 'vld', 'vst'), 'vmcnt', 63), ('wlg', ('ds',), 'lgkmcnt', 15)):
        hist = []
        for si, sq in enumerate(seqs):
            for o in sq:
                if o.kind in kinds: hist.append(o.name)
                elif o.kind == kind:
                    last = max(len(hist) - 1 - hist[::-1].index(x) for x in o.prev_targets if x in hist)
                    res.setdefault(o, []).append(len(hist) - 1 - last)
        for o, l in res.items():
            if o.kind == kind: o.text = f's_waitcnt {fmt}({min(min(l), mx)})'
    return res

def lines(ops): return ''.join('    ' + o.text + '\n' for o in ops)
def padded(ops):
    build_deps(ops)
    out = []
    for o in ops:
        need = 0
        for p, d in o.preds.items():
            need = max(need, d - (len(out) - p.pos - 1))
        for _ in range(need): out.append(Op('salu', 's_nop 0'))
        o.pos = len(out); out.append(o)
    return out

def dbg_lines(ops, first):
    txt = ''; n = first
    for o in ops:
        txt += '    ' + o.text + '\n'
        if o.kind == 'bar':
            txt += f'    s_memtime s[{78+2*n}:{79+2*n}]\n'; n += 1
    return txt, n
DUMP = '    s_memtime s[96:97]\n    s_waitcnt lgkmcnt(0)\n' + ''.join(
    f'    v_writelane_b32 v38, s{78+2*i}, {i}\n' for i in range(11)) + \
    '    s_mov_b64 exec, 0xffff\n    buffer_store_dword v38, v39, s[60:63], s59 offen\n    s_mov_b64 exec, -1\n    s_add_u32 s59, s59, 64\n'

def main():
    segs = {}
    for nme, ops in (('A', seg_A()), ('B', seg_B()), ('D', seg_final())):
        segs[nme], stats = schedule(ops, OPT['ds_lead'], OPT['ds_lat'], OPT['vm_space'], nop_win=(OPT['nopw'] if nme == 'A' else 10000))
        print(nme, stats, file=sys.stderr)
    A = []
    w = A.append
    WARM1 = '''    s_getpc_b64 s[94:95]
L_pc:
    s_bfe_u32 s64, s2, 0x20003            ; (wg >> 3) & 3
    s_lshl_b32 s64, s64, 13
    v_lshlrev_b32 v28, 7, v0
    v_cmp_lt_u32 vcc, 63, v0
    v_mov_b32 v29, s64
    s_nop 0
    v_cndmask_b32 v29, 0, v29, vcc
    v_add_u32 v28, v28, v29
    v_min_u32 v28, L_end-L_pc, v28
    v_cmp_gt_u32 vcc, 128, v0
    s_and_saveexec_b64 s[64:65], vcc
    s_cbranch_execz L_w1
    global_load_dword a255, v28, s[94:95]
L_w1:
    s_mov_b64 exec, -1
''' if OPT['warm'] else ''
    w(f'''; GQA attention forward, B=16 Hq=32 Hkv=16 Sq=496 Sk=512 D=128, bf16.  Generated by gen/gen.py (own generator).
; 256 persistent workgroups x 4 waves; each wave 64 q rows; K/V tiles streamed through an LDS ring by LDS-DMA.
; Softmax reference point: max over the row's first 16 keys; a run-time check on the row sum redoes the rows
; @launch grid=(256,1,1) block=(256,1,1) lds=163840
.amdgcn_target "amdgcn-amd-amdhsa--gfx950"
.text
.globl {NAME}
.p2align 8
.type {NAME},@function
{NAME}:
    s_cmp_ge_u32 s2, 256
    s_cbranch_scc1 L_end
{'    s_memtime s[100:101]' if OPT['debug'] else ''}
    s_load_dwordx4 s[56:59], s[0:1], 0
    s_load_dwordx4 s[60:63], s[0:1], 16
{WARM1}    v_lshrrev_b32 v20, 6, v0
    v_and_b32 v21, 63, v0                 ; lane
    v_readfirstlane_b32 s42, v20          ; wave
    v_and_b32 v22, 15, v21                ; i
    v_lshrrev_b32 v23, 4, v21             ; g
    v_lshrrev_b32 v26, 2, v22             ; i/4
    v_and_b32 v27, 3, v21                 ; i%4
    ; DMA lane part: (i/4)*256 + g*64 + ((i%4)^f(n))*16
    v_lshlrev_b32 v30, 8, v26
    v_lshl_add_u32 v30, v23, 6, v30
    v_lshl_add_u32 v{vKd[0]}, v27, 4, v30
    v_xor_b32 v{vKd[1]}, 48, v{vKd[0]}
    v_xor_b32 v{vKd[2]}, 32, v{vKd[0]}
    v_xor_b32 v{vKd[3]}, 16, v{vKd[0]}
    s_and_b32 s43, s2, 7                  ; xcd
    s_lshr_b32 s44, s2, 3
    s_lshr_b32 s45, s44, 2                ; group
    s_and_b32 s44, s44, 3                 ; qb
    s_lshl_b32 s43, s43, 5
{'    s_lshl_b32 s45, s45, 2' if OPT['pst'] == 1 else ''}
    s_add_u32 s43, s43, s45               ; pair0
    s_lshl_b32 s{sW4k}, s42, 12
    s_lshl_b32 s{sKVn}, s43, 17
    s_add_u32 s{sKVn}, s{sKVn}, s{sW4k}
    s_mul_i32 s45, s43, {PAIRQ}
    s_lshl_b32 s46, s44, 16
    s_add_u32 s45, s45, s46
    s_lshl_b32 s46, s42, 14
    s_add_u32 s{sQn[0]}, s45, s46
    s_add_u32 s{sQn[1]}, s{sQn[0]}, 4096
    s_lshl_b32 s{sPA}, s42, 13
    s_add_u32 s{sPA}, s{sPA}, 131072
    s_lshl_b32 s46, s44, 2
    s_add_u32 s46, s46, s42
    s_cmp_eq_u32 s46, 15
    s_cselect_b32 s46, 0x40000000, 8192
    s_cselect_b32 s47, 0xff800000, 0
    s_cselect_b32 s45, 0, 8192
    s_cselect_b32 s{sQB+2}, 0, {QBYTES}
    s_add_u32 s{sQn[2]}, s{sQn[0]}, s45
    s_add_u32 s{sQn[3]}, s{sQn[1]}, s45
    s_mov_b32 s{sQ+2}, {QBYTES}
    s_mov_b32 s{sQ+3}, 0x20000
    s_mov_b32 s{sQB+3}, 0x20000
    s_mov_b32 s{sKn+2}, {KBYTES}
    s_mov_b32 s{sKn+3}, 0x20000
    s_mov_b32 s{sVn+2}, {KBYTES}
    s_mov_b32 s{sVn+3}, 0x20000
    s_waitcnt lgkmcnt(0)
    s_mov_b32 s{sKn}, s58
    s_mov_b32 s{sKn+1}, s59
    s_mov_b32 s{sQ}, s56
    s_mov_b32 s{sQ+1}, s57
    s_mov_b32 s{sQB}, s56
    s_mov_b32 s{sQB+1}, s57
    s_mov_b32 s{sVn}, s60
    s_mov_b32 s{sVn+1}, s61
''')
    if OPT['debug']:
        w('''    s_memrealtime s[98:99]
    s_waitcnt lgkmcnt(0)
    s_mov_b32 s67, s98
''')
    QTMP = [None, None, VBASE + 3*16384, 3*16384]
    pro = op_DMA('K', 8, None)
    pro += op_QD(0, f's_add_u32 m0, s{sPA}, 0') + op_QD(1, f's_add_u32 m0, s{sPA}, 4096')
    pro += op_QD(2, f's_add_u32 m0, s{sW4k}, {QTMP[2]}') + op_QD(3, f's_add_u32 m0, s{sW4k}, {QTMP[3]}')
    pro = padded(pro)
    w(lines(pro))
    w(f'''    ; remaining setup under the load latency
    s_mov_b32 s{sK}, s58
    s_mov_b32 s{sK+1}, s59
    s_mov_b32 s{sK+2}, {KBYTES}
    s_mov_b32 s{sK+3}, 0x20000
    s_mov_b32 s{sV}, s60
    s_mov_b32 s{sV+1}, s61
    s_mov_b32 s{sV+2}, {KBYTES}
    s_mov_b32 s{sV+3}, 0x20000
    s_mov_b32 s{sO}, s62
    s_mov_b32 s{sO+1}, s63
    s_mov_b32 s{sO+2}, {QBYTES}
    s_mov_b32 s{sO+3}, 0x20000
    s_mov_b32 s{sOP}, s62
    s_mov_b32 s{sOP+1}, s63
    s_mov_b32 s{sOP+3}, 0x20000
    s_mov_b32 s{sOo[0]}, 0
    s_mov_b32 s{sOo[1]}, 0
    v_sub_u32 v30, 0, v26
    v_and_b32 v30, 3, v30                 ; f(i/4)
    v_xor_b32 v30, v30, v23
    v_lshlrev_b32 v30, 4, v30
    v_lshl_add_u32 v30, v27, 6, v30
    v_lshl_add_u32 v{vKa}, v26, 10, v30
    v_add_u32 v{vQa}, s{sPA}, v{vKa}
    v_lshlrev_b32 v30, 10, v23
    v_lshl_add_u32 v30, v26, 6, v30
    v_lshl_add_u32 v30, v27, 4, v30
    v_add_u32 v{vVa}, {VBASE}, v30
{'    v_and_b32 v30, 16, v21' + chr(10) + '    v_lshrrev_b32 v30, 1, v30' + chr(10) + f'    v_add_u32 v{vVa}, v{vVa}, v30' if 'conf' in OPT['abl'] else ''}
    ; O staging: write addr = PA + i*128 + ((g ^ (i&7))*16); read addr = PA + lane*16; store lane part = (l/8)*256 + ((l%8)^(l/8))*16
    v_and_b32 v30, 7, v21
    v_xor_b32 v31, v30, v23
    v_lshlrev_b32 v31, 4, v31
    v_lshl_add_u32 v31, v22, 7, v31
    v_add_u32 v{vWr[0]}, s{sPA}, v31
    v_xor_b32 v{vWr[1]}, 64, v{vWr[0]}
    v_lshlrev_b32 v31, 4, v21
    v_add_u32 v{vRd}, s{sPA}, v31
    v_lshrrev_b32 v31, 3, v21
    v_xor_b32 v30, v30, v31
    v_lshlrev_b32 v30, 4, v30
    v_lshl_add_u32 v{vOlo}, v31, 8, v30
    v_add_u32 v{vOhi}, s46, v{vOlo}
    v_mov_b32 v30, s47
    v_cmp_lt_u32 vcc, 31, v21
    v_mov_b32 v31, 0x3f803f80
    s_mov_b32 s{sC}, {hex(f32(CSCALE))}
    v_cndmask_b32 v{vBias}, 0, v30, vcc
    s_mov_b32 s{sNC}, {hex(f32(-CSCALE))}
    s_mov_b32 s{sThr}, {hex(f32(2.0**64) if not OPT['force_slow'] else f32(-1.0))}
    s_mov_b32 s{sB}, -1
    s_mov_b32 s{sFlag}, 0
    s_mov_b64 s[{sCmp[0]}:{sCmp[0]+1}], 0
    s_mov_b64 s[{sCmp[1]}:{sCmp[1]+1}], 0
    s_mov_b64 s[{sCmp[2]}:{sCmp[2]+1}], 0
    s_mov_b64 s[{sCmp[3]}:{sCmp[3]+1}], 0
    v_accvgpr_write_b32 a{ONES}, v31
    v_accvgpr_write_b32 a{ONES+1}, v31
    v_accvgpr_write_b32 a{ONES+2}, v31
    v_accvgpr_write_b32 a{ONES+3}, v31
    v_add_u32 v{vX0}, s{sW4k}, v{vKa}
    v_add_u32 v{vX1}, {VBASE}, v{vX0}
    ; scale/selection matrices: lane (g,i) is live iff g == i/4; element i%4 of a 4-element half
    v_and_b32 v30, 1, v21
    v_lshlrev_b32 v30, 4, v30
    v_mov_b32 v31, {CHI}
    v_mov_b32 v28, {CLO}
    v_lshlrev_b32 v31, v30, v31
    v_lshlrev_b32 v28, v30, v28
    v_lshrrev_b32 v30, 1, v22             ; i/2
    v_lshlrev_b32 v29, 1, v23             ; 2g
    v_cmp_eq_u32 vcc, v30, v29
    v_add_u32 v29, 1, v29
    v_accvgpr_write_b32 a{SEL}, 0
    v_cndmask_b32 v24, 0, v31, vcc
    v_cndmask_b32 v25, 0, v28, vcc
    v_cmp_eq_u32 vcc, v30, v29
    v_accvgpr_write_b32 a{SEL+2}, v24
    v_accvgpr_write_b32 a{SEL+6}, v25
    v_cndmask_b32 v24, 0, v31, vcc
    v_cndmask_b32 v25, 0, v28, vcc
    v_accvgpr_write_b32 a{SEL+1}, 0
    v_accvgpr_write_b32 a{SEL+4}, 0
    v_accvgpr_write_b32 a{SEL+5}, 0
    v_accvgpr_write_b32 a{SEL+8}, 0
    v_accvgpr_write_b32 a{SEL+9}, 0
    v_accvgpr_write_b32 a{SEL+3}, v24
    v_accvgpr_write_b32 a{SEL+7}, v25
''')
    w(lines(op_UPD()))
    stamp = lambda i: [Op('salu', f's_memtime s[{78+2*i}:{79+2*i}]')] if OPT['debug'] else []
    qr = [op_QR(0, Q, vQa, 0, 'x'), op_QR(1, Q, vQa, 4096, 'x'), op_QR(2, Q, vX1, 3*16384, 'x'), op_QR(3, Q, vX0, 3*16384, 'x')]
    names = lambda t, *idx: [(t, i, n) for i in idx for n in range(4)]
    F = stamp(0) + [wvm(names('K', 0), 'x', {})] + stamp(1) + [Op('salu', 's_barrier')] + stamp(2)
    F += [Op('ds', f'ds_read_b128 {ar(128 + 16*kt + 4*ks, 4)}, v{vKa} offset:{kt*4096 + ks*256}', name=('RK0', kt, ks)) for kt in range(4) for ks in range(4)]
    F += padded(op_DMA('K', 1, None))
    fd = [op_DMA('V', 0, None), op_DMA('K', 2, None), op_DMA('V', 1, None), op_DMA('K', 3, None) + op_DMA('V', 2, None)]
    if OPT['fo'] == 1: fd = [fd[0], [], [], fd[1] + fd[2]]
    for qt in range(4):
        F += [wvm(names('Q', qt), 'x', {})] + stamp(3 + qt)
        sg, stats = schedule(seg_first(qt, qr[qt], None), OPT['ds_lead'], OPT['ds_lat'], 1)
        F += sg + (stamp(7) if qt == 3 else []) + padded(fd[qt])
    F += [wvm(names('K', 1) + names('V', 0), 'x', {}), Op('bar', 's_barrier')] + op_RK(4)
    if OPT['fo'] == 1: F += padded(op_DMA('K', 3, None) + op_DMA('V', 2, None))
    segs['F'] = F
    sq = [pro, segs['F'], []] + [segs['A'], segs['B']] * 3 + [segs['A'], segs['D']]
    r = resolve_waits(sq)
    print([(o.text, l) for o, l in r.items() if o.kind == 'wvm'], file=sys.stderr)
    if OPT['debug']:
        w('''    s_load_dwordx2 s[60:61], s[0:1], 40
    s_mov_b32 s62, 0x1000000
    s_mov_b32 s63, 0x20000
    s_lshl_b32 s59, s2, 14
    s_add_u32 s59, s59, s39
    s_lshr_b32 s59, s59, 3
    v_lshlrev_b32 v39, 2, v21
    s_waitcnt lgkmcnt(0)
''')
    if 'rs' in OPT['abl']:
        segs['A'] = [o if not (o.kind == 'mfma' and o.text.split()[1].startswith('a[')) else Op('salu', 's_nop 0') for o in segs['A']]
    if 'dma' in OPT['abl']:
        for sg in 'AB':
            segs[sg] = [o if not (o.kind == 'dma' and o.name[0] in 'KV') else Op('salu', 's_nop 0') for o in segs[sg]]
    if 'ds' in OPT['abl'].split():
        for sg in 'AB':
            segs[sg] = [o if not (o.kind == 'ds' and o.name[0] in ('RK', 'RV')) else Op('salu', 's_nop 0') for o in segs[sg]]
    upd = 'L_next:\n' + ('' if OPT['updin'] else lines(op_UPD()))
    pad = lambda n: [Op('salu', 'x') for _ in range(n)]
    bad = check_hazards(segs['F'] + segs['A'] + pad(2) + segs['B'] + pad(1) + segs['A'] + pad(2) + segs['D'])
    assert bad == 0, bad
    if not OPT['debug']:
        w(lines(segs['F']))
        w(lines(sq[2]))
        w(upd)
        w(lines(segs['A']))
        w(f'    s_cmp_eq_u32 s{sB}, 3\n    s_cbranch_scc1 L_final\n')
        w(lines(segs['B']))
        w('    s_branch L_next\nL_final:\n')
        w(lines(segs['D']))
    else:
        w(dbg_lines(segs['F'], 8)[0]); w(DUMP)
        w(lines(sq[2]))
        w(upd)
        w('    s_memtime s[78:79]\n    s_memrealtime s[98:99]\n')
        w(dbg_lines(segs['A'], 1)[0])
        w(f'    s_cmp_eq_u32 s{sB}, 3\n    s_cbranch_scc1 L_final\n')
        w(dbg_lines(segs['B'], 8)[0]); w(DUMP)
        w('    s_branch L_next\nL_final:\n')
        w(lines(segs['D'])); w('    s_memtime s[94:95]\n'); w(DUMP)
        w('''    s_waitcnt vmcnt(0)
    s_memtime s[78:79]
    s_memrealtime s[98:99]
    s_waitcnt lgkmcnt(0)
    v_mov_b32 v36, s78
    v_mov_b32 v37, s98
    v_mov_b32 v38, s100
    v_mov_b32 v39, s67
    s_mov_b64 exec, 1
    buffer_store_dwordx4 v[36:39], off, s[60:63], s59
    s_mov_b64 exec, -1
''')
    w(f'''    s_or_b64 s[{sCmp[0]}:{sCmp[0]+1}], s[{sCmp[0]}:{sCmp[0]+1}], s[{sCmp[1]}:{sCmp[1]+1}]
    s_or_b64 s[{sCmp[2]}:{sCmp[2]+1}], s[{sCmp[2]}:{sCmp[2]+1}], s[{sCmp[3]}:{sCmp[3]+1}]
    s_or_b64 s[{sCmp[0]}:{sCmp[0]+1}], s[{sCmp[0]}:{sCmp[0]+1}], s[{sCmp[2]}:{sCmp[2]+1}]
    s_cselect_b32 s42, 8, 0
    s_or_b32 s{sFlag}, s{sFlag}, s42
''')
    w(slow_path())
    w(f'''L_end:
    s_endpgm
.section .rodata,"a"
.p2align 6
.amdhsa_kernel {NAME}
  .amdhsa_next_free_vgpr 512
  .amdhsa_next_free_sgpr {102 if OPT['debug'] else 96}
  .amdhsa_accum_offset 256
  .amdhsa_group_segment_fixed_size 0
  .amdhsa_kernarg_size 48
  .amdhsa_user_sgpr_count 2
  .amdhsa_user_sgpr_kernarg_segment_ptr 1
  .amdhsa_system_sgpr_workgroup_id_x 1
.end_amdhsa_kernel
''')
    open(sys.argv[1], 'w').write(''.join(A))

def slow_path():
    raw = lambda t: Op('salu', t)
    T = []
    w = T.append
    sPair, sKoff, sJ = 56, 57, 58
    vF, vFh, vTr = 36, 37, 38
    w(f'''    s_cmp_eq_u32 s{sFlag}, 0
    s_cbranch_scc1 L_end
    s_waitcnt vmcnt(0) lgkmcnt(0)
    s_mov_b32 s{sQ+2}, {QBYTES}
    s_sub_u32 s42, s{sPA}, {VBASE}
    v_add_u32 v{vTr}, s42, v{vVa}
    v_and_b32 v20, 15, v0
    v_bfe_u32 v21, v0, 4, 2
    v_lshlrev_b32 v20, 8, v20
    v_lshl_add_u32 v{vF}, v21, 4, v20
    v_add_u32 v{vFh}, s46, v{vF}
    s_mov_b32 s{sB}, 0
L_slow_blk:
    s_lshr_b32 s42, s{sFlag}, s{sB}
    s_and_b32 s42, s42, 1
    s_cmp_eq_u32 s42, 0
    s_cbranch_scc1 L_slow_next
    s_mul_i32 s42, s{sB}, {OPT['pst']}
    s_add_u32 s{sPair}, s43, s42
    s_mul_i32 s42, s{sPair}, {PAIRQ}
    s_lshl_b32 s45, s44, 16
    s_add_u32 s42, s42, s45
    s_lshl_b32 s45, s{sW4k}, 2
    s_add_u32 s{sOo[0]}, s42, s45
    s_add_u32 s{sOo[1]}, s{sOo[0]}, 4096
''')
    for qt in range(4):
        for ks in range(4):
            w(f'    buffer_load_dwordx4 {ar(Q(qt,ks),4)}, v{vF if qt < 2 else vFh}, {srd(sQ)}, s{sOo[qt%2]} offen offset:{ks*64}\n')
    for qt in range(4): w(f'    v_mov_b32 v{vT[qt]}, 0xff800000\n')
    w(f'''    s_lshl_b32 s{sKoff}, s{sPair}, 17
    s_mov_b32 s{sJ}, 0
L_slow_p1:
''')
    def kload(buf):
        return [raw(f'buffer_load_dwordx4 {ar(KF(buf,ks),4)}, v{vF}, {srd(sK)}, s{sKoff} offen offset:{ks*64}') for ks in range(4)]
    w(lines(kload(0)))
    w('    s_waitcnt vmcnt(0)\n')
    l = op_QK(0, True)
    for qt in range(4):
        s = S(0, qt)
        l.append(valu(f'v_max3_f32 v{vT[qt]}, v{s}, v{s+1}, v{vT[qt]}', [f'v{s}', f'v{s+1}', f'v{vT[qt]}'], [f'v{vT[qt]}']))
        l.append(valu(f'v_max3_f32 v{vT[qt]}, v{s+2}, v{s+3}, v{vT[qt]}', [f'v{s+2}', f'v{s+3}', f'v{vT[qt]}'], [f'v{vT[qt]}']))
    w(lines(padded(l)))
    w(f'''    s_add_u32 s{sKoff}, s{sKoff}, 4096
    s_add_u32 s{sJ}, s{sJ}, 1
    s_cmp_lt_u32 s{sJ}, 32
    s_cbranch_scc1 L_slow_p1
''')
    w(lines(padded(op_reduce(True))))
    for i in range(128): w(f'    v_mov_b32 v{128+i}, 0\n')
    for i in range(16): w(f'    v_accvgpr_write_b32 a{RS(0)+i}, 0\n')
    w(f'''    s_lshl_b32 s{sKoff}, s{sPair}, 17
    s_mov_b32 s{sJ}, 0
L_slow_p2:
''')
    w(f'    s_mov_b32 m0, s{sPA}\n    s_nop 0\n')
    for n in range(4): w(f'    buffer_load_dwordx4 v{vKd[0]}, {srd(sV)}, s{sKoff} offen offset:{n*1024} lds\n')
    w(lines(kload(0)))
    w(f'    s_add_u32 s{sKoff}, s{sKoff}, 4096\n    s_add_u32 m0, s{sPA}, 4096\n    s_nop 0\n')
    for n in range(4): w(f'    buffer_load_dwordx4 v{vKd[0]}, {srd(sV)}, s{sKoff} offen offset:{n*1024} lds\n')
    w(lines(kload(1)))
    w(f'    s_add_u32 s{sKoff}, s{sKoff}, 4096\n    s_waitcnt vmcnt(0)\n')
    l = op_QK(0, True) + op_SM(0, True) + op_QK(1, True) + op_SM(1, True)
    for qt in range(4): l.append(mfma('a', RS(qt), 'a', ONES, 'v', P(0, 0, qt), False))
    w(lines(padded(l)))
    for u in range(4):
        for Tb in range(2):
            for jh in range(2):
                d = VF(0, Tb, 0) + 2*jh
                w(f'    ds_read_b64_tr_b16 {ar(d,2)}, v{vTr} offset:{jh*4096 + u*256 + Tb*8}\n')
        w('    s_waitcnt lgkmcnt(0)\n')
        for Tb in range(2):
            for qt in range(4):
                w('    ' + mfma('v', O(2*u+Tb, qt), 'a', VF(0, Tb, 0), 'v', P(0, 0, qt), False).text + '\n')
        w('    s_nop 7\n')
    w(f'''    s_add_u32 s{sJ}, s{sJ}, 1
    s_cmp_lt_u32 s{sJ}, 16
    s_cbranch_scc1 L_slow_p2
    s_nop 7
''')
    l = op_L()
    for u in range(4):
        l += op_EPI(u)
        if u % 2: l += op_OUT(u // 2)
    for o in l:
        if o.kind == 'wlg': o.text = 's_waitcnt lgkmcnt(0)'
    w(lines(padded(l)))
    w(f'''    s_waitcnt vmcnt(0)
L_slow_next:
    s_add_u32 s{sB}, s{sB}, 1
    s_cmp_lt_u32 s{sB}, 4
    s_cbranch_scc1 L_slow_blk
''')
    return ''.join(T)

main()
```

```python
import re, sys

DSW_COST = 20
VM_COST = 8
ST_COST = 8
PK_LEAD = 20
PK_MIN = 2
STRICT1 = True
BAR_EXCL = True
RESERVE = 0
VALU_KINDS = ('valu', 'trans', 'perm', 'pk')
NORM_KINDS = ('valu', 'trans', 'perm')
MEM_KINDS = ('ds', 'dma', 'vld', 'vst')
SALU_KINDS = ('salu', 'wlg', 'wvm', 'bar')

def rng(p, a, n):
    return [f'{p}{i}' for i in range(a, a + n)]

class Op:
    __slots__ = ('kind', 'text', 'R', 'W', 'C', 'due', 'earliest', 'targets', 'preds', 'succs', 'idx',
                 'pos', 'cyc', 'name', 'midx', 'extra', 'prev_targets')
    def __init__(self, kind, text, R=(), W=(), C=(), due=None, earliest=None, targets=None, name=None, after=()):
        self.kind = kind; self.text = text
        self.R = list(R); self.W = list(W); self.C = list(C)
        self.due = due; self.earliest = earliest
        self.targets = targets; self.prev_targets = None
        self.preds = {}; self.succs = []
        self.pos = None; self.cyc = None; self.name = name; self.midx = None
        self.extra = list(after)
    def cost(self):
        if self.kind == 'ds' and self.text.startswith('ds_write'): return DSW_COST
        if self.kind == 'dma': return VM_COST
        if self.kind == 'vst': return ST_COST
        return 8 if self.kind in ('trans', 'mfma', 'perm') else 4

def is_reg(r):
    return re.match(r'^[va]\d+$', r) is not None

def hz_raw(p, c, r):
    if r == 'm0':
        return 1 if c.kind == 'dma' else 0
    if not is_reg(r):
        if p.kind in VALU_KINDS and c.kind in MEM_KINDS: return 5
        if p.kind in VALU_KINDS and c.kind in VALU_KINDS: return 2
        if p.kind in VALU_KINDS: return 1
        return 0
    if p.kind == 'mfma':
        if c.kind == 'mfma':
            return 0 if (r in c.C and set(c.C) == set(p.W)) else 8
        return 8
    if p.kind in VALU_KINDS:
        if c.kind == 'mfma': return 2
        if c.kind == 'perm': return 2
        if p.kind == 'trans' and c.kind != 'trans': return 1
        return 0
    return 0
def hz_waw(p, c, r):
    if is_reg(r) and p.kind == 'mfma' and c.kind != 'mfma': return 8
    return 0
def hz_war(p, c, r):
    if not is_reg(r): return 0
    if p.kind == 'mfma' and r in p.C and c.kind in VALU_KINDS: return 3
    if p.kind == 'vst' and c.kind in VALU_KINDS: return 2
    if p.kind == 'vst': return 1
    if p.kind == 'ds' and p.text.startswith('ds_write') and c.kind in VALU_KINDS + ('mfma',): return 2
    return 0

def build_deps(ops):
    lastw = {}; readers = {}
    prev_m = None
    mi = 0
    for i, o in enumerate(ops):
        o.idx = i
        def add(p, d):
            if p is o: return
            o.preds[p] = max(o.preds.get(p, 0), d)
        for r in o.R:
            if r in lastw: add(lastw[r], hz_raw(lastw[r], o, r))
        for r in o.W:
            if r in lastw: add(lastw[r], hz_waw(lastw[r], o, r))
            for p in readers.get(r, []): add(p, hz_war(p, o, r))
        for p in o.extra: add(p, 0)
        if o.targets:
            for p in o.targets: add(p, 0)
        if o.kind == 'mfma':
            if prev_m is not None: add(prev_m, 0)
            prev_m = o; o.midx = mi; mi += 1
        for r in o.R: readers.setdefault(r, []).append(o)
        for r in o.W:
            lastw[r] = o; readers[r] = []
    for o in ops:
        for p in o.preds: p.succs.append(o)
    return mi

def compute_due(ops, nm, ds_lead):
    INF = nm + 1000
    for o in reversed(ops):
        if o.kind == 'mfma':
            o.due = o.midx; continue
        d = INF
        for s in o.succs:
            sd = s.due
            if s.kind == 'wlg' and o.kind == 'ds': sd -= ds_lead
            elif s.kind != 'mfma': sd -= 0.25
            d = min(d, sd)
        if o.due is not None: d = min(d, o.due)
        o.due = d

def schedule(ops, ds_lead=10, ds_lat=160, vm_space=3, pace_end=None, nop_win=1000):
    nm = build_deps(ops)
    compute_due(ops, nm, ds_lead)
    mf = [o for o in ops if o.kind == 'mfma']
    pend = [o for o in ops if o.kind != 'mfma']
    out = []
    st = dict(cyc=0, lastvm=-100, k=-1, lds_out=[])
    def emit(o):
        o.pos = len(out); o.cyc = st['cyc']; out.append(o)
        if o.kind in ('dma', 'vld', 'vst'): st['lastvm'] = st['k']
    def ready(o):
        n = len(out)
        for p, d in o.preds.items():
            if p.pos is None or n - p.pos - 1 < d: return False
        return True
    def allowed(o):
        if o.earliest is not None and st['k'] < o.earliest: return False
        if o.kind in ('dma', 'vld', 'vst') and st['k'] - st['lastvm'] < vm_space and o.due > st['k'] + 1: return False
        return True
    def cands(kinds, force=False):
        c = [o for o in pend if o.kind in kinds and ready(o) and (force or allowed(o))]
        c.sort(key=lambda o: (o.due, o.idx))
        return c
    def take(o):
        pend.remove(o); emit(o)
        if o.kind not in SALU_KINDS: st['fill'] += o.cost()
    def nop():
        o = Op('salu', 's_nop 0'); emit(o); st['cyc'] += 4
    def wait_ok(o):
        if o.kind == 'wlg':
            if o.due <= st['k'] + 1.01: return True
            return st['cyc'] - max([t.cyc for t in o.targets] or [-1000]) >= ds_lat and o.due <= st['k'] + 6
        if o.kind in ('wvm', 'bar'):
            return o.earliest is None or st['k'] >= o.earliest
        return True
    def needed_closure(m):
        seen = set(); stack = [m]
        while stack:
            x = stack.pop()
            for p in x.preds:
                if p.pos is None and p not in seen and p.kind != 'mfma':
                    seen.add(p); stack.append(p)
        return seen
    stats = dict(under=0, over=0, pen=0, nops=0)
    total_fill = sum(o.cost() for o in pend if o.kind not in SALU_KINDS)
    st['fill'] = 0
    pe = pace_end or nm
    def chained(k):
        return k + 1 < nm and mf[k+1].C and set(mf[k+1].C) == set(mf[k].W)
    def fill_gap():
        used = 0; valu_seen = False
        ch = chained(st['k'])
        c = [o for o in cands(SALU_KINDS) if wait_ok(o)]
        c = [o for o in c if not (o.kind == 'bar' and ch and BAR_EXCL and o.due > st['k'] - 3)]
        free_slot = not c
        if c:
            take(c[0])
            if c[0].kind == 'bar' and BAR_EXCL: return 8, False
        while used < 8:
            c = cands(NORM_KINDS + (MEM_KINDS if not valu_seen else ()))
            if ch: c = [o for o in c if o.cost() <= 8 or o.due <= st['k'] - 4]
            if used > 0:
                c = [o for o in c if o.cost() + used <= 8]
                nv = [o for o in c if o.kind in VALU_KINDS or o.due <= st['k'] - 3]
                if nv or STRICT1: c = nv
            if not c:
                if any(o.kind in NORM_KINDS and o.due <= st['k'] + nop_win and all(p.pos is not None for p in o.preds) and allowed(o) and not ready(o) for o in pend):
                    emit(Op('salu', 's_nop 0')); stats['nops'] += 1
                    if free_slot and used == 0: free_slot = False
                    else:
                        used += 4; st['cyc'] += 4; stats['under'] += 4
                    continue
                break
            o = c[0]
            if used == 0:
                if not ch:
                    big = [x for x in c if x.cost() > 8]
                    if big: o = big[0]
                small = [x for x in c if x.cost() == 4]
                if o.cost() == 4:
                    if len(small) < 2:
                        ex = [x for x in c if x.cost() == 8]
                        if ex and o.due > st['k'] + 2: o = ex[0]
                    else:
                        a, b = small[0], small[1]
                        if a.kind in VALU_KINDS and b.kind in MEM_KINDS: o = b
            take(o); used += o.cost(); st['cyc'] += o.cost()
            if o.kind in VALU_KINDS: valu_seen = True
        if not ch:
            j = st['k'] + 1
            while chained(j): j += 1
            tgt = total_fill * min(1.0, j / pe) - 8 * (j - st['k'] - 1)
            while True:
                pk = cands(('pk',))
                behind = st['fill'] + 2 < tgt
                if used >= PK_LEAD and pk: o = pk[0]
                else:
                    c = cands(NORM_KINDS)
                    want = len(pk) >= PK_MIN and used < PK_LEAD and sum(x.cost() for x in c) >= PK_LEAD - used + 8 * (j - st['k'] - 1)
                    if not c or not (behind or want): break
                    if sum(x.cost() for x in c[1:]) < min(RESERVE, 8 * (nm - 1 - st['k'])): break
                    o = c[0]
                take(o); used += o.cost(); st['cyc'] += o.cost(); valu_seen = True
        return used, valu_seen
    used, valu_seen = 0, True
    gapstart = 0
    for k, m in enumerate(mf + [None]):
        while True:
            if m is None:
                if not pend: break
                need = set(pend)
            else:
                if ready(m): break
                need = needed_closure(m)
            c = [o for o in cands(VALU_KINDS + MEM_KINDS + SALU_KINDS, force=True) if o in need]
            if c:
                o = c[0]
                if o.kind == 'wlg' and st['cyc'] - max([t.cyc for t in o.targets] or [-1000]) < ds_lat:
                    alt = [x for x in c if x.kind != 'wlg'] or cands(VALU_KINDS)
                    if alt: o = alt[0]
            else:
                c2 = cands(VALU_KINDS) or [x for x in cands(SALU_KINDS) if wait_ok(x) and x.kind == 'salu']
                if c2: o = c2[0]
                else:
                    nop(); used += 4; stats['nops'] += 1; continue
            if o.kind == 'pk' and used < PK_LEAD and k > 0:
                alt = cands(NORM_KINDS)
                if alt: o = alt[0]
                else:
                    st['cyc'] += PK_LEAD - used; stats['under'] += PK_LEAD - used; used = PK_LEAD
            if o.kind in MEM_KINDS and valu_seen:
                st['cyc'] += 8; used += 8; stats['pen'] += 1
            take(o); used += o.cost(); st['cyc'] += o.cost()
            valu_seen = o.kind in VALU_KINDS or (valu_seen and o.kind not in MEM_KINDS)
        if k > 0:
            if used < 8:
                stats['under'] += 8 - used; st['cyc'] += 8 - used
            else: stats['over'] += used - 8
        if m is None: break
        st['k'] = k
        emit(m); st['cyc'] += 8
        used, valu_seen = fill_gap()
    stats['cycles'] = st['cyc']; stats['ninst'] = len(out)
    return out, stats

def check_hazards(seq):
    lastw = {}; readers = {}
    bad = 0
    for n, o in enumerate(seq):
        def chk(pn, p, d, what, r):
            nonlocal bad
            if n - pn - 1 < d:
                print(f'HAZARD {what} {r}: [{pn}] {p.text} -> [{n}] {o.text} need {d}', file=sys.stderr); bad += 1
        for r in o.R:
            if r in lastw: chk(*lastw[r], hz_raw(lastw[r][1], o, r), 'RAW', r)
        for r in o.W:
            if r in lastw: chk(*lastw[r], hz_waw(lastw[r][1], o, r), 'WAW', r)
            for pn, p in readers.get(r, []):
                if p is not o: chk(pn, p, hz_war(p, o, r), 'WAR', r)
        for r in o.R: readers.setdefault(r, []).append((n, o))
        for r in o.W:
            lastw[r] = (n, o); readers[r] = []
    return bad
```

```python
import sys, struct, math
import sched
from sched import *

OPT = dict(store_flags='nt', ds_lead=8, ds_lat=120, vm_space=3, debug=0, force_slow=0, q_flags='nt', kv_flags='nt',
           ds_sp=4, vshift=0, st_lo=10, st_hi=900, last_flags='nt', epi_len=20, warm=1, abl='', bou=1, pk=0, vmc=12, stc=20, vm_due=4, pkf=1, pkd=4, vm_sp=0, updin=1, fo=0, pst=1, strict=1, barx=1, qsp=0, stb=0, smq=3, q4=1, nopw=6, finq=1, fin_len=18, fin_st=4)
for a in sys.argv[2:]:
    k, v = a.split('=')
    OPT[k] = int(v) if v.lstrip('-').isdigit() else v.replace('+', ' ')

sched.STRICT1 = OPT['strict']; sched.BAR_EXCL = OPT['barx']; sched.VM_COST = OPT['vmc']; sched.ST_COST = OPT['stc']
NAME = 'standalone__gqa_softmax__near_ridge_kernel'
def bf16(x):
    u = struct.unpack('<I', struct.pack('<f', x))[0]
    return (u + 0x7fff + ((u >> 16) & 1)) >> 16
def unbf(h): return struct.unpack('<f', struct.pack('<I', h << 16))[0]
def f32(x): return struct.unpack('<I', struct.pack('<f', x))[0]
CSCALE = math.log2(math.e) / math.sqrt(128.0)
CHI = bf16(CSCALE); CLO = bf16(CSCALE - unbf(CHI))
QBYTES = 16*32*496*128*2
KBYTES = 16*16*512*128*2
PAIRQ = 992*256
PAIRK = 512*256

vKa, vVa, vOlo, vOhi = 1, 2, 3, 4
vKd = [5, 6, 7, 8]
vQa = 9
vBias = 10
vRd = 11
vWr = [12, 13]
vRL = [14, 15, 16, 17]
vNM = [20, 24, 28, 32]
vT = [21, 25, 29, 33]
vX0, vX1, vD0, vD1 = 36, 37, 38, 39
def S(buf, qt): return 40 + 4*qt if qt < 2 else 48 + 8*(qt - 2) + 4*buf
def P(par, h, qt): return 64 + 32*par + 16*h + 4*qt
def O(T, qt): return 128 + 16*T + 4*qt
def Q(qt, ks): return 16*qt + 4*ks
def QN(qt, ks): return 64 + 16*qt + 4*ks
def KF(buf, ks): return 128 + 16*buf + 4*ks
def VF(buf, Tb, h): return 160 + 16*buf + 8*Tb + 4*h
def RS(qt): return 192 + 4*qt
ONES = 208
SEL = 244
def OST(R, n): return (96 if R == 0 else 212) + 4*n
sQ, sK, sV, sO, sKn, sVn, sQB = 4, 8, 12, 16, 20, 24, 68
sKV, sKVn = 28, 29
sQn = [30, 31, 64, 65]
sOo = [32, 33]
sC, sNC, sThr, sB, sFlag, sW4k = 34, 35, 36, 37, 38, 39
sTK, sTV = 40, 41
sCmp = [48, 50, 52, 54]
sOP = 72
sOp = [76, 77]
sPA = 66
VBASE = 65536

def vr(a, n): return f'v[{a}:{a+n-1}]'
def ar(a, n): return f'a[{a}:{a+n-1}]'
def srd(a): return f's[{a}:{a+3}]'

def mfma(dp, d, ap, a, bp, b, zero, cin=None):
    cr = d if cin is None else cin
    zero = zero and cin is None
    c = '0' if zero else f'{dp}[{cr}:{cr+3}]'
    D = rng(dp, d, 4); C = [] if zero else rng(dp, cr, 4)
    return Op('mfma', f'v_mfma_f32_16x16x32_bf16 {dp}[{d}:{d+3}], {ap}[{a}:{a+3}], {bp}[{b}:{b+3}], {c}',
              R=rng(ap, a, 4) + rng(bp, b, 4) + C, W=D, C=C)
def valu(text, R, W, kind='valu', **kw): return Op(kind, text, R=R, W=W, **kw)

def op_RK(a):
    tile, kt = divmod(a, 4)
    slot = tile % 4
    l = []
    for ks in range(4):
        d = KF(a % 2, ks)
        l.append(Op('ds', f'ds_read_b128 {ar(d,4)}, v{vKa} offset:{slot*16384 + kt*4096 + ks*256}',
                    R=[f'v{vKa}', f'Krdy{tile}'], W=rng('a', d, 4), name=('RK', a % 32, ks)))
    return l
def op_RV(b):
    tile, u = divmod(b, 4)
    slot = tile % 4
    l = []
    for Tb in range(2):
        for h in range(2):
            for jh in range(2):
                d = VF(b % 2, Tb, h) + 2*jh
                off = slot*16384 + h*8192 + jh*4096 + u*256 + Tb*8
                l.append(Op('ds', f'ds_read_b64_tr_b16 {ar(d,2)}, v{vVa} offset:{off}',
                            R=[f'v{vVa}', f'Vrdy{tile}'], W=rng('a', d, 2), name=('RV', b % 32, Tb, h, jh)))
    return l
def op_QK(a, raw=False):
    l = []
    for qt in ([2, 3, 0, 1] if (a == 4 and OPT['q4'] and not raw) else range(4)):
        for i in range(4):
            ks = 3 - i if (OPT['bou'] and qt % 2) else i
            l.append(mfma('v', S(a % 2, qt), 'a', KF(a % 2, ks), 'a', Q(qt, ks), i == 0, vNM[qt] if (i == 0 and a % 32 and not raw) else None))
    return l
def op_PV(b):
    t, u = divmod(b, 4)
    l = []
    for Tb in range(2):
        for qt in range(4):
            for i in range(2):
                h = 1 - i if (OPT['bou'] and qt % 2) else i
                l.append(mfma('v', O(2*u+Tb, qt), 'a', VF(b % 2, Tb, h), 'v', P(t % 2, h, qt), t == 0 and i == 0))
    return l
def op_RS(t, qt):
    return [mfma('a', RS(qt), 'a', ONES, 'v', P(t % 2, h, qt), t == 0 and h == 0) for h in range(2)]
def op_SM(a, raw=False):
    t, kt = divmod(a, 4)
    l = []
    for qt in range(4):
        s = S(a % 2, qt)
        for r in range(4):
            if raw: l.append(valu(f'v_fma_f32 v{s+r}, v{s+r}, s{sC}, v{vNM[qt]}', [f'v{s+r}', f'v{vNM[qt]}'], [f'v{s+r}']))
            elif a == 0: l.append(valu(f'v_add_f32 v{s+r}, v{s+r}, v{vNM[qt]}', [f'v{s+r}', f'v{vNM[qt]}'], [f'v{s+r}']))
        for r in range(4):
            l.append(valu(f'v_exp_f32 v{s+r}, v{s+r}', [f'v{s+r}'], [f'v{s+r}'], kind='trans'))
        p = P(t % 2, kt // 2, qt) + 2*(kt % 2)
        for i in range(2):
            l.append(valu(f'v_cvt_pk_bf16_f32 v{p+i}, v{s+2*i}, v{s+2*i+1}', [f'v{s+2*i}', f'v{s+2*i+1}'], [f'v{p+i}']))
    return l
def op_PS(qt, src, tmp):
    l = []
    for ks in range(4):
        t = tmp + 8*ks
        for x in range(2):
            l.append(mfma('v', t + 4*x, 'a', SEL + 2 - 2*x, 'a', src(qt, ks), True))
            l.append(mfma('v', t + 4*x, 'a', SEL + 6 - 2*x, 'a', src(qt, ks), False))
        for i in range(4):
            l.append(valu(f'v_cvt_pk_bf16_f32 v{t+2*i}, v{t+2*i}, v{t+2*i+1}', [f'v{t+2*i}', f'v{t+2*i+1}'], [f'v{t+2*i}']))
            l.append(valu(f'v_accvgpr_write_b32 a{Q(qt,ks)+i}, v{t+2*i}', [f'v{t+2*i}'], [f'a{Q(qt,ks)+i}']))
    return l
def perm(n, a, b): return valu(f'v_permlane{n}_swap_b32 v{a}, v{b}', [f'v{a}', f'v{b}'], [f'v{a}', f'v{b}'], kind='perm')
def op_reduce(raw=False):
    t = vT; n = vNM
    mx = lambda d, a, b: valu(f'v_max_f32 v{d}, v{a}, v{b}', [f'v{a}', f'v{b}'], [f'v{d}'])
    mv = lambda d, a: valu(f'v_mov_b32 v{d}, v{a}', [f'v{a}'], [f'v{d}'])
    return [perm(16, t[0], t[1]), perm(16, t[2], t[3]), mx(t[0], t[0], t[1]), mx(t[2], t[2], t[3]),
            perm(32, t[0], t[2]), mx(t[0], t[0], t[2]),
            valu(f'v_fma_f32 v{n[0]}, v{t[0]}, s{sNC}, v{vBias}' if raw else f'v_sub_f32 v{n[0]}, v{vBias}, v{t[0]}', [f'v{t[0]}', f'v{vBias}'], [f'v{n[0]}']),
            mv(n[2], n[0]), perm(32, n[0], n[2]), mv(n[1], n[0]), mv(n[3], n[2]),
            perm(16, n[0], n[1]), perm(16, n[2], n[3])] + ([] if raw else [mv(n[q] + i, n[q]) for q in range(4) for i in range(1, 4)])
def op_MAX():
    l = []
    for qt in range(4):
        s = S(0, qt)
        l.append(valu(f'v_max3_f32 v{vT[qt]}, v{s}, v{s+1}, v{s+2}', rng('v', s, 3), [f'v{vT[qt]}']))
        l.append(valu(f'v_max_f32 v{vT[qt]}, v{vT[qt]}, v{s+3}', [f'v{vT[qt]}', f'v{s+3}'], [f'v{vT[qt]}']))
    return l + op_reduce()
def op_DMA(which, tile, bar):
    slot = tile % 4
    nxt = tile >= 8
    base = sKVn if nxt else sKV
    st = sTK if which == 'K' else sTV
    d = (sKn if nxt else sK) if which == 'K' else (sVn if nxt else sV)
    l = [Op('salu', f's_add_u32 s{st}, s{base}, {(tile % 8)*16384}', R=[f's{base}'], W=[f's{st}', 'scc']),
         Op('salu', f's_add_u32 m0, s{sW4k}, {slot*16384 + (VBASE if which == "V" else 0)}', R=[], W=['m0', 'scc'])]
    for n in range(4):
        va = vKd[n] if which == 'K' else vKd[0]
        l.append(Op('dma', f'buffer_load_dwordx4 v{va}, {srd(d)}, s{st} offen offset:{n*1024} {OPT["kv_flags"]} lds',
                    R=[f'v{va}', f's{st}', 'm0', 'srdn'] + ([bar] if bar else []), W=[], name=(which, tile % 8, n)))
    return l
def op_QD(qt, m0txt, dep=None):
    l = [Op('salu', m0txt, R=[], W=['m0', 'scc'])]
    for n in range(4):
        l.append(Op('dma', f'buffer_load_dwordx4 v{vKd[n]}, {srd(sQ if qt < 2 else sQB)}, s{sQn[qt]} offen offset:{n*1024} {OPT["q_flags"]} lds',
                    R=[f'v{vKd[n]}', f's{sQn[qt]}', 'm0'] + ([dep] if dep else []), W=[], name=('Q', qt, n)))
    return l
def op_QR(qt, dst, va, off, dep):
    return [Op('ds', f'ds_read_b128 {ar(dst(qt,ks),4)}, v{va} offset:{off + ks*256}',
               R=[f'v{va}', dep, 'PA'], W=rng('a', dst(qt, ks), 4), name=('QR', qt, ks)) for ks in range(4)]
def op_L():
    l = []
    for qt in range(4):
        r = vRL[qt]
        l.append(valu(f'v_accvgpr_read_b32 v{r}, a{RS(qt)}', [f'a{RS(qt)}'], [f'v{r}']))
        l.append(valu(f'v_cmp_nge_f32 s[{sCmp[qt]}:{sCmp[qt]+1}], s{sThr}, v{r}', [f'v{r}'], [f's{sCmp[qt]}']))
        l.append(valu(f'v_rcp_f32 v{r}, v{r}', [f'v{r}'], [f'v{r}'], kind='trans'))
    return l
def op_EPI(u):
    l = []
    for qt in range(4):
        a, b = O(2*u, qt), O(2*u+1, qt)
        for x in list(range(a, a+4)) + list(range(b, b+4)):
            l.append(valu(f'v_mul_f32 v{x}, v{x}, v{vRL[qt]}', [f'v{x}', f'v{vRL[qt]}'], [f'v{x}']))
        for i, x in enumerate([a, a+2, b, b+2]):
            l.append(valu(f'v_cvt_pk_bf16_f32 v{a+i}, v{x}, v{x+1}', [f'v{x}', f'v{x+1}'], [f'v{a+i}']))
        l.append(Op('ds', f'ds_write_b128 v{vWr[u%2]}, {vr(a,4)} offset:{qt*2048}',
                    R=rng('v', a, 4) + [f'v{vWr[u%2]}', 'PAw'], W=[f'PA{qt}_{u%2}'], name=('OW', u, qt)))
    return l
def op_OR(R, half):
    return [Op('ds', f'ds_read_b128 {ar(OST(R,n),4)}, v{vRd} offset:{n*1024}',
               R=[f'v{vRd}', f'PA{n//2}_0', f'PA{n//2}_1'], W=rng('a', OST(R, n), 4), name=('OR', R, n)) for n in range(4*half, 4*half+4)]
def op_ST(R, half, dep, prev):
    l = []
    for n in range(4*half, 4*half+4):
        va = vOlo if n < 4 else vOhi
        so = (sOp if prev else sOo)[(n//2) % 2]
        l.append(Op('vst', f'buffer_store_dwordx4 {ar(OST(R,n),4)}, v{va}, {srd(sOP if prev else sO)}, s{so} offen offset:{(n%2)*2048 + R*128} {OPT["store_flags" if prev else "last_flags"]}'.rstrip(),
                    R=rng('a', OST(R, n), 4) + [f'v{va}', f's{so}', dep], W=[], name=('O', R, n)))
    return l
def op_OUT(R):
    l = []
    for half in range(2):
        rd = op_OR(R, half)
        l += rd + [wlg(rd, f'wO{R}_{half}')] + op_ST(R, half, f'wO{R}_{half}', False)
    return l
def wlg(targets, tag, prev=None):
    o = Op('wlg', None, W=[tag], targets=targets)
    o.prev_targets = [t.name for t in targets] if prev is None else prev
    return o
def wvm(names, tag, byname):
    o = Op('wvm', None, W=[tag], targets=[byname[x] for x in names if x in byname])
    o.prev_targets = names
    return o

def op_UPD():
    sa = lambda t, R, W: Op('salu', t, R=R, W=W)
    c = [f's{x}' for x in sCmp]
    p = lambda x: f's[{x}:{x+1}]'
    l = [sa(f's_or_b64 {p(sCmp[0])}, {p(sCmp[0])}, {p(sCmp[1])}', [c[0], c[1]], [c[0], 'scc']),
         sa(f's_or_b64 {p(sCmp[2])}, {p(sCmp[2])}, {p(sCmp[3])}', [c[2], c[3]], [c[2], 'scc']),
         sa(f's_or_b64 {p(sCmp[0])}, {p(sCmp[0])}, {p(sCmp[2])}', [c[0], c[2]], [c[0], 'scc']),
         sa('s_cselect_b32 s42, 1, 0', ['scc'], ['s42']),
         sa(f's_lshl_b32 s42, s42, s{sB}', ['s42', f's{sB}'], ['s42', 'scc']),
         sa(f's_or_b32 s{sFlag}, s{sFlag}, s42', ['s42'], [f's{sFlag}', 'scc']),
         sa(f's_mov_b64 {p(sOp[0])}, {p(sOo[0])}', [f's{sOo[0]}'], [f's{sOp[0]}']),
         sa(f's_mov_b64 {p(sOo[0])}, {p(sQn[0])}', [f's{sQn[0]}', f's{sQn[1]}'], [f's{sOo[0]}', f's{sOo[1]}']),
         sa(f's_mov_b32 s{sKV}, s{sKVn}', [f's{sKVn}'], [f's{sKV}']),
         sa(f's_add_u32 s{sB}, s{sB}, 1', [f's{sB}'], [f's{sB}', 'scc']),
         sa(f's_cselect_b32 s{sOP+2}, 0, {QBYTES}', ['scc'], [f's{sOP+2}']),
         sa(f's_cmp_lt_u32 s{sB}, 3', [f's{sB}'], ['scc']),
         sa(f's_cselect_b32 s42, {OPT["pst"]*PAIRQ}, 0', ['scc'], ['s42']),
         sa(f's_cselect_b32 s45, {OPT["pst"]*PAIRK}, 0', ['scc'], ['s45']),
         sa(f's_cselect_b32 s{sQ+2}, s{sQ+2}, 0', ['scc'], [f's{sQ+2}']),
         sa(f's_cselect_b32 s{sQB+2}, s{sQB+2}, 0', ['scc'], [f's{sQB+2}']),
         sa(f's_cselect_b32 s{sKn+2}, s{sKn+2}, 0', ['scc'], ['srdn']),
         sa(f's_cselect_b32 s{sVn+2}, s{sVn+2}, 0', ['scc'], ['srdn'])]
    l += [sa(f's_add_u32 s{x}, s{x}, s42', ['s42', f's{x}'], [f's{x}', 'scc']) for x in sQn]
    l += [sa(f's_add_u32 s{sKVn}, s{sKVn}, s45', ['s45', f's{sKVn}'], [f's{sKVn}', 'scc'])]
    return l

class Seg:
    def __init__(self):
        self.ops = []; self.nm = 0; self.byname = {}
    def add(self, l, need=None):
        for i, o in enumerate(l):
            if need and i == 0: o.R += need if isinstance(need, list) else [need]
            if o.kind == 'mfma': self.nm += 1
            if o.kind in ('dma', 'vld', 'vst'): self.byname[o.name] = o
            self.ops.append(o)
        return l
    def reads(self, l, tag, at):
        n = len(l)
        for i, o in enumerate(l):
            o.due = at - OPT['ds_lead'] - (n - 1 - i) * OPT['ds_sp']
            o.earliest = o.due - 2
        self.add(l)
        if tag: self.add([wlg(l, tag)])
    def spread(self, l, lo, hi, sp=None):
        mem = [o for o in l if o.kind in MEM_KINDS]
        for i, o in enumerate(mem):
            pos = lo + min(sp or OPT['vm_sp'] or 1000, (hi - lo) / len(mem)) * (i + 0.5)
            o.earliest = int(pos) - 2; o.due = pos + OPT['vm_due']
        for i, o in enumerate(l):
            if o.kind == 'salu':
                nx = next(x for x in l[i:] if x.kind in MEM_KINDS)
                o.earliest = nx.earliest - 6
        self.add(l)
    def barrier(self, nn, pos, waits):
        names = [('K', (nn+1) % 8, i) for i in range(4)] + [('V', nn % 8, i) for i in range(4)]
        wv = wvm(names, f'wvm{nn}', self.byname); wv.earliest = pos - 3
        bo = Op('bar', 's_barrier', R=[f'wvm{nn}'] + waits, W=[f'bar{nn}', f'Krdy{nn+1}', f'Vrdy{nn}'])
        bo.earliest = pos - 1; bo.due = pos + 1
        self.add([wv, bo])

def seg_A():
    g = Seg()
    start = {s: (s - 4) * 34 for s in range(4, 33)}
    barpos = {nn: start[4*nn+3] + 16 for nn in range(1, 8)}
    barpos[0] = -2
    def interval(nn, extra):
        bar = f'bar{nn}' if nn >= 1 else None
        k, v = op_DMA('K', nn + 4, bar), op_DMA('V', nn + 3, bar)
        if OPT['qsp']:
            h = {2: 4, 3: 0}.get(nn, (len(extra) // 2 + 1) // 2 * 2)
            l = k + extra[:h] + v + extra[h:]
        else: l = k + v + extra
        g.spread(l, barpos[nn] + 2, barpos[nn+1] - 6)
    qm0 = lambda j: f's_add_u32 m0, s{sPA}, {4096*j}'
    extras = {0: op_QD(0, qm0(0), 'wK4'), 1: op_QD(1, qm0(1), 'wK4'), 4: op_QD(2, qm0(0), 'wQA'), 5: op_QD(3, qm0(1), 'wQA')}
    if OPT['qsp']:
        def pieces(qts, dep):
            out = []
            for qt in qts:
                for p in op_QD(qt, '', dep)[1:]: out.append([Op('salu', qm0(qt % 2), R=[], W=['m0', 'scc']), p])
            return out
        a, b, c = pieces((0, 1), 'wK4'), pieces((2,), 'wQ0'), pieces((3,), 'wQ1')
        extras = {0: sum(a[:3], []), 1: sum(a[3:6], []), 2: sum(a[6:], []), 3: sum(b[:2], []), 4: sum(b[2:] + c[:1], []), 5: sum(c[1:], [])}
    w = wlg([], 'wK4', prev=[('RK', 4, ks) for ks in range(4)] + [('OR', R, n) for R in range(2) for n in range(8)]); w.due = -1
    g.add([w])
    sts = sum([op_ST(R, hf, 'wK4', True) for hf in range(2) for R in range(OPT['stb'], 2)], [])
    sts.sort(key=lambda o: (o.name[2], o.name[1]))
    g.spread(sts, OPT['st_lo'], OPT['st_hi'], 1000)
    interval(0, extras[0])
    for s in range(4, 32):
        if s > 4: g.reads(op_RK(s), f'wK{s}', start[s])
        g.add(op_SM(s - 1))
        g.add(op_QK(s), f'wK{s}')
        b = s - 4
        g.reads(op_RV(b), f'wV{b}', start[s] + 16)
        if s % 4 == 3: g.barrier(s // 4, barpos[s // 4], [f'wK{s}', f'wV{b}'])
        g.add(op_PV(b), f'wV{b}')
        g.add(op_RS(b // 4, b % 4))
        if s == 17 and not OPT['qsp']:
            wq = wvm([('Q', qt, n) for qt in range(2) for n in range(4)], 'vQA', g.byname); wq.earliest = start[17]
            g.add([wq])
            g.reads(op_QR(0, QN, vQa, 0, 'vQA') + op_QR(1, QN, vQa, 4096, 'vQA'), 'wQA', barpos[4] + 8)
        if s in (15, 19) and OPT['qsp']:
            qt = s // 19
            wq = wvm([('Q', qt, n) for n in range(4)], f'vQ{qt}', g.byname); wq.earliest = start[s + 2] - 4
            g.add([wq])
            g.reads(op_QR(qt, QN, vQa, 4096*qt, f'vQ{qt}'), f'wQ{qt}', start[s + 3] - 4)
        if s % 4 == 3 and s // 4 <= 6: interval(s // 4, extras.get(s // 4, []))
    g.add(op_SM(31)[:6*OPT['smq']])
    g.reads(op_RV(28), None, start[32] + 12)
    return g.ops

def seg_B():
    g = Seg()
    order = [('RS', 0), ('PV', 28), ('PS', 0), ('PV', 29), ('PS', 1), ('PS', 2), ('PV', 30), ('PS', 3), ('QK', 32), ('PV', 31),
             ('QK', 33), ('QK', 34), ('QK', 35)]
    pos = {}; n = 0
    for k in order:
        pos[k] = n; n += 8 if k[0] == 'RS' else 16
    total = n
    g.add(op_SM(31)[6*OPT['smq']:])
    g.add([wlg([], 'wV28', prev=[o.name for o in op_RV(28)])])
    wq = wvm([('Q', qt, n) for qt in range(2, 4) for n in range(4)], 'vQB', g.byname); wq.due = -5
    g.add([wq])
    g.reads(op_QR(2, Q, vQa, 0, 'vQB') + op_QR(3, Q, vQa, 4096, 'vQB'), 'wQB', pos[('PS', 0)] + 8)
    for o in g.ops:
        if o.kind == 'ds': o.earliest = None; o.R.remove('PA'); o.R += [f'PA{q}_{p}' for q in range(4) for p in range(2)]
    barp = pos[('QK', 35)] - 1
    g.spread(op_DMA('K', 11, None) + op_DMA('V', 10, None), 2, barp - 40)
    for k in order:
        if k[0] == 'RS':
            for qt in range(4): g.add(op_RS(7, qt))
            g.add(op_L())
        elif k[0] == 'PS':
            g.add(op_PS(k[1], QN if k[1] < 2 else Q, P(0, 0, 0)), 'wQB' if k[1] == 2 else None)
        elif k[0] == 'PV':
            b = k[1]
            if b > 28: g.reads(op_RV(b), f'wV{b}', pos[k])
            g.add(op_PV(b), f'wV{b}')
            ep = op_EPI(b - 28)
            for i, o in enumerate(ep): o.due = pos[k] + 16 + 4 + OPT['epi_len'] * i / len(ep)
            g.add(ep)
            if b % 2 == 1:
                R = (b - 28) // 2
                out = op_OR(R, 0) + op_OR(R, 1)
                for i, o in enumerate(out): o.due = pos[k] + 16 + 4 + OPT['epi_len'] * (0.5 + 0.5 * i / len(out))
                g.add(out)
                if R == 0 and OPT['stb']:
                    g.add([wlg(out, 'wO0')])
                    st = op_ST(0, 0, 'wO0', False) + op_ST(0, 1, 'wO0', False)
                    for o in st: o.text = o.text.replace(OPT['last_flags'], OPT['store_flags']) if OPT['last_flags'] else o.text + ' ' + OPT['store_flags']
                    g.spread(st, pos[k] + 16 + 4 + OPT['epi_len'] + 10, total - 26, 1000)
        else:
            a = k[1]
            g.reads(op_RK(a), f'wK{a}', pos[k])
            if a > 32: g.add(op_SM(a - 33))
            if a == 35: g.barrier(8, barp, [f'wK{a}', 'wV31'])
            g.add(op_QK(a), f'wK{a}')
            if a == 32: g.add(op_MAX())
    g.reads(op_RK(36), None, total + 4)
    g.add(op_UPD())
    return g.ops

def seg_final():
    g = Seg()
    VFq = lambda u, Tb, h: [160, 176, 128, 144][u] + 8*Tb + 4*h
    x0 = P(0, 0, 0)
    vL, vI, vG, vW0, vW1, vS0, vS1, vX = [x0 + i for i in range(8)]
    va = lambda t, R, W: valu(t, [f'v{r}' for r in R], [f'v{W}'])
    adr = [va(f'v_and_b32 v{vI}, 15, v0', [], vI), va(f'v_bfe_u32 v{vG}, v0, 4, 2', [], vG),
           va(f'v_and_b32 v{vX}, 7, v0', [], vX), va(f'v_xor_b32 v{vX}, v{vX}, v{vG}', [vX, vG], vX),
           va(f'v_lshlrev_b32 v{vX}, 4, v{vX}', [vX], vX), va(f'v_lshl_add_u32 v{vX}, v{vI}, 8, v{vX}', [vX, vI], vX),
           va(f'v_add_u32 v{vW0}, s{sPA}, v{vX}', [vX], vW0), va(f'v_xor_b32 v{vW1}, 64, v{vW0}', [vW0], vW1),
           va(f'v_xor_b32 v{vL}, v{vI}, v{vG}', [vI, vG], vL), va(f'v_lshlrev_b32 v{vL}, 4, v{vL}', [vL], vL),
           va(f'v_lshl_add_u32 v{vS0}, v{vG}, 8, v{vL}', [vG, vL], vS0), va(f'v_xor_b32 v{vS1}, 64, v{vS0}', [vS0], vS1)]
    sm = op_SM(31)
    g.add([wlg([], 'wV0', prev=[o.name for o in op_RV(28)])])
    wq = wvm([('Q', qt, n) for qt in range(2, 4) for n in range(4)], 'PAw', g.byname); wq.earliest = 4
    g.add([wq])
    for u in range(1, 4):
        rv = op_RV(28 + u)
        for o, (Tb, h, jh) in zip(rv, [(a, b, c) for a in range(2) for b in range(2) for c in range(2)]):
            d = VFq(u, Tb, h) + 2*jh
            o.text = f'ds_read_b64_tr_b16 {ar(d,2)},' + o.text.split(',', 1)[1]; o.W = rng('a', d, 2)
            o.due = -20 + u
        g.add(rv); g.add([wlg(rv, f'wV{u}')])
    for i, o in enumerate(adr): o.due = 10
    g.add(adr)
    Lops = op_L()
    for qt in range(4):
        base = 18 * qt
        if qt >= OPT['smq']: g.add(sm[6*qt:6*qt+6])
        g.add(op_RS(7, qt))
        g.add(Lops[3*qt:3*qt+3])
        for u in range(4):
            for Tb in range(2):
                for h in range(2):
                    m = mfma('v', O(2*u+Tb, qt), 'a', VFq(u, Tb, h), 'v', P(1, h, qt), False)
                    if qt == 0 and Tb == 0 and h == 0: m.R.append(f'wV{u}')
                    g.add([m])
        ep = []
        for u in range(4):
            a, b = O(2*u, qt), O(2*u+1, qt)
            for x in list(range(a, a+4)) + list(range(b, b+4)):
                ep.append(valu(f'v_mul_f32 v{x}, v{x}, v{vRL[qt]}', [f'v{x}', f'v{vRL[qt]}'], [f'v{x}']))
            for i, x in enumerate([a, a+2, b, b+2]):
                ep.append(valu(f'v_cvt_pk_bf16_f32 v{a+i}, v{x}, v{x+1}', [f'v{x}', f'v{x+1}'], [f'v{a+i}']))
            w_ = [vW0, vW1][u % 2]
            ep.append(Op('ds', f'ds_write_b128 v{w_}, {vr(a,4)} offset:{(qt%2)*4096 + (u//2)*128}',
                         R=rng('v', a, 4) + [f'v{w_}', 'PAw'], W=[f'PB{qt%2}_{u}'], name=('OW', u, qt)))
        st = lambda n: OST(qt // 2, 4*(qt % 2) + n)
        rd = [Op('ds', f'ds_read_b128 {ar(st(n),4)}, v{vRd} offset:{(qt%2)*4096 + n*1024}',
                 R=[f'v{vRd}'] + [f'PB{qt%2}_{u}' for u in range(4)], W=rng('a', st(n), 4), name=('OR', qt, n)) for n in range(4)]
        ep += rd + [wlg(rd, f'wO{qt}')]
        if qt == 2:
            ep += [va(f'v_add_u32 v{x}, s46, v{x}', [x], x) for x in (vS0, vS1)]
        for n in range(4):
            s_ = [vS0, vS1][n % 2]
            ep.append(Op('vst', f'buffer_store_dwordx4 {ar(st(n),4)}, v{s_}, {srd(sO)}, s{sOo[qt%2]} offen offset:{n*1024} {OPT["last_flags"]}'.rstrip(),
                         R=rng('a', st(n), 4) + [f'v{s_}', f'wO{qt}'], W=[], name=('O', qt, n)))
        for i, o in enumerate(ep):
            o.due = base + 8 + OPT['fin_len'] * i / len(ep) + (OPT['fin_st'] * (1 + o.name[2]) if o.kind == 'vst' else 0)
            if o.kind == 'vst': o.earliest = o.due - 1
            if o.kind == 'wlg': o.due = None
        g.add(ep)
    return g.ops

def seg_first(qt, qr, dmas):
    g = Seg()
    g.add(qr); g.add([wlg(qr, 'wq')])
    g.add(op_PS(qt, Q, O(4, 0)), 'wq')
    tmp = lambda kt: S(1, qt) if kt == 3 else O(kt, qt)
    for kt in range(4):
        g.add([mfma('v', tmp(kt), 'a', 128 + 16*kt + 4*ks, 'a', Q(qt, ks), ks == 0) for ks in range(4)])
    s = tmp(0); n = vNM[qt]; t, u = n + 1, n + 2
    mx = lambda d, a, b: valu(f'v_max_f32 v{d}, v{a}, v{b}', [f'v{a}', f'v{b}'], [f'v{d}'])
    mv = lambda d, a: valu(f'v_mov_b32 v{d}, v{a}', [f'v{a}'], [f'v{d}'])
    g.add([valu(f'v_max3_f32 v{t}, v{s}, v{s+1}, v{s+2}', rng('v', s, 3), [f'v{t}']), mx(t, t, s+3),
           mv(u, t), perm(16, t, u), mx(t, t, u), mv(u, t), perm(32, t, u), mx(t, t, u),
           valu(f'v_sub_f32 v{n}, {"s47" if qt >= 2 else "0"}, v{t}', [f'v{t}'], [f'v{n}'])])
    for kt in range(4):
        s = tmp(kt)
        for r in range(4): g.add([valu(f'v_add_f32 v{s+r}, v{s+r}, v{n}', [f'v{s+r}', f'v{n}'], [f'v{s+r}'])])
        if kt == 3: break
        for r in range(4): g.add([valu(f'v_exp_f32 v{s+r}, v{s+r}', [f'v{s+r}'], [f'v{s+r}'], kind='trans')])
        p = P(0, kt // 2, qt) + 2*(kt % 2)
        for i in range(2): g.add([valu(f'v_cvt_pk_bf16_f32 v{p+i}, v{s+2*i}, v{s+2*i+1}', [f'v{s+2*i}', f'v{s+2*i+1}'], [f'v{p+i}'])])
    g.add([mv(n + i, n) for i in range(1, 4)])
    if dmas: g.spread(dmas, 0, 8)
    return g.ops

def resolve_waits(seqs):
    res = {}
    for kind, kinds, fmt, mx in (('wvm', ('dma', 'vld', 'vst'), 'vmcnt', 63), ('wlg', ('ds',), 'lgkmcnt', 15)):
        hist = []
        for si, sq in enumerate(seqs):
            for o in sq:
                if o.kind in kinds: hist.append(o.name)
                elif o.kind == kind:
                    last = max(len(hist) - 1 - hist[::-1].index(x) for x in o.prev_targets if x in hist)
                    res.setdefault(o, []).append(len(hist) - 1 - last)
        for o, l in res.items():
            if o.kind == kind: o.text = f's_waitcnt {fmt}({min(min(l), mx)})'
    return res

def lines(ops): return ''.join('    ' + o.text + '\n' for o in ops)
def padded(ops):
    build_deps(ops)
    out = []
    for o in ops:
        need = 0
        for p, d in o.preds.items():
            need = max(need, d - (len(out) - p.pos - 1))
        for _ in range(need): out.append(Op('salu', 's_nop 0'))
        o.pos = len(out); out.append(o)
    return out

def dbg_lines(ops, first):
    txt = ''; n = first
    for o in ops:
        txt += '    ' + o.text + '\n'
        if o.kind == 'bar':
            txt += f'    s_memtime s[{78+2*n}:{79+2*n}]\n'; n += 1
    return txt, n
DUMP = '    s_memtime s[96:97]\n    s_waitcnt lgkmcnt(0)\n' + ''.join(
    f'    v_writelane_b32 v38, s{78+2*i}, {i}\n' for i in range(11)) + \
    '    s_mov_b64 exec, 0xffff\n    buffer_store_dword v38, v39, s[60:63], s59 offen\n    s_mov_b64 exec, -1\n    s_add_u32 s59, s59, 64\n'

def main():
    segs = {}
    for nme, ops in (('A', seg_A()), ('B', seg_B()), ('D', seg_final())):
        segs[nme], stats = schedule(ops, OPT['ds_lead'], OPT['ds_lat'], OPT['vm_space'], nop_win=(OPT['nopw'] if nme == 'A' else 10000))
        print(nme, stats, file=sys.stderr)
    A = []
    w = A.append
    WARM1 = '''    s_getpc_b64 s[94:95]
L_pc:
    s_bfe_u32 s64, s2, 0x20003            ; (wg >> 3) & 3
    s_lshl_b32 s64, s64, 13
    v_lshlrev_b32 v28, 7, v0
    v_cmp_lt_u32 vcc, 63, v0
    v_mov_b32 v29, s64
    s_nop 0
    v_cndmask_b32 v29, 0, v29, vcc
    v_add_u32 v28, v28, v29
    v_min_u32 v28, L_end-L_pc, v28
    v_cmp_gt_u32 vcc, 128, v0
    s_and_saveexec_b64 s[64:65], vcc
    s_cbranch_execz L_w1
    global_load_dword a255, v28, s[94:95]
L_w1:
    s_mov_b64 exec, -1
''' if OPT['warm'] else ''
    w(f'''; GQA attention forward, B=16 Hq=32 Hkv=16 Sq=496 Sk=512 D=128, bf16.  Generated by gen/gen.py (own generator).
; 256 persistent workgroups x 4 waves; each wave 64 q rows; K/V tiles streamed through an LDS ring by LDS-DMA.
; Softmax reference point: max over the row's first 16 keys; a run-time check on the row sum redoes the rows
; @launch grid=(256,1,1) block=(256,1,1) lds=163840
.amdgcn_target "amdgcn-amd-amdhsa--gfx950"
.text
.globl {NAME}
.p2align 8
.type {NAME},@function
{NAME}:
    s_cmp_ge_u32 s2, 256
    s_cbranch_scc1 L_end
{'    s_memtime s[100:101]' if OPT['debug'] else ''}
    s_load_dwordx4 s[56:59], s[0:1], 0
    s_load_dwordx4 s[60:63], s[0:1], 16
{WARM1}    v_lshrrev_b32 v20, 6, v0
    v_and_b32 v21, 63, v0                 ; lane
    v_readfirstlane_b32 s42, v20          ; wave
    v_and_b32 v22, 15, v21                ; i
    v_lshrrev_b32 v23, 4, v21             ; g
    v_lshrrev_b32 v26, 2, v22             ; i/4
    v_and_b32 v27, 3, v21                 ; i%4
    ; DMA lane part: (i/4)*256 + g*64 + ((i%4)^f(n))*16
    v_lshlrev_b32 v30, 8, v26
    v_lshl_add_u32 v30, v23, 6, v30
    v_lshl_add_u32 v{vKd[0]}, v27, 4, v30
    v_xor_b32 v{vKd[1]}, 48, v{vKd[0]}
    v_xor_b32 v{vKd[2]}, 32, v{vKd[0]}
    v_xor_b32 v{vKd[3]}, 16, v{vKd[0]}
    s_and_b32 s43, s2, 7                  ; xcd
    s_lshr_b32 s44, s2, 3
    s_lshr_b32 s45, s44, 2                ; group
    s_and_b32 s44, s44, 3                 ; qb
    s_lshl_b32 s43, s43, 5
{'    s_lshl_b32 s45, s45, 2' if OPT['pst'] == 1 else ''}
    s_add_u32 s43, s43, s45               ; pair0
    s_lshl_b32 s{sW4k}, s42, 12
    s_lshl_b32 s{sKVn}, s43, 17
    s_add_u32 s{sKVn}, s{sKVn}, s{sW4k}
    s_mul_i32 s45, s43, {PAIRQ}
    s_lshl_b32 s46, s44, 16
    s_add_u32 s45, s45, s46
    s_lshl_b32 s46, s42, 14
    s_add_u32 s{sQn[0]}, s45, s46
    s_add_u32 s{sQn[1]}, s{sQn[0]}, 4096
    s_lshl_b32 s{sPA}, s42, 13
    s_add_u32 s{sPA}, s{sPA}, 131072
    s_lshl_b32 s46, s44, 2
    s_add_u32 s46, s46, s42
    s_cmp_eq_u32 s46, 15
    s_cselect_b32 s46, 0x40000000, 8192
    s_cselect_b32 s47, 0xff800000, 0
    s_cselect_b32 s45, 0, 8192
    s_cselect_b32 s{sQB+2}, 0, {QBYTES}
    s_add_u32 s{sQn[2]}, s{sQn[0]}, s45
    s_add_u32 s{sQn[3]}, s{sQn[1]}, s45
    s_mov_b32 s{sQ+2}, {QBYTES}
    s_mov_b32 s{sQ+3}, 0x20000
    s_mov_b32 s{sQB+3}, 0x20000
    s_mov_b32 s{sKn+2}, {KBYTES}
    s_mov_b32 s{sKn+3}, 0x20000
    s_mov_b32 s{sVn+2}, {KBYTES}
    s_mov_b32 s{sVn+3}, 0x20000
    s_waitcnt lgkmcnt(0)
    s_mov_b32 s{sKn}, s58
    s_mov_b32 s{sKn+1}, s59
    s_mov_b32 s{sQ}, s56
    s_mov_b32 s{sQ+1}, s57
    s_mov_b32 s{sQB}, s56
    s_mov_b32 s{sQB+1}, s57
    s_mov_b32 s{sVn}, s60
    s_mov_b32 s{sVn+1}, s61
''')
    if OPT['debug']:
        w('''    s_memrealtime s[98:99]
    s_waitcnt lgkmcnt(0)
    s_mov_b32 s67, s98
''')
    QTMP = [None, None, VBASE + 3*16384, 3*16384]
    pro = op_DMA('K', 8, None)
    pro += op_QD(0, f's_add_u32 m0, s{sPA}, 0') + op_QD(1, f's_add_u32 m0, s{sPA}, 4096')
    pro += op_QD(2, f's_add_u32 m0, s{sW4k}, {QTMP[2]}') + op_QD(3, f's_add_u32 m0, s{sW4k}, {QTMP[3]}')
    pro = padded(pro)
    w(lines(pro))
    w(f'''    ; remaining setup under the load latency
    s_mov_b32 s{sK}, s58
    s_mov_b32 s{sK+1}, s59
    s_mov_b32 s{sK+2}, {KBYTES}
    s_mov_b32 s{sK+3}, 0x20000
    s_mov_b32 s{sV}, s60
    s_mov_b32 s{sV+1}, s61
    s_mov_b32 s{sV+2}, {KBYTES}
    s_mov_b32 s{sV+3}, 0x20000
    s_mov_b32 s{sO}, s62
    s_mov_b32 s{sO+1}, s63
    s_mov_b32 s{sO+2}, {QBYTES}
    s_mov_b32 s{sO+3}, 0x20000
    s_mov_b32 s{sOP}, s62
    s_mov_b32 s{sOP+1}, s63
    s_mov_b32 s{sOP+3}, 0x20000
    s_mov_b32 s{sOo[0]}, 0
    s_mov_b32 s{sOo[1]}, 0
    v_sub_u32 v30, 0, v26
    v_and_b32 v30, 3, v30                 ; f(i/4)
    v_xor_b32 v30, v30, v23
    v_lshlrev_b32 v30, 4, v30
    v_lshl_add_u32 v30, v27, 6, v30
    v_lshl_add_u32 v{vKa}, v26, 10, v30
    v_add_u32 v{vQa}, s{sPA}, v{vKa}
    v_lshlrev_b32 v30, 10, v23
    v_lshl_add_u32 v30, v26, 6, v30
    v_lshl_add_u32 v30, v27, 4, v30
    v_add_u32 v{vVa}, {VBASE}, v30
{'    v_and_b32 v30, 16, v21' + chr(10) + '    v_lshrrev_b32 v30, 1, v30' + chr(10) + f'    v_add_u32 v{vVa}, v{vVa}, v30' if 'conf' in OPT['abl'] else ''}
    ; O staging: write addr = PA + i*128 + ((g ^ (i&7))*16); read addr = PA + lane*16; store lane part = (l/8)*256 + ((l%8)^(l/8))*16
    v_and_b32 v30, 7, v21
    v_xor_b32 v31, v30, v23
    v_lshlrev_b32 v31, 4, v31
    v_lshl_add_u32 v31, v22, 7, v31
    v_add_u32 v{vWr[0]}, s{sPA}, v31
    v_xor_b32 v{vWr[1]}, 64, v{vWr[0]}
    v_lshlrev_b32 v31, 4, v21
    v_add_u32 v{vRd}, s{sPA}, v31
    v_lshrrev_b32 v31, 3, v21
    v_xor_b32 v30, v30, v31
    v_lshlrev_b32 v30, 4, v30
    v_lshl_add_u32 v{vOlo}, v31, 8, v30
    v_add_u32 v{vOhi}, s46, v{vOlo}
    v_mov_b32 v30, s47
    v_cmp_lt_u32 vcc, 31, v21
    v_mov_b32 v31, 0x3f803f80
    s_mov_b32 s{sC}, {hex(f32(CSCALE))}
    v_cndmask_b32 v{vBias}, 0, v30, vcc
    s_mov_b32 s{sNC}, {hex(f32(-CSCALE))}
    s_mov_b32 s{sThr}, {hex(f32(2.0**64) if not OPT['force_slow'] else f32(-1.0))}
    s_mov_b32 s{sB}, -1
    s_mov_b32 s{sFlag}, 0
    s_mov_b64 s[{sCmp[0]}:{sCmp[0]+1}], 0
    s_mov_b64 s[{sCmp[1]}:{sCmp[1]+1}], 0
    s_mov_b64 s[{sCmp[2]}:{sCmp[2]+1}], 0
    s_mov_b64 s[{sCmp[3]}:{sCmp[3]+1}], 0
    v_accvgpr_write_b32 a{ONES}, v31
    v_accvgpr_write_b32 a{ONES+1}, v31
    v_accvgpr_write_b32 a{ONES+2}, v31
    v_accvgpr_write_b32 a{ONES+3}, v31
    v_add_u32 v{vX0}, s{sW4k}, v{vKa}
    v_add_u32 v{vX1}, {VBASE}, v{vX0}
    ; scale/selection matrices: lane (g,i) is live iff g == i/4; element i%4 of a 4-element half
    v_and_b32 v30, 1, v21
    v_lshlrev_b32 v30, 4, v30
    v_mov_b32 v31, {CHI}
    v_mov_b32 v28, {CLO}
    v_lshlrev_b32 v31, v30, v31
    v_lshlrev_b32 v28, v30, v28
    v_lshrrev_b32 v30, 1, v22             ; i/2
    v_lshlrev_b32 v29, 1, v23             ; 2g
    v_cmp_eq_u32 vcc, v30, v29
    v_add_u32 v29, 1, v29
    v_accvgpr_write_b32 a{SEL}, 0
    v_cndmask_b32 v24, 0, v31, vcc
    v_cndmask_b32 v25, 0, v28, vcc
    v_cmp_eq_u32 vcc, v30, v29
    v_accvgpr_write_b32 a{SEL+2}, v24
    v_accvgpr_write_b32 a{SEL+6}, v25
    v_cndmask_b32 v24, 0, v31, vcc
    v_cndmask_b32 v25, 0, v28, vcc
    v_accvgpr_write_b32 a{SEL+1}, 0
    v_accvgpr_write_b32 a{SEL+4}, 0
    v_accvgpr_write_b32 a{SEL+5}, 0
    v_accvgpr_write_b32 a{SEL+8}, 0
    v_accvgpr_write_b32 a{SEL+9}, 0
    v_accvgpr_write_b32 a{SEL+3}, v24
    v_accvgpr_write_b32 a{SEL+7}, v25
''')
    w(lines(op_UPD()))
    stamp = lambda i: [Op('salu', f's_memtime s[{78+2*i}:{79+2*i}]')] if OPT['debug'] else []
    qr = [op_QR(0, Q, vQa, 0, 'x'), op_QR(1, Q, vQa, 4096, 'x'), op_QR(2, Q, vX1, 3*16384, 'x'), op_QR(3, Q, vX0, 3*16384, 'x')]
    names = lambda t, *idx: [(t, i, n) for i in idx for n in range(4)]
    F = stamp(0) + [wvm(names('K', 0), 'x', {})] + stamp(1) + [Op('salu', 's_barrier')] + stamp(2)
    F += [Op('ds', f'ds_read_b128 {ar(128 + 16*kt + 4*ks, 4)}, v{vKa} offset:{kt*4096 + ks*256}', name=('RK0', kt, ks)) for kt in range(4) for ks in range(4)]
    F += padded(op_DMA('K', 1, None))
    fd = [op_DMA('V', 0, None), op_DMA('K', 2, None), op_DMA('V', 1, None), op_DMA('K', 3, None) + op_DMA('V', 2, None)]
    if OPT['fo'] == 1: fd = [fd[0], [], [], fd[1] + fd[2]]
    for qt in range(4):
        F += [wvm(names('Q', qt), 'x', {})] + stamp(3 + qt)
        sg, stats = schedule(seg_first(qt, qr[qt], None), OPT['ds_lead'], OPT['ds_lat'], 1)
        F += sg + (stamp(7) if qt == 3 else []) + padded(fd[qt])
    F += [wvm(names('K', 1) + names('V', 0), 'x', {}), Op('bar', 's_barrier')] + op_RK(4)
    if OPT['fo'] == 1: F += padded(op_DMA('K', 3, None) + op_DMA('V', 2, None))
    segs['F'] = F
    sq = [pro, segs['F'], []] + [segs['A'], segs['B']] * 3 + [segs['A'], segs['D']]
    r = resolve_waits(sq)
    print([(o.text, l) for o, l in r.items() if o.kind == 'wvm'], file=sys.stderr)
    if OPT['debug']:
        w('''    s_load_dwordx2 s[60:61], s[0:1], 40
    s_mov_b32 s62, 0x1000000
    s_mov_b32 s63, 0x20000
    s_lshl_b32 s59, s2, 14
    s_add_u32 s59, s59, s39
    s_lshr_b32 s59, s59, 3
    v_lshlrev_b32 v39, 2, v21
    s_waitcnt lgkmcnt(0)
''')
    if 'rs' in OPT['abl']:
        segs['A'] = [o if not (o.kind == 'mfma' and o.text.split()[1].startswith('a[')) else Op('salu', 's_nop 0') for o in segs['A']]
    if 'dma' in OPT['abl']:
        for sg in 'AB':
            segs[sg] = [o if not (o.kind == 'dma' and o.name[0] in 'KV') else Op('salu', 's_nop 0') for o in segs[sg]]
    if 'ds' in OPT['abl'].split():
        for sg in 'AB':
            segs[sg] = [o if not (o.kind == 'ds' and o.name[0] in ('RK', 'RV')) else Op('salu', 's_nop 0') for o in segs[sg]]
    upd = 'L_next:\n' + ('' if OPT['updin'] else lines(op_UPD()))
    pad = lambda n: [Op('salu', 'x') for _ in range(n)]
    bad = check_hazards(segs['F'] + segs['A'] + pad(2) + segs['B'] + pad(1) + segs['A'] + pad(2) + segs['D'])
    assert bad == 0, bad
    if not OPT['debug']:
        w(lines(segs['F']))
        w(lines(sq[2]))
        w(upd)
        w(lines(segs['A']))
        w(f'    s_cmp_eq_u32 s{sB}, 3\n    s_cbranch_scc1 L_final\n')
        w(lines(segs['B']))
        w('    s_branch L_next\nL_final:\n')
        w(lines(segs['D']))
    else:
        w(dbg_lines(segs['F'], 8)[0]); w(DUMP)
        w(lines(sq[2]))
        w(upd)
        w('    s_memtime s[78:79]\n    s_memrealtime s[98:99]\n')
        w(dbg_lines(segs['A'], 1)[0])
        w(f'    s_cmp_eq_u32 s{sB}, 3\n    s_cbranch_scc1 L_final\n')
        w(dbg_lines(segs['B'], 8)[0]); w(DUMP)
        w('    s_branch L_next\nL_final:\n')
        w(lines(segs['D'])); w('    s_memtime s[94:95]\n'); w(DUMP)
        w('''    s_waitcnt vmcnt(0)
    s_memtime s[78:79]
    s_memrealtime s[98:99]
    s_waitcnt lgkmcnt(0)
    v_mov_b32 v36, s78
    v_mov_b32 v37, s98
    v_mov_b32 v38, s100
    v_mov_b32 v39, s67
    s_mov_b64 exec, 1
    buffer_store_dwordx4 v[36:39], off, s[60:63], s59
    s_mov_b64 exec, -1
''')
    w(f'''    s_or_b64 s[{sCmp[0]}:{sCmp[0]+1}], s[{sCmp[0]}:{sCmp[0]+1}], s[{sCmp[1]}:{sCmp[1]+1}]
    s_or_b64 s[{sCmp[2]}:{sCmp[2]+1}], s[{sCmp[2]}:{sCmp[2]+1}], s[{sCmp[3]}:{sCmp[3]+1}]
    s_or_b64 s[{sCmp[0]}:{sCmp[0]+1}], s[{sCmp[0]}:{sCmp[0]+1}], s[{sCmp[2]}:{sCmp[2]+1}]
    s_cselect_b32 s42, 8, 0
    s_or_b32 s{sFlag}, s{sFlag}, s42
''')
    w(slow_path())
    w(f'''L_end:
    s_endpgm
.section .rodata,"a"
.p2align 6
.amdhsa_kernel {NAME}
  .amdhsa_next_free_vgpr 512
  .amdhsa_next_free_sgpr {102 if OPT['debug'] else 96}
  .amdhsa_accum_offset 256
  .amdhsa_group_segment_fixed_size 0
  .amdhsa_kernarg_size 48
  .amdhsa_user_sgpr_count 2
  .amdhsa_user_sgpr_kernarg_segment_ptr 1
  .amdhsa_system_sgpr_workgroup_id_x 1
.end_amdhsa_kernel
''')
    open(sys.argv[1], 'w').write(''.join(A))

def slow_path():
    raw = lambda t: Op('salu', t)
    T = []
    w = T.append
    sPair, sKoff, sJ = 56, 57, 58
    vF, vFh, vTr = 36, 37, 38
    w(f'''    s_cmp_eq_u32 s{sFlag}, 0
    s_cbranch_scc1 L_end
    s_waitcnt vmcnt(0) lgkmcnt(0)
    s_mov_b32 s{sQ+2}, {QBYTES}
    s_sub_u32 s42, s{sPA}, {VBASE}
    v_add_u32 v{vTr}, s42, v{vVa}
    v_and_b32 v20, 15, v0
    v_bfe_u32 v21, v0, 4, 2
    v_lshlrev_b32 v20, 8, v20
    v_lshl_add_u32 v{vF}, v21, 4, v20
    v_add_u32 v{vFh}, s46, v{vF}
    s_mov_b32 s{sB}, 0
L_slow_blk:
    s_lshr_b32 s42, s{sFlag}, s{sB}
    s_and_b32 s42, s42, 1
    s_cmp_eq_u32 s42, 0
    s_cbranch_scc1 L_slow_next
    s_mul_i32 s42, s{sB}, {OPT['pst']}
    s_add_u32 s{sPair}, s43, s42
    s_mul_i32 s42, s{sPair}, {PAIRQ}
    s_lshl_b32 s45, s44, 16
    s_add_u32 s42, s42, s45
    s_lshl_b32 s45, s{sW4k}, 2
    s_add_u32 s{sOo[0]}, s42, s45
    s_add_u32 s{sOo[1]}, s{sOo[0]}, 4096
''')
    for qt in range(4):
        for ks in range(4):
            w(f'    buffer_load_dwordx4 {ar(Q(qt,ks),4)}, v{vF if qt < 2 else vFh}, {srd(sQ)}, s{sOo[qt%2]} offen offset:{ks*64}\n')
    for qt in range(4): w(f'    v_mov_b32 v{vT[qt]}, 0xff800000\n')
    w(f'''    s_lshl_b32 s{sKoff}, s{sPair}, 17
    s_mov_b32 s{sJ}, 0
L_slow_p1:
''')
    def kload(buf):
        return [raw(f'buffer_load_dwordx4 {ar(KF(buf,ks),4)}, v{vF}, {srd(sK)}, s{sKoff} offen offset:{ks*64}') for ks in range(4)]
    w(lines(kload(0)))
    w('    s_waitcnt vmcnt(0)\n')
    l = op_QK(0, True)
    for qt in range(4):
        s = S(0, qt)
        l.append(valu(f'v_max3_f32 v{vT[qt]}, v{s}, v{s+1}, v{vT[qt]}', [f'v{s}', f'v{s+1}', f'v{vT[qt]}'], [f'v{vT[qt]}']))
        l.append(valu(f'v_max3_f32 v{vT[qt]}, v{s+2}, v{s+3}, v{vT[qt]}', [f'v{s+2}', f'v{s+3}', f'v{vT[qt]}'], [f'v{vT[qt]}']))
    w(lines(padded(l)))
    w(f'''    s_add_u32 s{sKoff}, s{sKoff}, 4096
    s_add_u32 s{sJ}, s{sJ}, 1
    s_cmp_lt_u32 s{sJ}, 32
    s_cbranch_scc1 L_slow_p1
''')
    w(lines(padded(op_reduce(True))))
    for i in range(128): w(f'    v_mov_b32 v{128+i}, 0\n')
    for i in range(16): w(f'    v_accvgpr_write_b32 a{RS(0)+i}, 0\n')
    w(f'''    s_lshl_b32 s{sKoff}, s{sPair}, 17
    s_mov_b32 s{sJ}, 0
L_slow_p2:
''')
    w(f'    s_mov_b32 m0, s{sPA}\n    s_nop 0\n')
    for n in range(4): w(f'    buffer_load_dwordx4 v{vKd[0]}, {srd(sV)}, s{sKoff} offen offset:{n*1024} lds\n')
    w(lines(kload(0)))
    w(f'    s_add_u32 s{sKoff}, s{sKoff}, 4096\n    s_add_u32 m0, s{sPA}, 4096\n    s_nop 0\n')
    for n in range(4): w(f'    buffer_load_dwordx4 v{vKd[0]}, {srd(sV)}, s{sKoff} offen offset:{n*1024} lds\n')
    w(lines(kload(1)))
    w(f'    s_add_u32 s{sKoff}, s{sKoff}, 4096\n    s_waitcnt vmcnt(0)\n')
    l = op_QK(0, True) + op_SM(0, True) + op_QK(1, True) + op_SM(1, True)
    for qt in range(4): l.append(mfma('a', RS(qt), 'a', ONES, 'v', P(0, 0, qt), False))
    w(lines(padded(l)))
    for u in range(4):
        for Tb in range(2):
            for jh in range(2):
                d = VF(0, Tb, 0) + 2*jh
                w(f'    ds_read_b64_tr_b16 {ar(d,2)}, v{vTr} offset:{jh*4096 + u*256 + Tb*8}\n')
        w('    s_waitcnt lgkmcnt(0)\n')
        for Tb in range(2):
            for qt in range(4):
                w('    ' + mfma('v', O(2*u+Tb, qt), 'a', VF(0, Tb, 0), 'v', P(0, 0, qt), False).text + '\n')
        w('    s_nop 7\n')
    w(f'''    s_add_u32 s{sJ}, s{sJ}, 1
    s_cmp_lt_u32 s{sJ}, 16
    s_cbranch_scc1 L_slow_p2
    s_nop 7
''')
    l = op_L()
    for u in range(4):
        l += op_EPI(u)
        if u % 2: l += op_OUT(u // 2)
    for o in l:
        if o.kind == 'wlg': o.text = 's_waitcnt lgkmcnt(0)'
    w(lines(padded(l)))
    w(f'''    s_waitcnt vmcnt(0)
L_slow_next:
    s_add_u32 s{sB}, s{sB}, 1
    s_cmp_lt_u32 s{sB}, 4
    s_cbranch_scc1 L_slow_blk
''')
    return ''.join(T)

main()
```

```python
import sys, struct, math
import sched
from sched import *

OPT = dict(store_flags='nt', ds_lead=8, ds_lat=120, vm_space=3, debug=0, force_slow=0, q_flags='nt', kv_flags='nt',
           ds_sp=4, vshift=0, st_lo=10, st_hi=900, last_flags='nt', epi_len=20, warm=1, abl='', bou=1, pk=0, vmc=12, stc=20, vm_due=4, pkf=1, pkd=4, vm_sp=0, updin=1, fo=0, pst=1, strict=1, barx=1, qsp=0, stb=0, smq=3, q4=1, fraw=1, res=40, resd=40, bord='P0.R.V0.V1.P1.V2.P2.P3.K0.V3.K1.K2.K3', nopw=6, finq=1, fin_len=18, fin_st=4)
for a in sys.argv[2:]:
    k, v = a.split('=')
    OPT[k] = int(v) if v.lstrip('-').isdigit() else v.replace('+', ' ')

sched.STRICT1 = OPT['strict']; sched.RESERVE = OPT['res']; sched.BAR_EXCL = OPT['barx']; sched.VM_COST = OPT['vmc']; sched.ST_COST = OPT['stc']
NAME = 'standalone__gqa_softmax__near_ridge_kernel'
def bf16(x):
    u = struct.unpack('<I', struct.pack('<f', x))[0]
    return (u + 0x7fff + ((u >> 16) & 1)) >> 16
def unbf(h): return struct.unpack('<f', struct.pack('<I', h << 16))[0]
def f32(x): return struct.unpack('<I', struct.pack('<f', x))[0]
CSCALE = math.log2(math.e) / math.sqrt(128.0)
CHI = bf16(CSCALE); CLO = bf16(CSCALE - unbf(CHI))
QBYTES = 16*32*496*128*2
KBYTES = 16*16*512*128*2
PAIRQ = 992*256
PAIRK = 512*256

vKa, vVa, vOlo, vOhi = 1, 2, 3, 4
vKd = [5, 6, 7, 8]
vQa = 9
vBias = 10
vRd = 11
vWr = [12, 13]
vRL = [14, 15, 16, 17]
vNM = [20, 24, 28, 32]
vT = [21, 25, 29, 33]
vX0, vX1, vD0, vD1 = 36, 37, 38, 39
def S(buf, qt): return 40 + 4*qt if qt < 2 else 48 + 8*(qt - 2) + 4*buf
def P(par, h, qt): return 64 + 32*par + 16*h + 4*qt
def O(T, qt): return 128 + 16*T + 4*qt
def Q(qt, ks): return 16*qt + 4*ks
def QN(qt, ks): return 64 + 16*qt + 4*ks
def KF(buf, ks): return 128 + 16*buf + 4*ks
def VF(buf, Tb, h): return 160 + 16*buf + 8*Tb + 4*h
def RS(qt): return 192 + 4*qt
ONES = 208
SEL = 244
def OST(R, n): return (96 if R == 0 else 212) + 4*n
sQ, sK, sV, sO, sKn, sVn, sQB = 4, 8, 12, 16, 20, 24, 68
sKV, sKVn = 28, 29
sQn = [30, 31, 64, 65]
sOo = [32, 33]
sC, sNC, sThr, sB, sFlag, sW4k = 34, 35, 36, 37, 38, 39
sTK, sTV = 40, 41
sCmp = [48, 50, 52, 54]
sOP = 72
sOp = [76, 77]
sPA = 66
VBASE = 65536

def vr(a, n): return f'v[{a}:{a+n-1}]'
def ar(a, n): return f'a[{a}:{a+n-1}]'
def srd(a): return f's[{a}:{a+3}]'

def mfma(dp, d, ap, a, bp, b, zero, cin=None):
    cr = d if cin is None else cin
    zero = zero and cin is None
    c = '0' if zero else f'{dp}[{cr}:{cr+3}]'
    D = rng(dp, d, 4); C = [] if zero else rng(dp, cr, 4)
    return Op('mfma', f'v_mfma_f32_16x16x32_bf16 {dp}[{d}:{d+3}], {ap}[{a}:{a+3}], {bp}[{b}:{b+3}], {c}',
              R=rng(ap, a, 4) + rng(bp, b, 4) + C, W=D, C=C)
def valu(text, R, W, kind='valu', **kw): return Op(kind, text, R=R, W=W, **kw)

def op_RK(a):
    tile, kt = divmod(a, 4)
    slot = tile % 4
    l = []
    for ks in range(4):
        d = KF(a % 2, ks)
        l.append(Op('ds', f'ds_read_b128 {ar(d,4)}, v{vKa} offset:{slot*16384 + kt*4096 + ks*256}',
                    R=[f'v{vKa}', f'Krdy{tile}'], W=rng('a', d, 4), name=('RK', a % 32, ks)))
    return l
def op_RV(b):
    tile, u = divmod(b, 4)
    slot = tile % 4
    l = []
    for Tb in range(2):
        for h in range(2):
            for jh in range(2):
                d = VF(b % 2, Tb, h) + 2*jh
                off = slot*16384 + h*8192 + jh*4096 + u*256 + Tb*8
                l.append(Op('ds', f'ds_read_b64_tr_b16 {ar(d,2)}, v{vVa} offset:{off}',
                            R=[f'v{vVa}', f'Vrdy{tile}'], W=rng('a', d, 2), name=('RV', b % 32, Tb, h, jh)))
    return l
def op_QK(a, raw=False):
    l = []
    for qt in ([2, 3, 0, 1] if (a == 4 and OPT['q4'] and not raw) else range(4)):
        for i in range(4):
            ks = 3 - i if (OPT['bou'] and qt % 2) else i
            l.append(mfma('v', S(a % 2, qt), 'a', KF(a % 2, ks), 'a', Q(qt, ks), i == 0, vNM[qt] if (i == 0 and a % 32 and not raw) else None))
    return l
def op_PV(b):
    t, u = divmod(b, 4)
    l = []
    for Tb in range(2):
        for qt in range(4):
            for i in range(2):
                h = 1 - i if (OPT['bou'] and qt % 2) else i
                l.append(mfma('v', O(2*u+Tb, qt), 'a', VF(b % 2, Tb, h), 'v', P(t % 2, h, qt), t == 0 and i == 0))
    return l
def op_RS(t, qt):
    return [mfma('a', RS(qt), 'a', ONES, 'v', P(t % 2, h, qt), t == 0 and h == 0) for h in range(2)]
def op_SM(a, raw=False):
    t, kt = divmod(a, 4)
    l = []
    for qt in range(4):
        s = S(a % 2, qt)
        for r in range(4):
            if raw: l.append(valu(f'v_fma_f32 v{s+r}, v{s+r}, s{sC}, v{vNM[qt]}', [f'v{s+r}', f'v{vNM[qt]}'], [f'v{s+r}']))
            elif a == 0: l.append(valu(f'v_add_f32 v{s+r}, v{s+r}, v{vNM[qt]}', [f'v{s+r}', f'v{vNM[qt]}'], [f'v{s+r}']))
        for r in range(4):
            l.append(valu(f'v_exp_f32 v{s+r}, v{s+r}', [f'v{s+r}'], [f'v{s+r}'], kind='trans'))
        p = P(t % 2, kt // 2, qt) + 2*(kt % 2)
        for i in range(2):
            l.append(valu(f'v_cvt_pk_bf16_f32 v{p+i}, v{s+2*i}, v{s+2*i+1}', [f'v{s+2*i}', f'v{s+2*i+1}'], [f'v{p+i}']))
    return l
def op_PS(qt, src, tmp):
    l = []
    for ks in range(4):
        t = tmp + 8*ks
        for x in range(2):
            l.append(mfma('v', t + 4*x, 'a', SEL + 2 - 2*x, 'a', src(qt, ks), True))
            l.append(mfma('v', t + 4*x, 'a', SEL + 6 - 2*x, 'a', src(qt, ks), False))
        for i in range(4):
            l.append(valu(f'v_cvt_pk_bf16_f32 v{t+2*i}, v{t+2*i}, v{t+2*i+1}', [f'v{t+2*i}', f'v{t+2*i+1}'], [f'v{t+2*i}']))
            l.append(valu(f'v_accvgpr_write_b32 a{Q(qt,ks)+i}, v{t+2*i}', [f'v{t+2*i}'], [f'a{Q(qt,ks)+i}']))
    return l
def perm(n, a, b): return valu(f'v_permlane{n}_swap_b32 v{a}, v{b}', [f'v{a}', f'v{b}'], [f'v{a}', f'v{b}'], kind='perm')
def op_reduce(raw=False):
    t = vT; n = vNM
    mx = lambda d, a, b: valu(f'v_max_f32 v{d}, v{a}, v{b}', [f'v{a}', f'v{b}'], [f'v{d}'])
    mv = lambda d, a: valu(f'v_mov_b32 v{d}, v{a}', [f'v{a}'], [f'v{d}'])
    return [perm(16, t[0], t[1]), perm(16, t[2], t[3]), mx(t[0], t[0], t[1]), mx(t[2], t[2], t[3]),
            perm(32, t[0], t[2]), mx(t[0], t[0], t[2]),
            valu(f'v_fma_f32 v{n[0]}, v{t[0]}, s{sNC}, v{vBias}' if raw else f'v_sub_f32 v{n[0]}, v{vBias}, v{t[0]}', [f'v{t[0]}', f'v{vBias}'], [f'v{n[0]}']),
            mv(n[2], n[0]), perm(32, n[0], n[2]), mv(n[1], n[0]), mv(n[3], n[2]),
            perm(16, n[0], n[1]), perm(16, n[2], n[3])] + ([] if raw else [mv(n[q] + i, n[q]) for q in range(4) for i in range(1, 4)])
def op_MAX():
    l = []
    for qt in range(4):
        s = S(0, qt)
        l.append(valu(f'v_max3_f32 v{vT[qt]}, v{s}, v{s+1}, v{s+2}', rng('v', s, 3), [f'v{vT[qt]}']))
        l.append(valu(f'v_max_f32 v{vT[qt]}, v{vT[qt]}, v{s+3}', [f'v{vT[qt]}', f'v{s+3}'], [f'v{vT[qt]}']))
    return l + op_reduce()
def op_DMA(which, tile, bar):
    slot = tile % 4
    nxt = tile >= 8
    base = sKVn if nxt else sKV
    st = sTK if which == 'K' else sTV
    d = (sKn if nxt else sK) if which == 'K' else (sVn if nxt else sV)
    l = [Op('salu', f's_add_u32 s{st}, s{base}, {(tile % 8)*16384}', R=[f's{base}'], W=[f's{st}', 'scc']),
         Op('salu', f's_add_u32 m0, s{sW4k}, {slot*16384 + (VBASE if which == "V" else 0)}', R=[], W=['m0', 'scc'])]
    for n in range(4):
        va = vKd[n] if which == 'K' else vKd[0]
        l.append(Op('dma', f'buffer_load_dwordx4 v{va}, {srd(d)}, s{st} offen offset:{n*1024} {OPT["kv_flags"]} lds',
                    R=[f'v{va}', f's{st}', 'm0', 'srdn'] + ([bar] if bar else []), W=[], name=(which, tile % 8, n)))
    return l
def op_QD(qt, m0txt, dep=None):
    l = [Op('salu', m0txt, R=[], W=['m0', 'scc'])]
    for n in range(4):
        l.append(Op('dma', f'buffer_load_dwordx4 v{vKd[n]}, {srd(sQ if qt < 2 else sQB)}, s{sQn[qt]} offen offset:{n*1024} {OPT["q_flags"]} lds',
                    R=[f'v{vKd[n]}', f's{sQn[qt]}', 'm0'] + ([dep] if dep else []), W=[], name=('Q', qt, n)))
    return l
def op_QR(qt, dst, va, off, dep):
    return [Op('ds', f'ds_read_b128 {ar(dst(qt,ks),4)}, v{va} offset:{off + ks*256}',
               R=[f'v{va}', dep, 'PA'], W=rng('a', dst(qt, ks), 4), name=('QR', qt, ks)) for ks in range(4)]
def op_L():
    l = []
    for qt in range(4):
        r = vRL[qt]
        l.append(valu(f'v_accvgpr_read_b32 v{r}, a{RS(qt)}', [f'a{RS(qt)}'], [f'v{r}']))
        l.append(valu(f'v_cmp_nge_f32 s[{sCmp[qt]}:{sCmp[qt]+1}], s{sThr}, v{r}', [f'v{r}'], [f's{sCmp[qt]}']))
        l.append(valu(f'v_rcp_f32 v{r}, v{r}', [f'v{r}'], [f'v{r}'], kind='trans'))
    return l
def op_EPI(u):
    l = []
    for qt in range(4):
        a, b = O(2*u, qt), O(2*u+1, qt)
        for x in list(range(a, a+4)) + list(range(b, b+4)):
            l.append(valu(f'v_mul_f32 v{x}, v{x}, v{vRL[qt]}', [f'v{x}', f'v{vRL[qt]}'], [f'v{x}']))
        for i, x in enumerate([a, a+2, b, b+2]):
            l.append(valu(f'v_cvt_pk_bf16_f32 v{a+i}, v{x}, v{x+1}', [f'v{x}', f'v{x+1}'], [f'v{a+i}']))
        l.append(Op('ds', f'ds_write_b128 v{vWr[u%2]}, {vr(a,4)} offset:{qt*2048}',
                    R=rng('v', a, 4) + [f'v{vWr[u%2]}', 'PAw'], W=[f'PA{qt}_{u%2}'], name=('OW', u, qt)))
    return l
def op_OR(R, half):
    return [Op('ds', f'ds_read_b128 {ar(OST(R,n),4)}, v{vRd} offset:{n*1024}',
               R=[f'v{vRd}', f'PA{n//2}_0', f'PA{n//2}_1'], W=rng('a', OST(R, n), 4), name=('OR', R, n)) for n in range(4*half, 4*half+4)]
def op_ST(R, half, dep, prev):
    l = []
    for n in range(4*half, 4*half+4):
        va = vOlo if n < 4 else vOhi
        so = (sOp if prev else sOo)[(n//2) % 2]
        l.append(Op('vst', f'buffer_store_dwordx4 {ar(OST(R,n),4)}, v{va}, {srd(sOP if prev else sO)}, s{so} offen offset:{(n%2)*2048 + R*128} {OPT["store_flags" if prev else "last_flags"]}'.rstrip(),
                    R=rng('a', OST(R, n), 4) + [f'v{va}', f's{so}', dep], W=[], name=('O', R, n)))
    return l
def op_OUT(R):
    l = []
    for half in range(2):
        rd = op_OR(R, half)
        l += rd + [wlg(rd, f'wO{R}_{half}')] + op_ST(R, half, f'wO{R}_{half}', False)
    return l
def wlg(targets, tag, prev=None):
    o = Op('wlg', None, W=[tag], targets=targets)
    o.prev_targets = [t.name for t in targets] if prev is None else prev
    return o
def wvm(names, tag, byname):
    o = Op('wvm', None, W=[tag], targets=[byname[x] for x in names if x in byname])
    o.prev_targets = names
    return o

def op_UPD():
    sa = lambda t, R, W: Op('salu', t, R=R, W=W)
    c = [f's{x}' for x in sCmp]
    p = lambda x: f's[{x}:{x+1}]'
    l = [sa(f's_or_b64 {p(sCmp[0])}, {p(sCmp[0])}, {p(sCmp[1])}', [c[0], c[1]], [c[0], 'scc']),
         sa(f's_or_b64 {p(sCmp[2])}, {p(sCmp[2])}, {p(sCmp[3])}', [c[2], c[3]], [c[2], 'scc']),
         sa(f's_or_b64 {p(sCmp[0])}, {p(sCmp[0])}, {p(sCmp[2])}', [c[0], c[2]], [c[0], 'scc']),
         sa('s_cselect_b32 s42, 1, 0', ['scc'], ['s42']),
         sa(f's_lshl_b32 s42, s42, s{sB}', ['s42', f's{sB}'], ['s42', 'scc']),
         sa(f's_or_b32 s{sFlag}, s{sFlag}, s42', ['s42'], [f's{sFlag}', 'scc']),
         sa(f's_mov_b64 {p(sOp[0])}, {p(sOo[0])}', [f's{sOo[0]}'], [f's{sOp[0]}']),
         sa(f's_mov_b64 {p(sOo[0])}, {p(sQn[0])}', [f's{sQn[0]}', f's{sQn[1]}'], [f's{sOo[0]}', f's{sOo[1]}']),
         sa(f's_mov_b32 s{sKV}, s{sKVn}', [f's{sKVn}'], [f's{sKV}']),
         sa(f's_add_u32 s{sB}, s{sB}, 1', [f's{sB}'], [f's{sB}', 'scc']),
         sa(f's_cselect_b32 s{sOP+2}, 0, {QBYTES}', ['scc'], [f's{sOP+2}']),
         sa(f's_cmp_lt_u32 s{sB}, 3', [f's{sB}'], ['scc']),
         sa(f's_cselect_b32 s42, {OPT["pst"]*PAIRQ}, 0', ['scc'], ['s42']),
         sa(f's_cselect_b32 s45, {OPT["pst"]*PAIRK}, 0', ['scc'], ['s45']),
         sa(f's_cselect_b32 s{sQ+2}, s{sQ+2}, 0', ['scc'], [f's{sQ+2}']),
         sa(f's_cselect_b32 s{sQB+2}, s{sQB+2}, 0', ['scc'], [f's{sQB+2}']),
         sa(f's_cselect_b32 s{sKn+2}, s{sKn+2}, 0', ['scc'], ['srdn']),
         sa(f's_cselect_b32 s{sVn+2}, s{sVn+2}, 0', ['scc'], ['srdn'])]
    l += [sa(f's_add_u32 s{x}, s{x}, s42', ['s42', f's{x}'], [f's{x}', 'scc']) for x in sQn]
    l += [sa(f's_add_u32 s{sKVn}, s{sKVn}, s45', ['s45', f's{sKVn}'], [f's{sKVn}', 'scc'])]
    return l

class Seg:
    def __init__(self):
        self.ops = []; self.nm = 0; self.byname = {}
    def add(self, l, need=None):
        for i, o in enumerate(l):
            if need and i == 0: o.R += need if isinstance(need, list) else [need]
            if o.kind == 'mfma': self.nm += 1
            if o.kind in ('dma', 'vld', 'vst'): self.byname[o.name] = o
            self.ops.append(o)
        return l
    def reads(self, l, tag, at):
        n = len(l)
        for i, o in enumerate(l):
            o.due = at - OPT['ds_lead'] - (n - 1 - i) * OPT['ds_sp']
            o.earliest = o.due - 2
        self.add(l)
        if tag: self.add([wlg(l, tag)])
    def spread(self, l, lo, hi, sp=None):
        mem = [o for o in l if o.kind in MEM_KINDS]
        for i, o in enumerate(mem):
            pos = lo + min(sp or OPT['vm_sp'] or 1000, (hi - lo) / len(mem)) * (i + 0.5)
            o.earliest = int(pos) - 2; o.due = pos + OPT['vm_due']
        for i, o in enumerate(l):
            if o.kind == 'salu':
                nx = next(x for x in l[i:] if x.kind in MEM_KINDS)
                o.earliest = nx.earliest - 6
        self.add(l)
    def barrier(self, nn, pos, waits):
        names = [('K', (nn+1) % 8, i) for i in range(4)] + [('V', nn % 8, i) for i in range(4)]
        wv = wvm(names, f'wvm{nn}', self.byname); wv.earliest = pos - 3
        bo = Op('bar', 's_barrier', R=[f'wvm{nn}'] + waits, W=[f'bar{nn}', f'Krdy{nn+1}', f'Vrdy{nn}'])
        bo.earliest = pos - 1; bo.due = pos + 1
        self.add([wv, bo])

def seg_A():
    g = Seg()
    start = {s: (s - 4) * 34 for s in range(4, 33)}
    barpos = {nn: start[4*nn+3] + 16 for nn in range(1, 8)}
    barpos[0] = -2
    def interval(nn, extra):
        bar = f'bar{nn}' if nn >= 1 else None
        k, v = op_DMA('K', nn + 4, bar), op_DMA('V', nn + 3, bar)
        if OPT['qsp']:
            h = {2: 4, 3: 0}.get(nn, (len(extra) // 2 + 1) // 2 * 2)
            l = k + extra[:h] + v + extra[h:]
        else: l = k + v + extra
        g.spread(l, barpos[nn] + 2, barpos[nn+1] - 6)
    qm0 = lambda j: f's_add_u32 m0, s{sPA}, {4096*j}'
    extras = {0: op_QD(0, qm0(0), 'wK4'), 1: op_QD(1, qm0(1), 'wK4'), 4: op_QD(2, qm0(0), 'wQA'), 5: op_QD(3, qm0(1), 'wQA')}
    if OPT['qsp']:
        def pieces(qts, dep):
            out = []
            for qt in qts:
                for p in op_QD(qt, '', dep)[1:]: out.append([Op('salu', qm0(qt % 2), R=[], W=['m0', 'scc']), p])
            return out
        a, b, c = pieces((0, 1), 'wK4'), pieces((2,), 'wQ0'), pieces((3,), 'wQ1')
        extras = {0: sum(a[:3], []), 1: sum(a[3:6], []), 2: sum(a[6:], []), 3: sum(b[:2], []), 4: sum(b[2:] + c[:1], []), 5: sum(c[1:], [])}
    w = wlg([], 'wK4', prev=[('RK', 4, ks) for ks in range(4)] + [('OR', R, n) for R in range(2) for n in range(8)]); w.due = -1
    g.add([w])
    sts = sum([op_ST(R, hf, 'wK4', True) for hf in range(2) for R in range(OPT['stb'], 2)], [])
    sts.sort(key=lambda o: (o.name[2], o.name[1]))
    g.spread(sts, OPT['st_lo'], OPT['st_hi'], 1000)
    interval(0, extras[0])
    for s in range(4, 32):
        if s > 4: g.reads(op_RK(s), f'wK{s}', start[s])
        g.add(op_SM(s - 1))
        g.add(op_QK(s), f'wK{s}')
        b = s - 4
        g.reads(op_RV(b), f'wV{b}', start[s] + 16)
        if s % 4 == 3: g.barrier(s // 4, barpos[s // 4], [f'wK{s}', f'wV{b}'])
        g.add(op_PV(b), f'wV{b}')
        g.add(op_RS(b // 4, b % 4))
        if s == 17 and not OPT['qsp']:
            wq = wvm([('Q', qt, n) for qt in range(2) for n in range(4)], 'vQA', g.byname); wq.earliest = start[17]
            g.add([wq])
            g.reads(op_QR(0, QN, vQa, 0, 'vQA') + op_QR(1, QN, vQa, 4096, 'vQA'), 'wQA', barpos[4] + 8)
        if s in (15, 19) and OPT['qsp']:
            qt = s // 19
            wq = wvm([('Q', qt, n) for n in range(4)], f'vQ{qt}', g.byname); wq.earliest = start[s + 2] - 4
            g.add([wq])
            g.reads(op_QR(qt, QN, vQa, 4096*qt, f'vQ{qt}'), f'wQ{qt}', start[s + 3] - 4)
        if s % 4 == 3 and s // 4 <= 6: interval(s // 4, extras.get(s // 4, []))
    g.add(op_SM(31)[:6*OPT['smq']])
    g.reads(op_RV(28), None, start[32] + 12)
    return g.ops

def seg_B():
    g = Seg()
    order = [{'R': ('RS', 0), 'V': ('PV', 28 + int(x[1:] or 0)), 'P': ('PS', int(x[1:] or 0)), 'K': ('QK', 32 + int(x[1:] or 0))}[x[0]]
             for x in OPT['bord'].split('.')]
    pos = {}; n = 0
    for k in order:
        pos[k] = n; n += 8 if k[0] == 'RS' else 16
    total = n
    g.add(op_SM(31)[6*OPT['smq']:])
    g.add([wlg([], 'wV28', prev=[o.name for o in op_RV(28)])])
    wq = wvm([('Q', qt, n) for qt in range(2, 4) for n in range(4)], 'vQB', g.byname); wq.due = -5
    g.add([wq])
    g.reads(op_QR(2, Q, vQa, 0, 'vQB') + op_QR(3, Q, vQa, 4096, 'vQB'), 'wQB', min(pos[('PV', 28)] + 24, pos[('PS', 2)]))
    for o in g.ops:
        if o.kind == 'ds': o.earliest = None; o.R.remove('PA'); o.R += [f'PA{q}_{p}' for q in range(4) for p in range(2)]
    barp = pos[('QK', 35)] - 1
    g.spread(op_DMA('K', 11, None) + op_DMA('V', 10, None), 2, barp - 40)
    for k in order:
        if k[0] == 'RS':
            for qt in range(4): g.add(op_RS(7, qt))
            g.add(op_L())
        elif k[0] == 'PS':
            g.add(op_PS(k[1], QN if k[1] < 2 else Q, P(0, 0, 0)), 'wQB' if k[1] == 2 else None)
        elif k[0] == 'PV':
            b = k[1]
            if b > 28: g.reads(op_RV(b), f'wV{b}', pos[k])
            g.add(op_PV(b), f'wV{b}')
            ep = op_EPI(b - 28)
            for i, o in enumerate(ep): o.due = pos[k] + 16 + 4 + OPT['epi_len'] * i / len(ep)
            g.add(ep)
            if b % 2 == 1:
                R = (b - 28) // 2
                out = op_OR(R, 0) + op_OR(R, 1)
                for i, o in enumerate(out): o.due = pos[k] + 16 + 4 + OPT['epi_len'] * (0.5 + 0.5 * i / len(out))
                g.add(out)
                if R == 0 and OPT['stb']:
                    g.add([wlg(out, 'wO0')])
                    st = op_ST(0, 0, 'wO0', False) + op_ST(0, 1, 'wO0', False)
                    for o in st: o.text = o.text.replace(OPT['last_flags'], OPT['store_flags']) if OPT['last_flags'] else o.text + ' ' + OPT['store_flags']
                    g.spread(st, pos[k] + 16 + 4 + OPT['epi_len'] + 10, total - 26, 1000)
        else:
            a = k[1]
            g.reads(op_RK(a), f'wK{a}', pos[k])
            if a > 32: g.add(op_SM(a - 33))
            if a == 35: g.barrier(8, barp, [f'wK{a}', 'wV31'])
            g.add(op_QK(a), f'wK{a}')
            if a == 32: g.add(op_MAX())
    g.reads(op_RK(36), None, total + 4)
    g.add(op_UPD())
    return g.ops

def seg_final():
    g = Seg()
    VFq = lambda u, Tb, h: [160, 176, 128, 144][u] + 8*Tb + 4*h
    x0 = P(0, 0, 0)
    vL, vI, vG, vW0, vW1, vS0, vS1, vX = [x0 + i for i in range(8)]
    va = lambda t, R, W: valu(t, [f'v{r}' for r in R], [f'v{W}'])
    adr = [va(f'v_and_b32 v{vI}, 15, v0', [], vI), va(f'v_bfe_u32 v{vG}, v0, 4, 2', [], vG),
           va(f'v_and_b32 v{vX}, 7, v0', [], vX), va(f'v_xor_b32 v{vX}, v{vX}, v{vG}', [vX, vG], vX),
           va(f'v_lshlrev_b32 v{vX}, 4, v{vX}', [vX], vX), va(f'v_lshl_add_u32 v{vX}, v{vI}, 8, v{vX}', [vX, vI], vX),
           va(f'v_add_u32 v{vW0}, s{sPA}, v{vX}', [vX], vW0), va(f'v_xor_b32 v{vW1}, 64, v{vW0}', [vW0], vW1),
           va(f'v_xor_b32 v{vL}, v{vI}, v{vG}', [vI, vG], vL), va(f'v_lshlrev_b32 v{vL}, 4, v{vL}', [vL], vL),
           va(f'v_lshl_add_u32 v{vS0}, v{vG}, 8, v{vL}', [vG, vL], vS0), va(f'v_xor_b32 v{vS1}, 64, v{vS0}', [vS0], vS1)]
    sm = op_SM(31)
    g.add([wlg([], 'wV0', prev=[o.name for o in op_RV(28)])])
    wq = wvm([('Q', qt, n) for qt in range(2, 4) for n in range(4)], 'PAw', g.byname); wq.earliest = 4
    g.add([wq])
    for u in range(1, 4):
        rv = op_RV(28 + u)
        for o, (Tb, h, jh) in zip(rv, [(a, b, c) for a in range(2) for b in range(2) for c in range(2)]):
            d = VFq(u, Tb, h) + 2*jh
            o.text = f'ds_read_b64_tr_b16 {ar(d,2)},' + o.text.split(',', 1)[1]; o.W = rng('a', d, 2)
            o.due = -20 + u
        g.add(rv); g.add([wlg(rv, f'wV{u}')])
    for i, o in enumerate(adr): o.due = 10
    g.add(adr)
    Lops = op_L()
    for qt in range(4):
        base = 18 * qt
        if qt >= OPT['smq']: g.add(sm[6*qt:6*qt+6])
        g.add(op_RS(7, qt))
        g.add(Lops[3*qt:3*qt+3])
        for u in range(4):
            for Tb in range(2):
                for h in range(2):
                    m = mfma('v', O(2*u+Tb, qt), 'a', VFq(u, Tb, h), 'v', P(1, h, qt), False)
                    if qt == 0 and Tb == 0 and h == 0: m.R.append(f'wV{u}')
                    g.add([m])
        ep = []
        for u in range(4):
            a, b = O(2*u, qt), O(2*u+1, qt)
            for x in list(range(a, a+4)) + list(range(b, b+4)):
                ep.append(valu(f'v_mul_f32 v{x}, v{x}, v{vRL[qt]}', [f'v{x}', f'v{vRL[qt]}'], [f'v{x}']))
            for i, x in enumerate([a, a+2, b, b+2]):
                ep.append(valu(f'v_cvt_pk_bf16_f32 v{a+i}, v{x}, v{x+1}', [f'v{x}', f'v{x+1}'], [f'v{a+i}']))
            w_ = [vW0, vW1][u % 2]
            ep.append(Op('ds', f'ds_write_b128 v{w_}, {vr(a,4)} offset:{(qt%2)*4096 + (u//2)*128}',
                         R=rng('v', a, 4) + [f'v{w_}', 'PAw'], W=[f'PB{qt%2}_{u}'], name=('OW', u, qt)))
        st = lambda n: OST(qt // 2, 4*(qt % 2) + n)
        rd = [Op('ds', f'ds_read_b128 {ar(st(n),4)}, v{vRd} offset:{(qt%2)*4096 + n*1024}',
                 R=[f'v{vRd}'] + [f'PB{qt%2}_{u}' for u in range(4)], W=rng('a', st(n), 4), name=('OR', qt, n)) for n in range(4)]
        ep += rd + [wlg(rd, f'wO{qt}')]
        if qt == 2:
            ep += [va(f'v_add_u32 v{x}, s46, v{x}', [x], x) for x in (vS0, vS1)]
        for n in range(4):
            s_ = [vS0, vS1][n % 2]
            ep.append(Op('vst', f'buffer_store_dwordx4 {ar(st(n),4)}, v{s_}, {srd(sO)}, s{sOo[qt%2]} offen offset:{n*1024} {OPT["last_flags"]}'.rstrip(),
                         R=rng('a', st(n), 4) + [f'v{s_}', f'wO{qt}'], W=[], name=('O', qt, n)))
        for i, o in enumerate(ep):
            o.due = base + 8 + OPT['fin_len'] * i / len(ep) + (OPT['fin_st'] * (1 + o.name[2]) if o.kind == 'vst' else 0)
            if o.kind == 'vst': o.earliest = o.due - 1
            if o.kind == 'wlg': o.due = None
        g.add(ep)
    return g.ops

def seg_first(qt, qr, dmas):
    g = Seg()
    g.add(qr); g.add([wlg(qr, 'wq')])
    raw = OPT['fraw']
    if not raw: g.add(op_PS(qt, Q, O(4, 0)), 'wq')
    tmp = lambda kt: S(1, qt) if kt == 3 else O(kt, qt)
    for kt in range(4):
        g.add([mfma('v', tmp(kt), 'a', 128 + 16*kt + 4*ks, 'a', Q(qt, ks), ks == 0) for ks in range(4)], 'wq' if (raw and kt == 0) else None)
    s = tmp(0); n = vNM[qt]; t, u = n + 1, n + 2
    mx = lambda d, a, b: valu(f'v_max_f32 v{d}, v{a}, v{b}', [f'v{a}', f'v{b}'], [f'v{d}'])
    mv = lambda d, a: valu(f'v_mov_b32 v{d}, v{a}', [f'v{a}'], [f'v{d}'])
    l = [valu(f'v_max3_f32 v{t}, v{s}, v{s+1}, v{s+2}', rng('v', s, 3), [f'v{t}']), mx(t, t, s+3),
         mv(u, t), perm(16, t, u), mx(t, t, u), mv(u, t), perm(32, t, u), mx(t, t, u)]
    if raw:
        l.append(valu(f'v_mul_f32 v{n}, s{sNC}, v{t}', [f'v{t}'], [f'v{n}']))
        if qt >= 2: l.append(valu(f'v_add_f32 v{n}, s47, v{n}', [f'v{n}'], [f'v{n}']))
    else: l.append(valu(f'v_sub_f32 v{n}, {"s47" if qt >= 2 else "0"}, v{t}', [f'v{t}'], [f'v{n}']))
    for o in l: o.due = 0
    g.add(l)
    if raw: g.add(op_PS(qt, Q, O(4, 0)))
    for kt in range(4):
        s = tmp(kt)
        for r in range(4):
            g.add([valu(f'v_fma_f32 v{s+r}, v{s+r}, s{sC}, v{n}' if raw else f'v_add_f32 v{s+r}, v{s+r}, v{n}', [f'v{s+r}', f'v{n}'], [f'v{s+r}'])])
        if kt == 3: break
        for r in range(4): g.add([valu(f'v_exp_f32 v{s+r}, v{s+r}', [f'v{s+r}'], [f'v{s+r}'], kind='trans')])
        p = P(0, kt // 2, qt) + 2*(kt % 2)
        for i in range(2): g.add([valu(f'v_cvt_pk_bf16_f32 v{p+i}, v{s+2*i}, v{s+2*i+1}', [f'v{s+2*i}', f'v{s+2*i+1}'], [f'v{p+i}'])])
    g.add([mv(n + i, n) for i in range(1, 4)])
    if dmas: g.spread(dmas, 0, 8)
    return g.ops

def resolve_waits(seqs):
    res = {}
    for kind, kinds, fmt, mx in (('wvm', ('dma', 'vld', 'vst'), 'vmcnt', 63), ('wlg', ('ds',), 'lgkmcnt', 15)):
        hist = []
        for si, sq in enumerate(seqs):
            for o in sq:
                if o.kind in kinds: hist.append(o.name)
                elif o.kind == kind:
                    last = max(len(hist) - 1 - hist[::-1].index(x) for x in o.prev_targets if x in hist)
                    res.setdefault(o, []).append(len(hist) - 1 - last)
        for o, l in res.items():
            if o.kind == kind: o.text = f's_waitcnt {fmt}({min(min(l), mx)})'
    return res

def lines(ops): return ''.join('    ' + o.text + '\n' for o in ops)
def padded(ops):
    build_deps(ops)
    out = []
    for o in ops:
        need = 0
        for p, d in o.preds.items():
            need = max(need, d - (len(out) - p.pos - 1))
        for _ in range(need): out.append(Op('salu', 's_nop 0'))
        o.pos = len(out); out.append(o)
    return out

def dbg_lines(ops, first):
    txt = ''; n = first
    for o in ops:
        txt += '    ' + o.text + '\n'
        if o.kind == 'bar':
            txt += f'    s_memtime s[{78+2*n}:{79+2*n}]\n'; n += 1
    return txt, n
DUMP = '    s_memtime s[96:97]\n    s_waitcnt lgkmcnt(0)\n' + ''.join(
    f'    v_writelane_b32 v38, s{78+2*i}, {i}\n' for i in range(11)) + \
    '    s_mov_b64 exec, 0xffff\n    buffer_store_dword v38, v39, s[60:63], s59 offen\n    s_mov_b64 exec, -1\n    s_add_u32 s59, s59, 64\n'

def main():
    segs = {}
    for nme, ops in (('A', seg_A()), ('B', seg_B()), ('D', seg_final())):
        sched.RESERVE = OPT['resd'] if nme == 'D' else OPT['res']
        segs[nme], stats = schedule(ops, OPT['ds_lead'], OPT['ds_lat'], OPT['vm_space'], nop_win=(OPT['nopw'] if nme == 'A' else 10000))
        print(nme, stats, file=sys.stderr)
    A = []
    w = A.append
    WARM1 = '''    s_getpc_b64 s[94:95]
L_pc:
    s_bfe_u32 s64, s2, 0x20003            ; (wg >> 3) & 3
    s_lshl_b32 s64, s64, 13
    v_lshlrev_b32 v28, 7, v0
    v_cmp_lt_u32 vcc, 63, v0
    v_mov_b32 v29, s64
    s_nop 0
    v_cndmask_b32 v29, 0, v29, vcc
    v_add_u32 v28, v28, v29
    v_min_u32 v28, L_end-L_pc, v28
    v_cmp_gt_u32 vcc, 128, v0
    s_and_saveexec_b64 s[64:65], vcc
    s_cbranch_execz L_w1
    global_load_dword a255, v28, s[94:95]
L_w1:
    s_mov_b64 exec, -1
''' if OPT['warm'] else ''
    w(f'''; GQA attention forward, B=16 Hq=32 Hkv=16 Sq=496 Sk=512 D=128, bf16.  Generated by gen/gen.py (own generator).
; 256 persistent workgroups x 4 waves; each wave 64 q rows; K/V tiles streamed through an LDS ring by LDS-DMA.
; Softmax reference point: max over the row's first 16 keys; a run-time check on the row sum redoes the rows
; @launch grid=(256,1,1) block=(256,1,1) lds=163840
.amdgcn_target "amdgcn-amd-amdhsa--gfx950"
.text
.globl {NAME}
.p2align 8
.type {NAME},@function
{NAME}:
    s_cmp_ge_u32 s2, 256
    s_cbranch_scc1 L_end
{'    s_memtime s[100:101]' if OPT['debug'] else ''}
    s_load_dwordx4 s[56:59], s[0:1], 0
    s_load_dwordx4 s[60:63], s[0:1], 16
{WARM1}    v_lshrrev_b32 v20, 6, v0
    v_and_b32 v21, 63, v0                 ; lane
    v_readfirstlane_b32 s42, v20          ; wave
    v_and_b32 v22, 15, v21                ; i
    v_lshrrev_b32 v23, 4, v21             ; g
    v_lshrrev_b32 v26, 2, v22             ; i/4
    v_and_b32 v27, 3, v21                 ; i%4
    ; DMA lane part: (i/4)*256 + g*64 + ((i%4)^f(n))*16
    v_lshlrev_b32 v30, 8, v26
    v_lshl_add_u32 v30, v23, 6, v30
    v_lshl_add_u32 v{vKd[0]}, v27, 4, v30
    v_xor_b32 v{vKd[1]}, 48, v{vKd[0]}
    v_xor_b32 v{vKd[2]}, 32, v{vKd[0]}
    v_xor_b32 v{vKd[3]}, 16, v{vKd[0]}
    s_and_b32 s43, s2, 7                  ; xcd
    s_lshr_b32 s44, s2, 3
    s_lshr_b32 s45, s44, 2                ; group
    s_and_b32 s44, s44, 3                 ; qb
    s_lshl_b32 s43, s43, 5
{'    s_lshl_b32 s45, s45, 2' if OPT['pst'] == 1 else ''}
    s_add_u32 s43, s43, s45               ; pair0
    s_lshl_b32 s{sW4k}, s42, 12
    s_lshl_b32 s{sKVn}, s43, 17
    s_add_u32 s{sKVn}, s{sKVn}, s{sW4k}
    s_mul_i32 s45, s43, {PAIRQ}
    s_lshl_b32 s46, s44, 16
    s_add_u32 s45, s45, s46
    s_lshl_b32 s46, s42, 14
    s_add_u32 s{sQn[0]}, s45, s46
    s_add_u32 s{sQn[1]}, s{sQn[0]}, 4096
    s_lshl_b32 s{sPA}, s42, 13
    s_add_u32 s{sPA}, s{sPA}, 131072
    s_lshl_b32 s46, s44, 2
    s_add_u32 s46, s46, s42
    s_cmp_eq_u32 s46, 15
    s_cselect_b32 s46, 0x40000000, 8192
    s_cselect_b32 s47, 0xff800000, 0
    s_cselect_b32 s45, 0, 8192
    s_cselect_b32 s{sQB+2}, 0, {QBYTES}
    s_add_u32 s{sQn[2]}, s{sQn[0]}, s45
    s_add_u32 s{sQn[3]}, s{sQn[1]}, s45
    s_mov_b32 s{sQ+2}, {QBYTES}
    s_mov_b32 s{sQ+3}, 0x20000
    s_mov_b32 s{sQB+3}, 0x20000
    s_mov_b32 s{sKn+2}, {KBYTES}
    s_mov_b32 s{sKn+3}, 0x20000
    s_mov_b32 s{sVn+2}, {KBYTES}
    s_mov_b32 s{sVn+3}, 0x20000
    s_waitcnt lgkmcnt(0)
    s_mov_b32 s{sKn}, s58
    s_mov_b32 s{sKn+1}, s59
    s_mov_b32 s{sQ}, s56
    s_mov_b32 s{sQ+1}, s57
    s_mov_b32 s{sQB}, s56
    s_mov_b32 s{sQB+1}, s57
    s_mov_b32 s{sVn}, s60
    s_mov_b32 s{sVn+1}, s61
''')
    if OPT['debug']:
        w('''    s_memrealtime s[98:99]
    s_waitcnt lgkmcnt(0)
    s_mov_b32 s67, s98
''')
    QTMP = [None, None, VBASE + 3*16384, 3*16384]
    pro = op_DMA('K', 8, None)
    pro += op_QD(0, f's_add_u32 m0, s{sPA}, 0') + op_QD(1, f's_add_u32 m0, s{sPA}, 4096')
    pro += op_QD(2, f's_add_u32 m0, s{sW4k}, {QTMP[2]}') + op_QD(3, f's_add_u32 m0, s{sW4k}, {QTMP[3]}')
    pro = padded(pro)
    w(lines(pro))
    w(f'''    ; remaining setup under the load latency
    s_mov_b32 s{sK}, s58
    s_mov_b32 s{sK+1}, s59
    s_mov_b32 s{sK+2}, {KBYTES}
    s_mov_b32 s{sK+3}, 0x20000
    s_mov_b32 s{sV}, s60
    s_mov_b32 s{sV+1}, s61
    s_mov_b32 s{sV+2}, {KBYTES}
    s_mov_b32 s{sV+3}, 0x20000
    s_mov_b32 s{sO}, s62
    s_mov_b32 s{sO+1}, s63
    s_mov_b32 s{sO+2}, {QBYTES}
    s_mov_b32 s{sO+3}, 0x20000
    s_mov_b32 s{sOP}, s62
    s_mov_b32 s{sOP+1}, s63
    s_mov_b32 s{sOP+3}, 0x20000
    s_mov_b32 s{sOo[0]}, 0
    s_mov_b32 s{sOo[1]}, 0
    v_sub_u32 v30, 0, v26
    v_and_b32 v30, 3, v30                 ; f(i/4)
    v_xor_b32 v30, v30, v23
    v_lshlrev_b32 v30, 4, v30
    v_lshl_add_u32 v30, v27, 6, v30
    v_lshl_add_u32 v{vKa}, v26, 10, v30
    v_add_u32 v{vQa}, s{sPA}, v{vKa}
    v_lshlrev_b32 v30, 10, v23
    v_lshl_add_u32 v30, v26, 6, v30
    v_lshl_add_u32 v30, v27, 4, v30
    v_add_u32 v{vVa}, {VBASE}, v30
{'    v_and_b32 v30, 16, v21' + chr(10) + '    v_lshrrev_b32 v30, 1, v30' + chr(10) + f'    v_add_u32 v{vVa}, v{vVa}, v30' if 'conf' in OPT['abl'] else ''}
    ; O staging: write addr = PA + i*128 + ((g ^ (i&7))*16); read addr = PA + lane*16; store lane part = (l/8)*256 + ((l%8)^(l/8))*16
    v_and_b32 v30, 7, v21
    v_xor_b32 v31, v30, v23
    v_lshlrev_b32 v31, 4, v31
    v_lshl_add_u32 v31, v22, 7, v31
    v_add_u32 v{vWr[0]}, s{sPA}, v31
    v_xor_b32 v{vWr[1]}, 64, v{vWr[0]}
    v_lshlrev_b32 v31, 4, v21
    v_add_u32 v{vRd}, s{sPA}, v31
    v_lshrrev_b32 v31, 3, v21
    v_xor_b32 v30, v30, v31
    v_lshlrev_b32 v30, 4, v30
    v_lshl_add_u32 v{vOlo}, v31, 8, v30
    v_add_u32 v{vOhi}, s46, v{vOlo}
    v_mov_b32 v30, s47
    v_cmp_lt_u32 vcc, 31, v21
    v_mov_b32 v31, 0x3f803f80
    s_mov_b32 s{sC}, {hex(f32(CSCALE))}
    v_cndmask_b32 v{vBias}, 0, v30, vcc
    s_mov_b32 s{sNC}, {hex(f32(-CSCALE))}
    s_mov_b32 s{sThr}, {hex(f32(2.0**64) if not OPT['force_slow'] else f32(-1.0))}
    s_mov_b32 s{sB}, -1
    s_mov_b32 s{sFlag}, 0
    s_mov_b64 s[{sCmp[0]}:{sCmp[0]+1}], 0
    s_mov_b64 s[{sCmp[1]}:{sCmp[1]+1}], 0
    s_mov_b64 s[{sCmp[2]}:{sCmp[2]+1}], 0
    s_mov_b64 s[{sCmp[3]}:{sCmp[3]+1}], 0
    v_accvgpr_write_b32 a{ONES}, v31
    v_accvgpr_write_b32 a{ONES+1}, v31
    v_accvgpr_write_b32 a{ONES+2}, v31
    v_accvgpr_write_b32 a{ONES+3}, v31
    v_add_u32 v{vX0}, s{sW4k}, v{vKa}
    v_add_u32 v{vX1}, {VBASE}, v{vX0}
    ; scale/selection matrices: lane (g,i) is live iff g == i/4; element i%4 of a 4-element half
    v_and_b32 v30, 1, v21
    v_lshlrev_b32 v30, 4, v30
    v_mov_b32 v31, {CHI}
    v_mov_b32 v28, {CLO}
    v_lshlrev_b32 v31, v30, v31
    v_lshlrev_b32 v28, v30, v28
    v_lshrrev_b32 v30, 1, v22             ; i/2
    v_lshlrev_b32 v29, 1, v23             ; 2g
    v_cmp_eq_u32 vcc, v30, v29
    v_add_u32 v29, 1, v29
    v_accvgpr_write_b32 a{SEL}, 0
    v_cndmask_b32 v24, 0, v31, vcc
    v_cndmask_b32 v25, 0, v28, vcc
    v_cmp_eq_u32 vcc, v30, v29
    v_accvgpr_write_b32 a{SEL+2}, v24
    v_accvgpr_write_b32 a{SEL+6}, v25
    v_cndmask_b32 v24, 0, v31, vcc
    v_cndmask_b32 v25, 0, v28, vcc
    v_accvgpr_write_b32 a{SEL+1}, 0
    v_accvgpr_write_b32 a{SEL+4}, 0
    v_accvgpr_write_b32 a{SEL+5}, 0
    v_accvgpr_write_b32 a{SEL+8}, 0
    v_accvgpr_write_b32 a{SEL+9}, 0
    v_accvgpr_write_b32 a{SEL+3}, v24
    v_accvgpr_write_b32 a{SEL+7}, v25
''')
    w(lines(op_UPD()))
    stamp = lambda i: [Op('salu', f's_memtime s[{78+2*i}:{79+2*i}]')] if OPT['debug'] else []
    qr = [op_QR(0, Q, vQa, 0, 'x'), op_QR(1, Q, vQa, 4096, 'x'), op_QR(2, Q, vX1, 3*16384, 'x'), op_QR(3, Q, vX0, 3*16384, 'x')]
    names = lambda t, *idx: [(t, i, n) for i in idx for n in range(4)]
    F = stamp(0) + [wvm(names('K', 0), 'x', {})] + stamp(1) + [Op('salu', 's_barrier')] + stamp(2)
    F += [Op('ds', f'ds_read_b128 {ar(128 + 16*kt + 4*ks, 4)}, v{vKa} offset:{kt*4096 + ks*256}', name=('RK0', kt, ks)) for kt in range(4) for ks in range(4)]
    F += padded(op_DMA('K', 1, None))
    fd = [op_DMA('V', 0, None), op_DMA('K', 2, None), op_DMA('V', 1, None), op_DMA('K', 3, None) + op_DMA('V', 2, None)]
    if OPT['fo'] == 1: fd = [fd[0], [], [], fd[1] + fd[2]]
    for qt in range(4):
        F += [wvm(names('Q', qt), 'x', {})] + stamp(3 + qt)
        sched.RESERVE = 24
        sg, stats = schedule(seg_first(qt, qr[qt], None), OPT['ds_lead'], OPT['ds_lat'], 1)
        print('F', qt, stats, file=sys.stderr)
        F += sg + (stamp(7) if qt == 3 else []) + padded(fd[qt])
    F += [wvm(names('K', 1) + names('V', 0), 'x', {}), Op('bar', 's_barrier')] + op_RK(4)
    if OPT['fo'] == 1: F += padded(op_DMA('K', 3, None) + op_DMA('V', 2, None))
    segs['F'] = F
    sq = [pro, segs['F'], []] + [segs['A'], segs['B']] * 3 + [segs['A'], segs['D']]
    r = resolve_waits(sq)
    print([(o.text, l) for o, l in r.items() if o.kind == 'wvm'], file=sys.stderr)
    if OPT['debug']:
        w('''    s_load_dwordx2 s[60:61], s[0:1], 40
    s_mov_b32 s62, 0x1000000
    s_mov_b32 s63, 0x20000
    s_lshl_b32 s59, s2, 14
    s_add_u32 s59, s59, s39
    s_lshr_b32 s59, s59, 3
    v_lshlrev_b32 v39, 2, v21
    s_waitcnt lgkmcnt(0)
''')
    if 'rs' in OPT['abl']:
        segs['A'] = [o if not (o.kind == 'mfma' and o.text.split()[1].startswith('a[')) else Op('salu', 's_nop 0') for o in segs['A']]
    if 'dma' in OPT['abl']:
        for sg in 'AB':
            segs[sg] = [o if not (o.kind == 'dma' and o.name[0] in 'KV') else Op('salu', 's_nop 0') for o in segs[sg]]
    if 'ds' in OPT['abl'].split():
        for sg in 'AB':
            segs[sg] = [o if not (o.kind == 'ds' and o.name[0] in ('RK', 'RV')) else Op('salu', 's_nop 0') for o in segs[sg]]
    upd = 'L_next:\n' + ('' if OPT['updin'] else lines(op_UPD()))
    pad = lambda n: [Op('salu', 'x') for _ in range(n)]
    bad = check_hazards(segs['F'] + segs['A'] + pad(2) + segs['B'] + pad(1) + segs['A'] + pad(2) + segs['D'])
    assert bad == 0, bad
    if not OPT['debug']:
        w(lines(segs['F']))
        w(lines(sq[2]))
        w(upd)
        w(lines(segs['A']))
        w(f'    s_cmp_eq_u32 s{sB}, 3\n    s_cbranch_scc1 L_final\n')
        w(lines(segs['B']))
        w('    s_branch L_next\nL_final:\n')
        w(lines(segs['D']))
    else:
        w(dbg_lines(segs['F'], 8)[0]); w(DUMP)
        w(lines(sq[2]))
        w(upd)
        w('    s_memtime s[78:79]\n    s_memrealtime s[98:99]\n')
        w(dbg_lines(segs['A'], 1)[0])
        w(f'    s_cmp_eq_u32 s{sB}, 3\n    s_cbranch_scc1 L_final\n')
        w(dbg_lines(segs['B'], 8)[0]); w(DUMP)
        w('    s_branch L_next\nL_final:\n')
        w(lines(segs['D'])); w('    s_memtime s[94:95]\n'); w(DUMP)
        w('''    s_waitcnt vmcnt(0)
    s_memtime s[78:79]
    s_memrealtime s[98:99]
    s_waitcnt lgkmcnt(0)
    v_mov_b32 v36, s78
    v_mov_b32 v37, s98
    v_mov_b32 v38, s100
    v_mov_b32 v39, s67
    s_mov_b64 exec, 1
    buffer_store_dwordx4 v[36:39], off, s[60:63], s59
    s_mov_b64 exec, -1
''')
    w(f'''    s_or_b64 s[{sCmp[0]}:{sCmp[0]+1}], s[{sCmp[0]}:{sCmp[0]+1}], s[{sCmp[1]}:{sCmp[1]+1}]
    s_or_b64 s[{sCmp[2]}:{sCmp[2]+1}], s[{sCmp[2]}:{sCmp[2]+1}], s[{sCmp[3]}:{sCmp[3]+1}]
    s_or_b64 s[{sCmp[0]}:{sCmp[0]+1}], s[{sCmp[0]}:{sCmp[0]+1}], s[{sCmp[2]}:{sCmp[2]+1}]
    s_cselect_b32 s42, 8, 0
    s_or_b32 s{sFlag}, s{sFlag}, s42
''')
    w(slow_path())
    w(f'''L_end:
    s_endpgm
.section .rodata,"a"
.p2align 6
.amdhsa_kernel {NAME}
  .amdhsa_next_free_vgpr 512
  .amdhsa_next_free_sgpr {102 if OPT['debug'] else 96}
  .amdhsa_accum_offset 256
  .amdhsa_group_segment_fixed_size 0
  .amdhsa_kernarg_size 48
  .amdhsa_user_sgpr_count 2
  .amdhsa_user_sgpr_kernarg_segment_ptr 1
  .amdhsa_system_sgpr_workgroup_id_x 1
.end_amdhsa_kernel
''')
    open(sys.argv[1], 'w').write(''.join(A))

def slow_path():
    raw = lambda t: Op('salu', t)
    T = []
    w = T.append
    sPair, sKoff, sJ = 56, 57, 58
    vF, vFh, vTr = 36, 37, 38
    w(f'''    s_cmp_eq_u32 s{sFlag}, 0
    s_cbranch_scc1 L_end
    s_waitcnt vmcnt(0) lgkmcnt(0)
    s_mov_b32 s{sQ+2}, {QBYTES}
    s_sub_u32 s42, s{sPA}, {VBASE}
    v_add_u32 v{vTr}, s42, v{vVa}
    v_and_b32 v20, 15, v0
    v_bfe_u32 v21, v0, 4, 2
    v_lshlrev_b32 v20, 8, v20
    v_lshl_add_u32 v{vF}, v21, 4, v20
    v_add_u32 v{vFh}, s46, v{vF}
    s_mov_b32 s{sB}, 0
L_slow_blk:
    s_lshr_b32 s42, s{sFlag}, s{sB}
    s_and_b32 s42, s42, 1
    s_cmp_eq_u32 s42, 0
    s_cbranch_scc1 L_slow_next
    s_mul_i32 s42, s{sB}, {OPT['pst']}
    s_add_u32 s{sPair}, s43, s42
    s_mul_i32 s42, s{sPair}, {PAIRQ}
    s_lshl_b32 s45, s44, 16
    s_add_u32 s42, s42, s45
    s_lshl_b32 s45, s{sW4k}, 2
    s_add_u32 s{sOo[0]}, s42, s45
    s_add_u32 s{sOo[1]}, s{sOo[0]}, 4096
''')
    for qt in range(4):
        for ks in range(4):
            w(f'    buffer_load_dwordx4 {ar(Q(qt,ks),4)}, v{vF if qt < 2 else vFh}, {srd(sQ)}, s{sOo[qt%2]} offen offset:{ks*64}\n')
    for qt in range(4): w(f'    v_mov_b32 v{vT[qt]}, 0xff800000\n')
    w(f'''    s_lshl_b32 s{sKoff}, s{sPair}, 17
    s_mov_b32 s{sJ}, 0
L_slow_p1:
''')
    def kload(buf):
        return [raw(f'buffer_load_dwordx4 {ar(KF(buf,ks),4)}, v{vF}, {srd(sK)}, s{sKoff} offen offset:{ks*64}') for ks in range(4)]
    w(lines(kload(0)))
    w('    s_waitcnt vmcnt(0)\n')
    l = op_QK(0, True)
    for qt in range(4):
        s = S(0, qt)
        l.append(valu(f'v_max3_f32 v{vT[qt]}, v{s}, v{s+1}, v{vT[qt]}', [f'v{s}', f'v{s+1}', f'v{vT[qt]}'], [f'v{vT[qt]}']))
        l.append(valu(f'v_max3_f32 v{vT[qt]}, v{s+2}, v{s+3}, v{vT[qt]}', [f'v{s+2}', f'v{s+3}', f'v{vT[qt]}'], [f'v{vT[qt]}']))
    w(lines(padded(l)))
    w(f'''    s_add_u32 s{sKoff}, s{sKoff}, 4096
    s_add_u32 s{sJ}, s{sJ}, 1
    s_cmp_lt_u32 s{sJ}, 32
    s_cbranch_scc1 L_slow_p1
''')
    w(lines(padded(op_reduce(True))))
    for i in range(128): w(f'    v_mov_b32 v{128+i}, 0\n')
    for i in range(16): w(f'    v_accvgpr_write_b32 a{RS(0)+i}, 0\n')
    w(f'''    s_lshl_b32 s{sKoff}, s{sPair}, 17
    s_mov_b32 s{sJ}, 0
L_slow_p2:
''')
    w(f'    s_mov_b32 m0, s{sPA}\n    s_nop 0\n')
    for n in range(4): w(f'    buffer_load_dwordx4 v{vKd[0]}, {srd(sV)}, s{sKoff} offen offset:{n*1024} lds\n')
    w(lines(kload(0)))
    w(f'    s_add_u32 s{sKoff}, s{sKoff}, 4096\n    s_add_u32 m0, s{sPA}, 4096\n    s_nop 0\n')
    for n in range(4): w(f'    buffer_load_dwordx4 v{vKd[0]}, {srd(sV)}, s{sKoff} offen offset:{n*1024} lds\n')
    w(lines(kload(1)))
    w(f'    s_add_u32 s{sKoff}, s{sKoff}, 4096\n    s_waitcnt vmcnt(0)\n')
    l = op_QK(0, True) + op_SM(0, True) + op_QK(1, True) + op_SM(1, True)
    for qt in range(4): l.append(mfma('a', RS(qt), 'a', ONES, 'v', P(0, 0, qt), False))
    w(lines(padded(l)))
    for u in range(4):
        for Tb in range(2):
            for jh in range(2):
                d = VF(0, Tb, 0) + 2*jh
                w(f'    ds_read_b64_tr_b16 {ar(d,2)}, v{vTr} offset:{jh*4096 + u*256 + Tb*8}\n')
        w('    s_waitcnt lgkmcnt(0)\n')
        for Tb in range(2):
            for qt in range(4):
                w('    ' + mfma('v', O(2*u+Tb, qt), 'a', VF(0, Tb, 0), 'v', P(0, 0, qt), False).text + '\n')
        w('    s_nop 7\n')
    w(f'''    s_add_u32 s{sJ}, s{sJ}, 1
    s_cmp_lt_u32 s{sJ}, 16
    s_cbranch_scc1 L_slow_p2
    s_nop 7
''')
    l = op_L()
    for u in range(4):
        l += op_EPI(u)
        if u % 2: l += op_OUT(u // 2)
    for o in l:
        if o.kind == 'wlg': o.text = 's_waitcnt lgkmcnt(0)'
    w(lines(padded(l)))
    w(f'''    s_waitcnt vmcnt(0)
L_slow_next:
    s_add_u32 s{sB}, s{sB}, 1
    s_cmp_lt_u32 s{sB}, 4
    s_cbranch_scc1 L_slow_blk
''')
    return ''.join(T)

main()
```

```python
import re, sys

DSW_COST = 20
VM_COST = 8
ST_COST = 8
PK_LEAD = 20
PK_MIN = 2
STRICT1 = True
BAR_EXCL = True
RESERVE = 0
VALU_KINDS = ('valu', 'trans', 'perm', 'pk')
NORM_KINDS = ('valu', 'trans', 'perm')
MEM_KINDS = ('ds', 'dma', 'vld', 'vst')
SALU_KINDS = ('salu', 'wlg', 'wvm', 'bar')

def rng(p, a, n):
    return [f'{p}{i}' for i in range(a, a + n)]

class Op:
    __slots__ = ('kind', 'text', 'R', 'W', 'C', 'due', 'earliest', 'targets', 'preds', 'succs', 'idx',
                 'pos', 'cyc', 'name', 'midx', 'extra', 'prev_targets')
    def __init__(self, kind, text, R=(), W=(), C=(), due=None, earliest=None, targets=None, name=None, after=()):
        self.kind = kind; self.text = text
        self.R = list(R); self.W = list(W); self.C = list(C)
        self.due = due; self.earliest = earliest
        self.targets = targets; self.prev_targets = None
        self.preds = {}; self.succs = []
        self.pos = None; self.cyc = None; self.name = name; self.midx = None
        self.extra = list(after)
    def cost(self):
        if self.kind == 'ds' and self.text.startswith('ds_write'): return {'b128': DSW_COST, 'b64': 12, 'b32': 8}[self.text.split()[0][9:]]
        if self.kind == 'dma': return VM_COST
        if self.kind == 'vst': return ST_COST
        return 8 if self.kind in ('trans', 'mfma', 'perm') else 4

def big(o): return o.kind == 'mfma' and '32x32' in o.text

def is_reg(r):
    return re.match(r'^[va]\d+$', r) is not None

def hz_raw(p, c, r):
    if r == 'm0':
        return 1 if c.kind == 'dma' else 0
    if not is_reg(r):
        if p.kind in VALU_KINDS and c.kind in MEM_KINDS: return 5
        if p.kind in VALU_KINDS and c.kind in VALU_KINDS: return 2
        if p.kind in VALU_KINDS: return 1
        return 0
    if p.kind == 'mfma':
        if c.kind == 'mfma' and r in c.C and set(c.C) == set(p.W): return 0
        return 12 if big(p) else 8
    if p.kind in VALU_KINDS:
        if c.kind == 'mfma': return 2
        if c.kind == 'perm': return 2
        if p.kind == 'trans' and c.kind != 'trans': return 1
        return 0
    return 0
def hz_waw(p, c, r):
    if is_reg(r) and p.kind == 'mfma' and (c.kind != 'mfma' or big(p) != big(c)): return 12 if big(p) else 8
    return 0
def hz_war(p, c, r):
    if not is_reg(r): return 0
    if p.kind == 'mfma' and r in p.C and c.kind in VALU_KINDS: return 7 if big(p) else 3
    if p.kind == 'vst' and c.kind in VALU_KINDS: return 2
    if p.kind == 'vst': return 1
    if p.kind == 'ds' and p.text.startswith('ds_write') and c.kind in VALU_KINDS + ('mfma',): return 2
    return 0

def build_deps(ops):
    lastw = {}; readers = {}
    prev_m = None
    mi = 0
    for i, o in enumerate(ops):
        o.idx = i
        def add(p, d):
            if p is o: return
            o.preds[p] = max(o.preds.get(p, 0), d)
        for r in o.R:
            if r in lastw: add(lastw[r], hz_raw(lastw[r], o, r))
        for r in o.W:
            if r in lastw: add(lastw[r], hz_waw(lastw[r], o, r))
            for p in readers.get(r, []): add(p, hz_war(p, o, r))
        for p in o.extra: add(p, 0)
        if o.targets:
            for p in o.targets: add(p, 0)
        if o.kind == 'mfma':
            if prev_m is not None: add(prev_m, 0)
            prev_m = o; o.midx = mi; mi += 1
        for r in o.R: readers.setdefault(r, []).append(o)
        for r in o.W:
            lastw[r] = o; readers[r] = []
    for o in ops:
        for p in o.preds: p.succs.append(o)
    return mi

def compute_due(ops, nm, ds_lead):
    INF = nm + 1000
    for o in reversed(ops):
        if o.kind == 'mfma':
            o.due = o.midx; continue
        d = INF
        for s in o.succs:
            sd = s.due
            if s.kind == 'wlg' and o.kind == 'ds': sd -= ds_lead
            elif s.kind != 'mfma': sd -= 0.25
            d = min(d, sd)
        if o.due is not None: d = min(d, o.due)
        o.due = d

def schedule(ops, ds_lead=10, ds_lat=160, vm_space=3, pace_end=None, nop_win=1000):
    nm = build_deps(ops)
    compute_due(ops, nm, ds_lead)
    mf = [o for o in ops if o.kind == 'mfma']
    pend = [o for o in ops if o.kind != 'mfma']
    out = []
    st = dict(cyc=0, lastvm=-100, k=-1, lds_out=[])
    def emit(o):
        o.pos = len(out); o.cyc = st['cyc']; out.append(o)
        if o.kind in ('dma', 'vld', 'vst'): st['lastvm'] = st['k']
    def ready(o):
        n = len(out)
        for p, d in o.preds.items():
            if p.pos is None or n - p.pos - 1 < d: return False
        return True
    def allowed(o):
        if o.earliest is not None and st['k'] < o.earliest: return False
        if o.kind in ('dma', 'vld', 'vst') and st['k'] - st['lastvm'] < vm_space and o.due > st['k'] + 1: return False
        return True
    def cands(kinds, force=False):
        c = [o for o in pend if o.kind in kinds and ready(o) and (force or allowed(o))]
        c.sort(key=lambda o: (o.due, o.idx))
        return c
    def take(o):
        pend.remove(o); emit(o)
        if o.kind not in SALU_KINDS: st['fill'] += o.cost()
    def nop():
        o = Op('salu', 's_nop 0'); emit(o); st['cyc'] += 4
    def wait_ok(o):
        if o.kind == 'wlg':
            if o.due <= st['k'] + 1.01: return True
            return st['cyc'] - max([t.cyc for t in o.targets] or [-1000]) >= ds_lat and o.due <= st['k'] + 6
        if o.kind in ('wvm', 'bar'):
            return o.earliest is None or st['k'] >= o.earliest
        return True
    def needed_closure(m):
        seen = set(); stack = [m]
        while stack:
            x = stack.pop()
            for p in x.preds:
                if p.pos is None and p not in seen and p.kind != 'mfma':
                    seen.add(p); stack.append(p)
        return seen
    stats = dict(under=0, over=0, pen=0, nops=0)
    total_fill = sum(o.cost() for o in pend if o.kind not in SALU_KINDS)
    st['fill'] = 0
    pe = pace_end or nm
    cum = [0]
    for m_ in mf: cum.append(cum[-1] + (2 if big(m_) else 1))
    def chained(k):
        return k + 1 < nm and mf[k+1].C and set(mf[k+1].C) == set(mf[k].W)
    def fill_gap():
        used = 0; valu_seen = False
        ch = chained(st['k'])
        BUD = 24 if big(mf[st['k']]) else 8
        c = [o for o in cands(SALU_KINDS) if wait_ok(o)]
        c = [o for o in c if not (o.kind == 'bar' and ch and BAR_EXCL and o.due > st['k'] - 3)]
        free_slot = not c
        if c:
            take(c[0])
            if c[0].kind == 'bar' and BAR_EXCL: return 8, False
        while used < BUD:
            c = cands(NORM_KINDS + (MEM_KINDS if not valu_seen else ()))
            if ch: c = [o for o in c if o.cost() <= BUD or o.due <= st['k'] - 4]
            if used > 0:
                c = [o for o in c if o.cost() + used <= BUD]
                nv = [o for o in c if o.kind in VALU_KINDS or o.due <= st['k'] - 3]
                if nv or STRICT1: c = nv
            if not c:
                if any(o.kind in NORM_KINDS and o.due <= st['k'] + nop_win and all(p.pos is not None for p in o.preds) and allowed(o) and not ready(o) for o in pend):
                    emit(Op('salu', 's_nop 0')); stats['nops'] += 1
                    if free_slot and used == 0: free_slot = False
                    else:
                        used += 4; st['cyc'] += 4; stats['under'] += 4
                    continue
                break
            o = c[0]
            if used == 0:
                if not ch or BUD > 8:
                    bg = [x for x in c if x.cost() > 8]
                    if bg: o = bg[0]
                small = [x for x in c if x.cost() == 4]
                if o.cost() == 4:
                    if len(small) < 2:
                        ex = [x for x in c if x.cost() == 8]
                        if ex and o.due > st['k'] + 2: o = ex[0]
                    else:
                        a, b = small[0], small[1]
                        if a.kind in VALU_KINDS and b.kind in MEM_KINDS: o = b
            take(o); used += o.cost(); st['cyc'] += o.cost()
            if o.kind in VALU_KINDS: valu_seen = True
        if not ch:
            j = st['k'] + 1
            while chained(j): j += 1
            tgt = total_fill * min(1.0, cum[min(j, nm)] / cum[nm]) - sum(24 if big(mf[x]) else 8 for x in range(st['k'] + 1, j))
            while True:
                pk = cands(('pk',))
                behind = st['fill'] + 2 < tgt
                if used >= PK_LEAD and pk: o = pk[0]
                else:
                    c = cands(NORM_KINDS)
                    want = len(pk) >= PK_MIN and used < PK_LEAD and sum(x.cost() for x in c) >= PK_LEAD - used + 8 * (j - st['k'] - 1)
                    if not c or not (behind or want): break
                    if sum(x.cost() for x in c[1:]) < min(RESERVE, 8 * (nm - 1 - st['k'])): break
                    o = c[0]
                take(o); used += o.cost(); st['cyc'] += o.cost(); valu_seen = True
        return used, valu_seen
    used, valu_seen = 0, True
    gapstart = 0
    for k, m in enumerate(mf + [None]):
        while True:
            if m is None:
                if not pend: break
                need = set(pend)
            else:
                if ready(m): break
                need = needed_closure(m)
            c = [o for o in cands(VALU_KINDS + MEM_KINDS + SALU_KINDS, force=True) if o in need]
            if c:
                o = c[0]
                if o.kind == 'wlg' and st['cyc'] - max([t.cyc for t in o.targets] or [-1000]) < ds_lat:
                    alt = [x for x in c if x.kind != 'wlg'] or cands(VALU_KINDS)
                    if alt: o = alt[0]
            else:
                c2 = cands(VALU_KINDS) or [x for x in cands(SALU_KINDS) if wait_ok(x) and x.kind == 'salu']
                if c2: o = c2[0]
                else:
                    nop(); used += 4; stats['nops'] += 1; continue
            if o.kind == 'pk' and used < PK_LEAD and k > 0:
                alt = cands(NORM_KINDS)
                if alt: o = alt[0]
                else:
                    st['cyc'] += PK_LEAD - used; stats['under'] += PK_LEAD - used; used = PK_LEAD
            if o.kind in MEM_KINDS and valu_seen:
                st['cyc'] += 8; used += 8; stats['pen'] += 1
            take(o); used += o.cost(); st['cyc'] += o.cost()
            valu_seen = o.kind in VALU_KINDS or (valu_seen and o.kind not in MEM_KINDS)
        if k > 0:
            bd = 24 if big(mf[k-1]) else 8
            if used < bd:
                stats['under'] += bd - used; st['cyc'] += bd - used
            else: stats['over'] += used - bd
        if m is None: break
        st['k'] = k
        emit(m); st['cyc'] += 8
        used, valu_seen = fill_gap()
    stats['cycles'] = st['cyc']; stats['ninst'] = len(out)
    return out, stats

def check_hazards(seq):
    lastw = {}; readers = {}
    bad = 0
    for n, o in enumerate(seq):
        def chk(pn, p, d, what, r):
            nonlocal bad
            if n - pn - 1 < d:
                print(f'HAZARD {what} {r}: [{pn}] {p.text} -> [{n}] {o.text} need {d}', file=sys.stderr); bad += 1
        for r in o.R:
            if r in lastw: chk(*lastw[r], hz_raw(lastw[r][1], o, r), 'RAW', r)
        for r in o.W:
            if r in lastw: chk(*lastw[r], hz_waw(lastw[r][1], o, r), 'WAW', r)
            for pn, p in readers.get(r, []):
                if p is not o: chk(pn, p, hz_war(p, o, r), 'WAR', r)
        for r in o.R: readers.setdefault(r, []).append((n, o))
        for r in o.W:
            lastw[r] = (n, o); readers[r] = []
    return bad
```

```python
import sys, struct, math
import sched
from sched import *

OPT = dict(store_flags='nt', ds_lead=8, ds_lat=120, vm_space=3, debug=0, force_slow=0, q_flags='nt', kv_flags='nt',
           ds_sp=4, vshift=0, st_lo=10, st_hi=900, last_flags='nt', epi_len=20, warm=1, abl='', bou=1, pk=0, vmc=12, stc=20, vm_due=4, pkf=1, pkd=4, vm_sp=0, updin=1, fo=0, pst=1, strict=1, barx=1, qsp=0, stb=0, smq=3, q4=1, fraw=1, res=64, resd=40, bord='R.V0.P0.V1.P1.P2.V2.P3.K0.V3.K1.K2.K3', nopw=6, finq=1, fin_len=18, fin_st=4)
for a in sys.argv[2:]:
    k, v = a.split('=')
    OPT[k] = int(v) if v.lstrip('-').isdigit() else v.replace('+', ' ')

sched.STRICT1 = OPT['strict']; sched.RESERVE = OPT['res']; sched.BAR_EXCL = OPT['barx']; sched.VM_COST = OPT['vmc']; sched.ST_COST = OPT['stc']
NAME = 'standalone__gqa_softmax__near_ridge_kernel'
def bf16(x):
    u = struct.unpack('<I', struct.pack('<f', x))[0]
    return (u + 0x7fff + ((u >> 16) & 1)) >> 16
def unbf(h): return struct.unpack('<f', struct.pack('<I', h << 16))[0]
def f32(x): return struct.unpack('<I', struct.pack('<f', x))[0]
CSCALE = math.log2(math.e) / math.sqrt(128.0)
CHI = bf16(CSCALE); CLO = bf16(CSCALE - unbf(CHI))
QBYTES = 16*32*496*128*2
KBYTES = 16*16*512*128*2
PAIRQ = 992*256
PAIRK = 512*256

vKa, vVa, vOlo, vOhi = 1, 2, 3, 4
vKd = [5, 6, 7, 8]
vQa = 9
vBias = 10
vRd = 11
vWr = [12, 13]
vRL = [14, 15, 16, 17]
vNM = [20, 24, 28, 32]
vT = [21, 25, 29, 33]
vX0, vX1, vD0, vD1 = 36, 37, 38, 39
def S(buf, qt): return 40 + 4*qt if qt < 2 else 48 + 8*(qt - 2) + 4*buf
def P(par, h, qt): return 64 + 32*par + 16*h + 4*qt
def O(T, qt): return 128 + 16*T + 4*qt
def Q(qt, ks): return 16*qt + 4*ks
def QN(qt, ks): return 64 + 16*qt + 4*ks
def KF(buf, ks): return 128 + 16*buf + 4*ks
def VF(buf, Tb, h): return 160 + 16*buf + 8*Tb + 4*h
def RS(qt): return 192 + 4*qt
ONES = 208
SEL = 244
def OST(R, n): return (96 if R == 0 else 212) + 4*n
sQ, sK, sV, sO, sKn, sVn, sQB = 4, 8, 12, 16, 20, 24, 68
sKV, sKVn = 28, 29
sQn = [30, 31, 64, 65]
sOo = [32, 33]
sC, sNC, sThr, sB, sFlag, sW4k = 34, 35, 36, 37, 38, 39
sTK, sTV = 40, 41
sCmp = [48, 50, 52, 54]
sOP = 72
sOp = [76, 77]
sPA = 66
VBASE = 65536

def vr(a, n): return f'v[{a}:{a+n-1}]'
def ar(a, n): return f'a[{a}:{a+n-1}]'
def srd(a): return f's[{a}:{a+3}]'

def mfma(dp, d, ap, a, bp, b, zero, cin=None):
    cr = d if cin is None else cin
    zero = zero and cin is None
    c = '0' if zero else f'{dp}[{cr}:{cr+3}]'
    D = rng(dp, d, 4); C = [] if zero else rng(dp, cr, 4)
    return Op('mfma', f'v_mfma_f32_16x16x32_bf16 {dp}[{d}:{d+3}], {ap}[{a}:{a+3}], {bp}[{b}:{b+3}], {c}',
              R=rng(ap, a, 4) + rng(bp, b, 4) + C, W=D, C=C)
def valu(text, R, W, kind='valu', **kw): return Op(kind, text, R=R, W=W, **kw)

def op_RK(a):
    tile, kt = divmod(a, 4)
    slot = tile % 4
    l = []
    for ks in range(4):
        d = KF(a % 2, ks)
        l.append(Op('ds', f'ds_read_b128 {ar(d,4)}, v{vKa} offset:{slot*16384 + kt*4096 + ks*256}',
                    R=[f'v{vKa}', f'Krdy{tile}'], W=rng('a', d, 4), name=('RK', a % 32, ks)))
    return l
def op_RV(b):
    tile, u = divmod(b, 4)
    slot = tile % 4
    l = []
    for Tb in range(2):
        for h in range(2):
            for jh in range(2):
                d = VF(b % 2, Tb, h) + 2*jh
                off = slot*16384 + h*8192 + jh*4096 + u*256 + Tb*8
                l.append(Op('ds', f'ds_read_b64_tr_b16 {ar(d,2)}, v{vVa} offset:{off}',
                            R=[f'v{vVa}', f'Vrdy{tile}'], W=rng('a', d, 2), name=('RV', b % 32, Tb, h, jh)))
    return l
def op_QK(a, raw=False):
    l = []
    for qt in ([2, 3, 0, 1] if (a == 4 and OPT['q4'] and not raw) else range(4)):
        for i in range(4):
            ks = 3 - i if (OPT['bou'] and qt % 2) else i
            l.append(mfma('v', S(a % 2, qt), 'a', KF(a % 2, ks), 'a', Q(qt, ks), i == 0, vNM[qt] if (i == 0 and a % 32 and not raw) else None))
    return l
def op_PV(b):
    t, u = divmod(b, 4)
    l = []
    for Tb in range(2):
        for qt in range(4):
            for i in range(2):
                h = 1 - i if (OPT['bou'] and qt % 2) else i
                l.append(mfma('v', O(2*u+Tb, qt), 'a', VF(b % 2, Tb, h), 'v', P(t % 2, h, qt), t == 0 and i == 0))
    return l
def op_RS(t, qt):
    return [mfma('a', RS(qt), 'a', ONES, 'v', P(t % 2, h, qt), t == 0 and h == 0) for h in range(2)]
def op_SM(a, raw=False):
    t, kt = divmod(a, 4)
    l = []
    for qt in range(4):
        s = S(a % 2, qt)
        for r in range(4):
            if raw: l.append(valu(f'v_fma_f32 v{s+r}, v{s+r}, s{sC}, v{vNM[qt]}', [f'v{s+r}', f'v{vNM[qt]}'], [f'v{s+r}']))
            elif a == 0: l.append(valu(f'v_add_f32 v{s+r}, v{s+r}, v{vNM[qt]}', [f'v{s+r}', f'v{vNM[qt]}'], [f'v{s+r}']))
        for r in range(4):
            l.append(valu(f'v_exp_f32 v{s+r}, v{s+r}', [f'v{s+r}'], [f'v{s+r}'], kind='trans'))
        p = P(t % 2, kt // 2, qt) + 2*(kt % 2)
        for i in range(2):
            l.append(valu(f'v_cvt_pk_bf16_f32 v{p+i}, v{s+2*i}, v{s+2*i+1}', [f'v{s+2*i}', f'v{s+2*i+1}'], [f'v{p+i}']))
    return l
def op_PS(qt, src, tmp, ntmp=2):
    l = []
    for ks in range(4):
        t = tmp + 16*(ks % ntmp)
        b = src(qt, ks)
        for x in range(2):
            D = rng('v', t, 16)
            l.append(Op('mfma', f'v_mfma_f32_32x32x16_bf16 {vr(t,16)}, {ar(SEL+4*x,4)}, {ar(b,4)}, {vr(t,16) if x else 0}',
                        R=rng('a', SEL+4*x, 4) + rng('a', b, 4) + (D if x else []), W=D, C=(D if x else [])))
        for i in range(4):
            l.append(valu(f'v_cvt_pk_bf16_f32 v{t+2*i}, v{t+2*i}, v{t+2*i+1}', [f'v{t+2*i}', f'v{t+2*i+1}'], [f'v{t+2*i}']))
            l.append(valu(f'v_accvgpr_write_b32 a{Q(qt,ks)+i}, v{t+2*i}', [f'v{t+2*i}'], [f'a{Q(qt,ks)+i}']))
    return l
def perm(n, a, b): return valu(f'v_permlane{n}_swap_b32 v{a}, v{b}', [f'v{a}', f'v{b}'], [f'v{a}', f'v{b}'], kind='perm')
def op_reduce(raw=False):
    t = vT; n = vNM
    mx = lambda d, a, b: valu(f'v_max_f32 v{d}, v{a}, v{b}', [f'v{a}', f'v{b}'], [f'v{d}'])
    mv = lambda d, a: valu(f'v_mov_b32 v{d}, v{a}', [f'v{a}'], [f'v{d}'])
    return [perm(16, t[0], t[1]), perm(16, t[2], t[3]), mx(t[0], t[0], t[1]), mx(t[2], t[2], t[3]),
            perm(32, t[0], t[2]), mx(t[0], t[0], t[2]),
            valu(f'v_fma_f32 v{n[0]}, v{t[0]}, s{sNC}, v{vBias}' if raw else f'v_sub_f32 v{n[0]}, v{vBias}, v{t[0]}', [f'v{t[0]}', f'v{vBias}'], [f'v{n[0]}']),
            mv(n[2], n[0]), perm(32, n[0], n[2]), mv(n[1], n[0]), mv(n[3], n[2]),
            perm(16, n[0], n[1]), perm(16, n[2], n[3])] + ([] if raw else [mv(n[q] + i, n[q]) for q in range(4) for i in range(1, 4)])
def op_MAX():
    l = []
    for qt in range(4):
        s = S(0, qt)
        l.append(valu(f'v_max3_f32 v{vT[qt]}, v{s}, v{s+1}, v{s+2}', rng('v', s, 3), [f'v{vT[qt]}']))
        l.append(valu(f'v_max_f32 v{vT[qt]}, v{vT[qt]}, v{s+3}', [f'v{vT[qt]}', f'v{s+3}'], [f'v{vT[qt]}']))
    return l + op_reduce()
def op_DMA(which, tile, bar):
    slot = tile % 4
    nxt = tile >= 8
    base = sKVn if nxt else sKV
    st = sTK if which == 'K' else sTV
    d = (sKn if nxt else sK) if which == 'K' else (sVn if nxt else sV)
    l = [Op('salu', f's_add_u32 s{st}, s{base}, {(tile % 8)*16384}', R=[f's{base}'], W=[f's{st}', 'scc']),
         Op('salu', f's_add_u32 m0, s{sW4k}, {slot*16384 + (VBASE if which == "V" else 0)}', R=[], W=['m0', 'scc'])]
    for n in range(4):
        va = vKd[n] if which == 'K' else vKd[0]
        l.append(Op('dma', f'buffer_load_dwordx4 v{va}, {srd(d)}, s{st} offen offset:{n*1024} {OPT["kv_flags"]} lds',
                    R=[f'v{va}', f's{st}', 'm0', 'srdn'] + ([bar] if bar else []), W=[], name=(which, tile % 8, n)))
    return l
def op_QD(qt, m0txt, dep=None):
    l = [Op('salu', m0txt, R=[], W=['m0', 'scc'])]
    for n in range(4):
        l.append(Op('dma', f'buffer_load_dwordx4 v{vKd[n]}, {srd(sQ if qt < 2 else sQB)}, s{sQn[qt]} offen offset:{n*1024} {OPT["q_flags"]} lds',
                    R=[f'v{vKd[n]}', f's{sQn[qt]}', 'm0'] + ([dep] if dep else []), W=[], name=('Q', qt, n)))
    return l
def op_QR(qt, dst, va, off, dep):
    return [Op('ds', f'ds_read_b128 {ar(dst(qt,ks),4)}, v{va} offset:{off + ks*256}',
               R=[f'v{va}', dep, 'PA'], W=rng('a', dst(qt, ks), 4), name=('QR', qt, ks)) for ks in range(4)]
def op_L():
    l = []
    for qt in range(4):
        r = vRL[qt]
        l.append(valu(f'v_accvgpr_read_b32 v{r}, a{RS(qt)}', [f'a{RS(qt)}'], [f'v{r}']))
        l.append(valu(f'v_cmp_nge_f32 s[{sCmp[qt]}:{sCmp[qt]+1}], s{sThr}, v{r}', [f'v{r}'], [f's{sCmp[qt]}']))
        l.append(valu(f'v_rcp_f32 v{r}, v{r}', [f'v{r}'], [f'v{r}'], kind='trans'))
    return l
def op_EPI(u):
    l = []
    for qt in range(4):
        a, b = O(2*u, qt), O(2*u+1, qt)
        for x in list(range(a, a+4)) + list(range(b, b+4)):
            l.append(valu(f'v_mul_f32 v{x}, v{x}, v{vRL[qt]}', [f'v{x}', f'v{vRL[qt]}'], [f'v{x}']))
        for i, x in enumerate([a, a+2, b, b+2]):
            l.append(valu(f'v_cvt_pk_bf16_f32 v{a+i}, v{x}, v{x+1}', [f'v{x}', f'v{x+1}'], [f'v{a+i}']))
        l.append(Op('ds', f'ds_write_b128 v{vWr[u%2]}, {vr(a,4)} offset:{qt*2048}',
                    R=rng('v', a, 4) + [f'v{vWr[u%2]}', 'PAw'], W=[f'PA{qt}_{u%2}'], name=('OW', u, qt)))
    return l
def op_OR(R, half):
    return [Op('ds', f'ds_read_b128 {ar(OST(R,n),4)}, v{vRd} offset:{n*1024}',
               R=[f'v{vRd}', f'PA{n//2}_0', f'PA{n//2}_1'], W=rng('a', OST(R, n), 4), name=('OR', R, n)) for n in range(4*half, 4*half+4)]
def op_ST(R, half, dep, prev):
    l = []
    for n in range(4*half, 4*half+4):
        va = vOlo if n < 4 else vOhi
        so = (sOp if prev else sOo)[(n//2) % 2]
        l.append(Op('vst', f'buffer_store_dwordx4 {ar(OST(R,n),4)}, v{va}, {srd(sOP if prev else sO)}, s{so} offen offset:{(n%2)*2048 + R*128} {OPT["store_flags" if prev else "last_flags"]}'.rstrip(),
                    R=rng('a', OST(R, n), 4) + [f'v{va}', f's{so}', dep], W=[], name=('O', R, n)))
    return l
def op_OUT(R):
    l = []
    for half in range(2):
        rd = op_OR(R, half)
        l += rd + [wlg(rd, f'wO{R}_{half}')] + op_ST(R, half, f'wO{R}_{half}', False)
    return l
def wlg(targets, tag, prev=None):
    o = Op('wlg', None, W=[tag], targets=targets)
    o.prev_targets = [t.name for t in targets] if prev is None else prev
    return o
def wvm(names, tag, byname):
    o = Op('wvm', None, W=[tag], targets=[byname[x] for x in names if x in byname])
    o.prev_targets = names
    return o

def op_UPD():
    sa = lambda t, R, W: Op('salu', t, R=R, W=W)
    c = [f's{x}' for x in sCmp]
    p = lambda x: f's[{x}:{x+1}]'
    l = [sa(f's_or_b64 {p(sCmp[0])}, {p(sCmp[0])}, {p(sCmp[1])}', [c[0], c[1]], [c[0], 'scc']),
         sa(f's_or_b64 {p(sCmp[2])}, {p(sCmp[2])}, {p(sCmp[3])}', [c[2], c[3]], [c[2], 'scc']),
         sa(f's_or_b64 {p(sCmp[0])}, {p(sCmp[0])}, {p(sCmp[2])}', [c[0], c[2]], [c[0], 'scc']),
         sa('s_cselect_b32 s42, 1, 0', ['scc'], ['s42']),
         sa(f's_lshl_b32 s42, s42, s{sB}', ['s42', f's{sB}'], ['s42', 'scc']),
         sa(f's_or_b32 s{sFlag}, s{sFlag}, s42', ['s42'], [f's{sFlag}', 'scc']),
         sa(f's_mov_b64 {p(sOp[0])}, {p(sOo[0])}', [f's{sOo[0]}'], [f's{sOp[0]}']),
         sa(f's_mov_b64 {p(sOo[0])}, {p(sQn[0])}', [f's{sQn[0]}', f's{sQn[1]}'], [f's{sOo[0]}', f's{sOo[1]}']),
         sa(f's_mov_b32 s{sKV}, s{sKVn}', [f's{sKVn}'], [f's{sKV}']),
         sa(f's_add_u32 s{sB}, s{sB}, 1', [f's{sB}'], [f's{sB}', 'scc']),
         sa(f's_cselect_b32 s{sOP+2}, 0, {QBYTES}', ['scc'], [f's{sOP+2}']),
         sa(f's_cmp_lt_u32 s{sB}, 3', [f's{sB}'], ['scc']),
         sa(f's_cselect_b32 s42, {OPT["pst"]*PAIRQ}, 0', ['scc'], ['s42']),
         sa(f's_cselect_b32 s45, {OPT["pst"]*PAIRK}, 0', ['scc'], ['s45']),
         sa(f's_cselect_b32 s{sQ+2}, s{sQ+2}, 0', ['scc'], [f's{sQ+2}']),
         sa(f's_cselect_b32 s{sQB+2}, s{sQB+2}, 0', ['scc'], [f's{sQB+2}']),
         sa(f's_cselect_b32 s{sKn+2}, s{sKn+2}, 0', ['scc'], ['srdn']),
         sa(f's_cselect_b32 s{sVn+2}, s{sVn+2}, 0', ['scc'], ['srdn'])]
    l += [sa(f's_add_u32 s{x}, s{x}, s42', ['s42', f's{x}'], [f's{x}', 'scc']) for x in sQn]
    l += [sa(f's_add_u32 s{sKVn}, s{sKVn}, s45', ['s45', f's{sKVn}'], [f's{sKVn}', 'scc'])]
    return l

class Seg:
    def __init__(self):
        self.ops = []; self.nm = 0; self.byname = {}
    def add(self, l, need=None):
        for i, o in enumerate(l):
            if need and i == 0: o.R += need if isinstance(need, list) else [need]
            if o.kind == 'mfma': self.nm += 1
            if o.kind in ('dma', 'vld', 'vst'): self.byname[o.name] = o
            self.ops.append(o)
        return l
    def reads(self, l, tag, at):
        n = len(l)
        for i, o in enumerate(l):
            o.due = at - OPT['ds_lead'] - (n - 1 - i) * OPT['ds_sp']
            o.earliest = o.due - 2
        self.add(l)
        if tag: self.add([wlg(l, tag)])
    def spread(self, l, lo, hi, sp=None):
        mem = [o for o in l if o.kind in MEM_KINDS]
        for i, o in enumerate(mem):
            pos = lo + min(sp or OPT['vm_sp'] or 1000, (hi - lo) / len(mem)) * (i + 0.5)
            o.earliest = int(pos) - 2; o.due = pos + OPT['vm_due']
        for i, o in enumerate(l):
            if o.kind == 'salu':
                nx = next(x for x in l[i:] if x.kind in MEM_KINDS)
                o.earliest = nx.earliest - 6
        self.add(l)
    def barrier(self, nn, pos, waits):
        names = [('K', (nn+1) % 8, i) for i in range(4)] + [('V', nn % 8, i) for i in range(4)]
        wv = wvm(names, f'wvm{nn}', self.byname); wv.earliest = pos - 3
        bo = Op('bar', 's_barrier', R=[f'wvm{nn}'] + waits, W=[f'bar{nn}', f'Krdy{nn+1}', f'Vrdy{nn}'])
        bo.earliest = pos - 1; bo.due = pos + 1
        self.add([wv, bo])

def seg_A():
    g = Seg()
    start = {s: (s - 4) * 34 for s in range(4, 33)}
    barpos = {nn: start[4*nn+3] + 16 for nn in range(1, 8)}
    barpos[0] = -2
    def interval(nn, extra):
        bar = f'bar{nn}' if nn >= 1 else None
        k, v = op_DMA('K', nn + 4, bar), op_DMA('V', nn + 3, bar)
        if OPT['qsp']:
            h = {2: 4, 3: 0}.get(nn, (len(extra) // 2 + 1) // 2 * 2)
            l = k + extra[:h] + v + extra[h:]
        else: l = k + v + extra
        g.spread(l, barpos[nn] + 2, barpos[nn+1] - 6)
    qm0 = lambda j: f's_add_u32 m0, s{sPA}, {4096*j}'
    extras = {0: op_QD(0, qm0(0), 'wK4'), 1: op_QD(1, qm0(1), 'wK4'), 4: op_QD(2, qm0(0), 'wQA'), 5: op_QD(3, qm0(1), 'wQA')}
    if OPT['qsp']:
        def pieces(qts, dep):
            out = []
            for qt in qts:
                for p in op_QD(qt, '', dep)[1:]: out.append([Op('salu', qm0(qt % 2), R=[], W=['m0', 'scc']), p])
            return out
        a, b, c = pieces((0, 1), 'wK4'), pieces((2,), 'wQ0'), pieces((3,), 'wQ1')
        extras = {0: sum(a[:3], []), 1: sum(a[3:6], []), 2: sum(a[6:], []), 3: sum(b[:2], []), 4: sum(b[2:] + c[:1], []), 5: sum(c[1:], [])}
    w = wlg([], 'wK4', prev=[('RK', 4, ks) for ks in range(4)] + [('OR', R, n) for R in range(2) for n in range(8)]); w.due = -1
    g.add([w])
    sts = sum([op_ST(R, hf, 'wK4', True) for hf in range(2) for R in range(OPT['stb'], 2)], [])
    sts.sort(key=lambda o: (o.name[2], o.name[1]))
    g.spread(sts, OPT['st_lo'], OPT['st_hi'], 1000)
    interval(0, extras[0])
    for s in range(4, 32):
        if s > 4: g.reads(op_RK(s), f'wK{s}', start[s])
        g.add(op_SM(s - 1))
        g.add(op_QK(s), f'wK{s}')
        b = s - 4
        g.reads(op_RV(b), f'wV{b}', start[s] + 16)
        if s % 4 == 3: g.barrier(s // 4, barpos[s // 4], [f'wK{s}', f'wV{b}'])
        g.add(op_PV(b), f'wV{b}')
        g.add(op_RS(b // 4, b % 4))
        if s == 17 and not OPT['qsp']:
            wq = wvm([('Q', qt, n) for qt in range(2) for n in range(4)], 'vQA', g.byname); wq.earliest = start[17]
            g.add([wq])
            g.reads(op_QR(0, QN, vQa, 0, 'vQA') + op_QR(1, QN, vQa, 4096, 'vQA'), 'wQA', barpos[4] + 8)
        if s in (15, 19) and OPT['qsp']:
            qt = s // 19
            wq = wvm([('Q', qt, n) for n in range(4)], f'vQ{qt}', g.byname); wq.earliest = start[s + 2] - 4
            g.add([wq])
            g.reads(op_QR(qt, QN, vQa, 4096*qt, f'vQ{qt}'), f'wQ{qt}', start[s + 3] - 4)
        if s % 4 == 3 and s // 4 <= 6: interval(s // 4, extras.get(s // 4, []))
    g.add(op_SM(31)[:6*OPT['smq']])
    g.reads(op_RV(28), None, start[32] + 12)
    return g.ops

def seg_B():
    g = Seg()
    order = [{'R': ('RS', 0), 'V': ('PV', 28 + int(x[1:] or 0)), 'P': ('PS', int(x[1:] or 0)), 'K': ('QK', 32 + int(x[1:] or 0))}[x[0]]
             for x in OPT['bord'].split('.')]
    pos = {}; n = 0
    for k in order:
        pos[k] = n; n += 8 if k[0] in ('RS', 'PS') else 16
    total = n
    g.add(op_SM(31)[6*OPT['smq']:])
    g.add([wlg([], 'wV28', prev=[o.name for o in op_RV(28)])])
    wq = wvm([('Q', qt, n) for qt in range(2, 4) for n in range(4)], 'vQB', g.byname); wq.due = -5
    g.add([wq])
    g.reads(op_QR(2, Q, vQa, 0, 'vQB') + op_QR(3, Q, vQa, 4096, 'vQB'), 'wQB', min(pos[('PV', 28)] + 24, pos[('PS', 2)]))
    for o in g.ops:
        if o.kind == 'ds': o.earliest = None; o.R.remove('PA'); o.R += [f'PA{q}_{p}' for q in range(4) for p in range(2)]
    barp = pos[('QK', 35)] - 1
    g.spread(op_DMA('K', 11, None) + op_DMA('V', 10, None), 2, barp - 40)
    for k in order:
        if k[0] == 'RS':
            for qt in range(4): g.add(op_RS(7, qt))
            g.add(op_L())
        elif k[0] == 'PS':
            g.add(op_PS(k[1], QN if k[1] < 2 else Q, P(0, 0, 0)), 'wQB' if k[1] == 2 else None)
        elif k[0] == 'PV':
            b = k[1]
            if b > 28: g.reads(op_RV(b), f'wV{b}', pos[k])
            g.add(op_PV(b), f'wV{b}')
            ep = op_EPI(b - 28)
            for i, o in enumerate(ep): o.due = pos[k] + 16 + 4 + OPT['epi_len'] * i / len(ep)
            g.add(ep)
            if b % 2 == 1:
                R = (b - 28) // 2
                out = op_OR(R, 0) + op_OR(R, 1)
                for i, o in enumerate(out): o.due = pos[k] + 16 + 4 + OPT['epi_len'] * (0.5 + 0.5 * i / len(out))
                g.add(out)
                if R == 0 and OPT['stb']:
                    g.add([wlg(out, 'wO0')])
                    st = op_ST(0, 0, 'wO0', False) + op_ST(0, 1, 'wO0', False)
                    for o in st: o.text = o.text.replace(OPT['last_flags'], OPT['store_flags']) if OPT['last_flags'] else o.text + ' ' + OPT['store_flags']
                    g.spread(st, pos[k] + 16 + 4 + OPT['epi_len'] + 10, total - 26, 1000)
        else:
            a = k[1]
            g.reads(op_RK(a), f'wK{a}', pos[k])
            if a > 32: g.add(op_SM(a - 33))
            if a == 35: g.barrier(8, barp, [f'wK{a}', 'wV31'])
            g.add(op_QK(a), f'wK{a}')
            if a == 32: g.add(op_MAX())
    g.reads(op_RK(36), None, total + 4)
    g.add(op_UPD())
    return g.ops

def seg_final():
    g = Seg()
    VFq = lambda u, Tb, h: [160, 176, 128, 144][u] + 8*Tb + 4*h
    x0 = P(0, 0, 0)
    vL, vI, vG, vW0, vW1, vS0, vS1, vX = [x0 + i for i in range(8)]
    va = lambda t, R, W: valu(t, [f'v{r}' for r in R], [f'v{W}'])
    adr = [va(f'v_and_b32 v{vI}, 15, v0', [], vI), va(f'v_bfe_u32 v{vG}, v0, 4, 2', [], vG),
           va(f'v_and_b32 v{vX}, 7, v0', [], vX), va(f'v_xor_b32 v{vX}, v{vX}, v{vG}', [vX, vG], vX),
           va(f'v_lshlrev_b32 v{vX}, 4, v{vX}', [vX], vX), va(f'v_lshl_add_u32 v{vX}, v{vI}, 8, v{vX}', [vX, vI], vX),
           va(f'v_add_u32 v{vW0}, s{sPA}, v{vX}', [vX], vW0), va(f'v_xor_b32 v{vW1}, 64, v{vW0}', [vW0], vW1),
           va(f'v_xor_b32 v{vL}, v{vI}, v{vG}', [vI, vG], vL), va(f'v_lshlrev_b32 v{vL}, 4, v{vL}', [vL], vL),
           va(f'v_lshl_add_u32 v{vS0}, v{vG}, 8, v{vL}', [vG, vL], vS0), va(f'v_xor_b32 v{vS1}, 64, v{vS0}', [vS0], vS1)]
    sm = op_SM(31)
    g.add([wlg([], 'wV0', prev=[o.name for o in op_RV(28)])])
    wq = wvm([('Q', qt, n) for qt in range(2, 4) for n in range(4)], 'PAw', g.byname); wq.earliest = 4
    g.add([wq])
    for u in range(1, 4):
        rv = op_RV(28 + u)
        for o, (Tb, h, jh) in zip(rv, [(a, b, c) for a in range(2) for b in range(2) for c in range(2)]):
            d = VFq(u, Tb, h) + 2*jh
            o.text = f'ds_read_b64_tr_b16 {ar(d,2)},' + o.text.split(',', 1)[1]; o.W = rng('a', d, 2)
            o.due = -20 + u
        g.add(rv); g.add([wlg(rv, f'wV{u}')])
    for i, o in enumerate(adr): o.due = 10
    g.add(adr)
    Lops = op_L()
    for qt in range(4):
        base = 18 * qt
        if qt >= OPT['smq']: g.add(sm[6*qt:6*qt+6])
        g.add(op_RS(7, qt))
        g.add(Lops[3*qt:3*qt+3])
        for u in range(4):
            for Tb in range(2):
                for h in range(2):
                    m = mfma('v', O(2*u+Tb, qt), 'a', VFq(u, Tb, h), 'v', P(1, h, qt), False)
                    if qt == 0 and Tb == 0 and h == 0: m.R.append(f'wV{u}')
                    g.add([m])
        ep = []
        for u in range(4):
            a, b = O(2*u, qt), O(2*u+1, qt)
            for x in list(range(a, a+4)) + list(range(b, b+4)):
                ep.append(valu(f'v_mul_f32 v{x}, v{x}, v{vRL[qt]}', [f'v{x}', f'v{vRL[qt]}'], [f'v{x}']))
            for i, x in enumerate([a, a+2, b, b+2]):
                ep.append(valu(f'v_cvt_pk_bf16_f32 v{a+i}, v{x}, v{x+1}', [f'v{x}', f'v{x+1}'], [f'v{a+i}']))
            w_ = [vW0, vW1][u % 2]
            ep.append(Op('ds', f'ds_write_b128 v{w_}, {vr(a,4)} offset:{(qt%2)*4096 + (u//2)*128}',
                         R=rng('v', a, 4) + [f'v{w_}', 'PAw'], W=[f'PB{qt%2}_{u}'], name=('OW', u, qt)))
        st = lambda n: OST(qt // 2, 4*(qt % 2) + n)
        rd = [Op('ds', f'ds_read_b128 {ar(st(n),4)}, v{vRd} offset:{(qt%2)*4096 + n*1024}',
                 R=[f'v{vRd}'] + [f'PB{qt%2}_{u}' for u in range(4)], W=rng('a', st(n), 4), name=('OR', qt, n)) for n in range(4)]
        ep += rd + [wlg(rd, f'wO{qt}')]
        if qt == 2:
            ep += [va(f'v_add_u32 v{x}, s46, v{x}', [x], x) for x in (vS0, vS1)]
        for n in range(4):
            s_ = [vS0, vS1][n % 2]
            ep.append(Op('vst', f'buffer_store_dwordx4 {ar(st(n),4)}, v{s_}, {srd(sO)}, s{sOo[qt%2]} offen offset:{n*1024} {OPT["last_flags"]}'.rstrip(),
                         R=rng('a', st(n), 4) + [f'v{s_}', f'wO{qt}'], W=[], name=('O', qt, n)))
        for i, o in enumerate(ep):
            o.due = base + 8 + OPT['fin_len'] * i / len(ep) + (OPT['fin_st'] * (1 + o.name[2]) if o.kind == 'vst' else 0)
            if o.kind == 'vst': o.earliest = o.due - 1
            if o.kind == 'wlg': o.due = None
        g.add(ep)
    return g.ops

def seg_first(qt, qr, dmas):
    g = Seg()
    g.add(qr); g.add([wlg(qr, 'wq')])
    raw = OPT['fraw']
    if not raw: g.add(op_PS(qt, Q, O(4, 0), 4), 'wq')
    tmp = lambda kt: S(1, qt) if kt == 3 else O(kt, qt)
    for kt in range(4):
        g.add([mfma('v', tmp(kt), 'a', 128 + 16*kt + 4*ks, 'a', Q(qt, ks), ks == 0) for ks in range(4)], 'wq' if (raw and kt == 0) else None)
    s = tmp(0); n = vNM[qt]; t, u = n + 1, n + 2
    mx = lambda d, a, b: valu(f'v_max_f32 v{d}, v{a}, v{b}', [f'v{a}', f'v{b}'], [f'v{d}'])
    mv = lambda d, a: valu(f'v_mov_b32 v{d}, v{a}', [f'v{a}'], [f'v{d}'])
    l = [valu(f'v_max3_f32 v{t}, v{s}, v{s+1}, v{s+2}', rng('v', s, 3), [f'v{t}']), mx(t, t, s+3),
         mv(u, t), perm(16, t, u), mx(t, t, u), mv(u, t), perm(32, t, u), mx(t, t, u)]
    if raw:
        l.append(valu(f'v_mul_f32 v{n}, s{sNC}, v{t}', [f'v{t}'], [f'v{n}']))
        if qt >= 2: l.append(valu(f'v_add_f32 v{n}, s47, v{n}', [f'v{n}'], [f'v{n}']))
    else: l.append(valu(f'v_sub_f32 v{n}, {"s47" if qt >= 2 else "0"}, v{t}', [f'v{t}'], [f'v{n}']))
    for o in l: o.due = 0
    g.add(l)
    if raw: g.add(op_PS(qt, Q, O(4, 0), 4))
    for kt in range(4):
        s = tmp(kt)
        for r in range(4):
            g.add([valu(f'v_fma_f32 v{s+r}, v{s+r}, s{sC}, v{n}' if raw else f'v_add_f32 v{s+r}, v{s+r}, v{n}', [f'v{s+r}', f'v{n}'], [f'v{s+r}'])])
        if kt == 3: break
        for r in range(4): g.add([valu(f'v_exp_f32 v{s+r}, v{s+r}', [f'v{s+r}'], [f'v{s+r}'], kind='trans')])
        p = P(0, kt // 2, qt) + 2*(kt % 2)
        for i in range(2): g.add([valu(f'v_cvt_pk_bf16_f32 v{p+i}, v{s+2*i}, v{s+2*i+1}', [f'v{s+2*i}', f'v{s+2*i+1}'], [f'v{p+i}'])])
    g.add([mv(n + i, n) for i in range(1, 4)])
    if dmas: g.spread(dmas, 0, 8)
    return g.ops

def resolve_waits(seqs):
    res = {}
    for kind, kinds, fmt, mx in (('wvm', ('dma', 'vld', 'vst'), 'vmcnt', 63), ('wlg', ('ds',), 'lgkmcnt', 15)):
        hist = []
        for si, sq in enumerate(seqs):
            for o in sq:
                if o.kind in kinds: hist.append(o.name)
                elif o.kind == kind:
                    last = max(len(hist) - 1 - hist[::-1].index(x) for x in o.prev_targets if x in hist)
                    res.setdefault(o, []).append(len(hist) - 1 - last)
        for o, l in res.items():
            if o.kind == kind: o.text = f's_waitcnt {fmt}({min(min(l), mx)})'
    return res

def lines(ops): return ''.join('    ' + o.text + '\n' for o in ops)
def padded(ops):
    build_deps(ops)
    out = []
    for o in ops:
        need = 0
        for p, d in o.preds.items():
            need = max(need, d - (len(out) - p.pos - 1))
        for _ in range(need): out.append(Op('salu', 's_nop 0'))
        o.pos = len(out); out.append(o)
    return out

def dbg_lines(ops, first):
    txt = ''; n = first
    for o in ops:
        txt += '    ' + o.text + '\n'
        if o.kind == 'bar':
            txt += f'    s_memtime s[{78+2*n}:{79+2*n}]\n'; n += 1
    return txt, n
DUMP = '    s_memtime s[96:97]\n    s_waitcnt lgkmcnt(0)\n' + ''.join(
    f'    v_writelane_b32 v38, s{78+2*i}, {i}\n' for i in range(11)) + \
    '    s_mov_b64 exec, 0xffff\n    buffer_store_dword v38, v39, s[60:63], s59 offen\n    s_mov_b64 exec, -1\n    s_add_u32 s59, s59, 64\n'

def main():
    segs = {}
    for nme, ops in (('A', seg_A()), ('B', seg_B()), ('D', seg_final())):
        sched.RESERVE = OPT['resd'] if nme == 'D' else OPT['res']
        segs[nme], stats = schedule(ops, OPT['ds_lead'], OPT['ds_lat'], OPT['vm_space'], nop_win=(OPT['nopw'] if nme == 'A' else 10000))
        print(nme, stats, file=sys.stderr)
    A = []
    w = A.append
    WARM1 = '''    s_getpc_b64 s[94:95]
L_pc:
    s_bfe_u32 s64, s2, 0x20003            ; (wg >> 3) & 3
    s_lshl_b32 s64, s64, 13
    v_lshlrev_b32 v28, 7, v0
    v_cmp_lt_u32 vcc, 63, v0
    v_mov_b32 v29, s64
    s_nop 0
    v_cndmask_b32 v29, 0, v29, vcc
    v_add_u32 v28, v28, v29
    v_min_u32 v28, L_end-L_pc, v28
    v_cmp_gt_u32 vcc, 128, v0
    s_and_saveexec_b64 s[64:65], vcc
    s_cbranch_execz L_w1
    global_load_dword a255, v28, s[94:95]
L_w1:
    s_mov_b64 exec, -1
''' if OPT['warm'] else ''
    w(f'''; GQA attention forward, B=16 Hq=32 Hkv=16 Sq=496 Sk=512 D=128, bf16.  Generated by gen/gen.py (own generator).
; 256 persistent workgroups x 4 waves; each wave 64 q rows; K/V tiles streamed through an LDS ring by LDS-DMA.
; Softmax reference point: max over the row's first 16 keys; a run-time check on the row sum redoes the rows
; @launch grid=(256,1,1) block=(256,1,1) lds=163840
.amdgcn_target "amdgcn-amd-amdhsa--gfx950"
.text
.globl {NAME}
.p2align 8
.type {NAME},@function
{NAME}:
    s_cmp_ge_u32 s2, 256
    s_cbranch_scc1 L_end
{'    s_memtime s[100:101]' if OPT['debug'] else ''}
    s_load_dwordx4 s[56:59], s[0:1], 0
    s_load_dwordx4 s[60:63], s[0:1], 16
{WARM1}    v_lshrrev_b32 v20, 6, v0
    v_and_b32 v21, 63, v0                 ; lane
    v_readfirstlane_b32 s42, v20          ; wave
    v_and_b32 v22, 15, v21                ; i
    v_lshrrev_b32 v23, 4, v21             ; g
    v_lshrrev_b32 v26, 2, v22             ; i/4
    v_and_b32 v27, 3, v21                 ; i%4
    ; DMA lane part: (i/4)*256 + g*64 + ((i%4)^f(n))*16
    v_lshlrev_b32 v30, 8, v26
    v_lshl_add_u32 v30, v23, 6, v30
    v_lshl_add_u32 v{vKd[0]}, v27, 4, v30
    v_xor_b32 v{vKd[1]}, 48, v{vKd[0]}
    v_xor_b32 v{vKd[2]}, 32, v{vKd[0]}
    v_xor_b32 v{vKd[3]}, 16, v{vKd[0]}
    s_and_b32 s43, s2, 7                  ; xcd
    s_lshr_b32 s44, s2, 3
    s_lshr_b32 s45, s44, 2                ; group
    s_and_b32 s44, s44, 3                 ; qb
    s_lshl_b32 s43, s43, 5
{'    s_lshl_b32 s45, s45, 2' if OPT['pst'] == 1 else ''}
    s_add_u32 s43, s43, s45               ; pair0
    s_lshl_b32 s{sW4k}, s42, 12
    s_lshl_b32 s{sKVn}, s43, 17
    s_add_u32 s{sKVn}, s{sKVn}, s{sW4k}
    s_mul_i32 s45, s43, {PAIRQ}
    s_lshl_b32 s46, s44, 16
    s_add_u32 s45, s45, s46
    s_lshl_b32 s46, s42, 14
    s_add_u32 s{sQn[0]}, s45, s46
    s_add_u32 s{sQn[1]}, s{sQn[0]}, 4096
    s_lshl_b32 s{sPA}, s42, 13
    s_add_u32 s{sPA}, s{sPA}, 131072
    s_lshl_b32 s46, s44, 2
    s_add_u32 s46, s46, s42
    s_cmp_eq_u32 s46, 15
    s_cselect_b32 s46, 0x40000000, 8192
    s_cselect_b32 s47, 0xff800000, 0
    s_cselect_b32 s45, 0, 8192
    s_cselect_b32 s{sQB+2}, 0, {QBYTES}
    s_add_u32 s{sQn[2]}, s{sQn[0]}, s45
    s_add_u32 s{sQn[3]}, s{sQn[1]}, s45
    s_mov_b32 s{sQ+2}, {QBYTES}
    s_mov_b32 s{sQ+3}, 0x20000
    s_mov_b32 s{sQB+3}, 0x20000
    s_mov_b32 s{sKn+2}, {KBYTES}
    s_mov_b32 s{sKn+3}, 0x20000
    s_mov_b32 s{sVn+2}, {KBYTES}
    s_mov_b32 s{sVn+3}, 0x20000
    s_waitcnt lgkmcnt(0)
    s_mov_b32 s{sKn}, s58
    s_mov_b32 s{sKn+1}, s59
    s_mov_b32 s{sQ}, s56
    s_mov_b32 s{sQ+1}, s57
    s_mov_b32 s{sQB}, s56
    s_mov_b32 s{sQB+1}, s57
    s_mov_b32 s{sVn}, s60
    s_mov_b32 s{sVn+1}, s61
''')
    if OPT['debug']:
        w('''    s_memrealtime s[98:99]
    s_waitcnt lgkmcnt(0)
    s_mov_b32 s67, s98
''')
    QTMP = [None, None, VBASE + 3*16384, 3*16384]
    pro = op_DMA('K', 8, None)
    pro += op_QD(0, f's_add_u32 m0, s{sPA}, 0') + op_QD(1, f's_add_u32 m0, s{sPA}, 4096')
    pro += op_QD(2, f's_add_u32 m0, s{sW4k}, {QTMP[2]}') + op_QD(3, f's_add_u32 m0, s{sW4k}, {QTMP[3]}')
    pro = padded(pro)
    w(lines(pro))
    w(f'''    ; remaining setup under the load latency
    s_mov_b32 s{sK}, s58
    s_mov_b32 s{sK+1}, s59
    s_mov_b32 s{sK+2}, {KBYTES}
    s_mov_b32 s{sK+3}, 0x20000
    s_mov_b32 s{sV}, s60
    s_mov_b32 s{sV+1}, s61
    s_mov_b32 s{sV+2}, {KBYTES}
    s_mov_b32 s{sV+3}, 0x20000
    s_mov_b32 s{sO}, s62
    s_mov_b32 s{sO+1}, s63
    s_mov_b32 s{sO+2}, {QBYTES}
    s_mov_b32 s{sO+3}, 0x20000
    s_mov_b32 s{sOP}, s62
    s_mov_b32 s{sOP+1}, s63
    s_mov_b32 s{sOP+3}, 0x20000
    s_mov_b32 s{sOo[0]}, 0
    s_mov_b32 s{sOo[1]}, 0
    v_sub_u32 v30, 0, v26
    v_and_b32 v30, 3, v30                 ; f(i/4)
    v_xor_b32 v30, v30, v23
    v_lshlrev_b32 v30, 4, v30
    v_lshl_add_u32 v30, v27, 6, v30
    v_lshl_add_u32 v{vKa}, v26, 10, v30
    v_add_u32 v{vQa}, s{sPA}, v{vKa}
    v_lshlrev_b32 v30, 10, v23
    v_lshl_add_u32 v30, v26, 6, v30
    v_lshl_add_u32 v30, v27, 4, v30
    v_add_u32 v{vVa}, {VBASE}, v30
{'    v_and_b32 v30, 16, v21' + chr(10) + '    v_lshrrev_b32 v30, 1, v30' + chr(10) + f'    v_add_u32 v{vVa}, v{vVa}, v30' if 'conf' in OPT['abl'] else ''}
    ; O staging: write addr = PA + i*128 + ((g ^ (i&7))*16); read addr = PA + lane*16; store lane part = (l/8)*256 + ((l%8)^(l/8))*16
    v_and_b32 v30, 7, v21
    v_xor_b32 v31, v30, v23
    v_lshlrev_b32 v31, 4, v31
    v_lshl_add_u32 v31, v22, 7, v31
    v_add_u32 v{vWr[0]}, s{sPA}, v31
    v_xor_b32 v{vWr[1]}, 64, v{vWr[0]}
    v_lshlrev_b32 v31, 4, v21
    v_add_u32 v{vRd}, s{sPA}, v31
    v_lshrrev_b32 v31, 3, v21
    v_xor_b32 v30, v30, v31
    v_lshlrev_b32 v30, 4, v30
    v_lshl_add_u32 v{vOlo}, v31, 8, v30
    v_add_u32 v{vOhi}, s46, v{vOlo}
    v_mov_b32 v30, s47
    v_cmp_lt_u32 vcc, 31, v21
    v_mov_b32 v31, 0x3f803f80
    s_mov_b32 s{sC}, {hex(f32(CSCALE))}
    v_cndmask_b32 v{vBias}, 0, v30, vcc
    s_mov_b32 s{sNC}, {hex(f32(-CSCALE))}
    s_mov_b32 s{sThr}, {hex(f32(2.0**64) if not OPT['force_slow'] else f32(-1.0))}
    s_mov_b32 s{sB}, -1
    s_mov_b32 s{sFlag}, 0
    s_mov_b64 s[{sCmp[0]}:{sCmp[0]+1}], 0
    s_mov_b64 s[{sCmp[1]}:{sCmp[1]+1}], 0
    s_mov_b64 s[{sCmp[2]}:{sCmp[2]+1}], 0
    s_mov_b64 s[{sCmp[3]}:{sCmp[3]+1}], 0
    v_accvgpr_write_b32 a{ONES}, v31
    v_accvgpr_write_b32 a{ONES+1}, v31
    v_accvgpr_write_b32 a{ONES+2}, v31
    v_accvgpr_write_b32 a{ONES+3}, v31
    v_add_u32 v{vX0}, s{sW4k}, v{vKa}
    v_add_u32 v{vX1}, {VBASE}, v{vX0}
    ; scale * selection matrices (32x32x16 A operand): row m = lane%32 < 16 with (m/4)%2 == lane/32 holds element 4*(m/8) + m%4
    v_and_b32 v30, 1, v21
    v_lshlrev_b32 v30, 4, v30
    v_mov_b32 v31, {CHI}
    v_mov_b32 v28, {CLO}
    v_lshlrev_b32 v31, v30, v31
    v_lshlrev_b32 v28, v30, v28
    v_lshrrev_b32 v29, 1, v23             ; lane/32
    v_xor_b32 v29, v29, v26
    v_or_b32 v29, v29, v23
    v_and_b32 v29, 1, v29
    v_lshlrev_b32 v29, 2, v29
    v_lshrrev_b32 v30, 1, v27             ; (i%4)/2
    v_and_b32 v24, 2, v26                 ; 2*(i/8)
    v_add3_u32 v30, v30, v24, v29
    v_cmp_eq_u32 vcc, 0, v30
    v_cmp_eq_u32 s[78:79], 1, v30
    v_cmp_eq_u32 s[80:81], 2, v30
    v_cmp_eq_u32 s[82:83], 3, v30
    v_cndmask_b32 v24, 0, v31, vcc
    v_cndmask_b32 v25, 0, v31, s[78:79]
    v_cndmask_b32 v29, 0, v31, s[80:81]
    v_cndmask_b32 v30, 0, v31, s[82:83]
    v_accvgpr_write_b32 a{SEL}, v24
    v_accvgpr_write_b32 a{SEL+1}, v25
    v_accvgpr_write_b32 a{SEL+2}, v29
    v_accvgpr_write_b32 a{SEL+3}, v30
    v_cndmask_b32 v24, 0, v28, vcc
    v_cndmask_b32 v25, 0, v28, s[78:79]
    v_cndmask_b32 v29, 0, v28, s[80:81]
    v_cndmask_b32 v30, 0, v28, s[82:83]
    v_accvgpr_write_b32 a{SEL+4}, v24
    v_accvgpr_write_b32 a{SEL+5}, v25
    v_accvgpr_write_b32 a{SEL+6}, v29
    v_accvgpr_write_b32 a{SEL+7}, v30
''')
    w(lines(op_UPD()))
    stamp = lambda i: [Op('salu', f's_memtime s[{78+2*i}:{79+2*i}]')] if OPT['debug'] else []
    qr = [op_QR(0, Q, vQa, 0, 'x'), op_QR(1, Q, vQa, 4096, 'x'), op_QR(2, Q, vX1, 3*16384, 'x'), op_QR(3, Q, vX0, 3*16384, 'x')]
    names = lambda t, *idx: [(t, i, n) for i in idx for n in range(4)]
    F = stamp(0) + [wvm(names('K', 0), 'x', {})] + stamp(1) + [Op('salu', 's_barrier')] + stamp(2)
    F += [Op('ds', f'ds_read_b128 {ar(128 + 16*kt + 4*ks, 4)}, v{vKa} offset:{kt*4096 + ks*256}', name=('RK0', kt, ks)) for kt in range(4) for ks in range(4)]
    F += padded(op_DMA('K', 1, None))
    fd = [op_DMA('V', 0, None), op_DMA('K', 2, None), op_DMA('V', 1, None), op_DMA('K', 3, None) + op_DMA('V', 2, None)]
    if OPT['fo'] == 1: fd = [fd[0], [], [], fd[1] + fd[2]]
    for qt in range(4):
        F += [wvm(names('Q', qt), 'x', {})] + stamp(3 + qt)
        sched.RESERVE = 24
        sg, stats = schedule(seg_first(qt, qr[qt], None), OPT['ds_lead'], OPT['ds_lat'], 1)
        print('F', qt, stats, file=sys.stderr)
        F += sg + (stamp(7) if qt == 3 else []) + padded(fd[qt])
    F += [wvm(names('K', 1) + names('V', 0), 'x', {}), Op('bar', 's_barrier')] + op_RK(4)
    if OPT['fo'] == 1: F += padded(op_DMA('K', 3, None) + op_DMA('V', 2, None))
    segs['F'] = F
    sq = [pro, segs['F'], []] + [segs['A'], segs['B']] * 3 + [segs['A'], segs['D']]
    r = resolve_waits(sq)
    print([(o.text, l) for o, l in r.items() if o.kind == 'wvm'], file=sys.stderr)
    if OPT['debug']:
        w('''    s_load_dwordx2 s[60:61], s[0:1], 40
    s_mov_b32 s62, 0x1000000
    s_mov_b32 s63, 0x20000
    s_lshl_b32 s59, s2, 14
    s_add_u32 s59, s59, s39
    s_lshr_b32 s59, s59, 3
    v_lshlrev_b32 v39, 2, v21
    s_waitcnt lgkmcnt(0)
''')
    if 'rs' in OPT['abl']:
        segs['A'] = [o if not (o.kind == 'mfma' and o.text.split()[1].startswith('a[')) else Op('salu', 's_nop 0') for o in segs['A']]
    if 'dma' in OPT['abl']:
        for sg in 'AB':
            segs[sg] = [o if not (o.kind == 'dma' and o.name[0] in 'KV') else Op('salu', 's_nop 0') for o in segs[sg]]
    if 'ds' in OPT['abl'].split():
        for sg in 'AB':
            segs[sg] = [o if not (o.kind == 'ds' and o.name[0] in ('RK', 'RV')) else Op('salu', 's_nop 0') for o in segs[sg]]
    upd = 'L_next:\n' + ('' if OPT['updin'] else lines(op_UPD()))
    pad = lambda n: [Op('salu', 'x') for _ in range(n)]
    bad = check_hazards(segs['F'] + segs['A'] + pad(2) + segs['B'] + pad(1) + segs['A'] + pad(2) + segs['D'])
    assert bad == 0, bad
    if not OPT['debug']:
        w(lines(segs['F']))
        w(lines(sq[2]))
        w(upd)
        w(lines(segs['A']))
        w(f'    s_cmp_eq_u32 s{sB}, 3\n    s_cbranch_scc1 L_final\n')
        w(lines(segs['B']))
        w('    s_branch L_next\nL_final:\n')
        w(lines(segs['D']))
    else:
        w(dbg_lines(segs['F'], 8)[0]); w(DUMP)
        w(lines(sq[2]))
        w(upd)
        w('    s_memtime s[78:79]\n    s_memrealtime s[98:99]\n')
        w(dbg_lines(segs['A'], 1)[0])
        w(f'    s_cmp_eq_u32 s{sB}, 3\n    s_cbranch_scc1 L_final\n')
        w(dbg_lines(segs['B'], 8)[0]); w(DUMP)
        w('    s_branch L_next\nL_final:\n')
        w(lines(segs['D'])); w('    s_memtime s[94:95]\n'); w(DUMP)
        w('''    s_waitcnt vmcnt(0)
    s_memtime s[78:79]
    s_memrealtime s[98:99]
    s_waitcnt lgkmcnt(0)
    v_mov_b32 v36, s78
    v_mov_b32 v37, s98
    v_mov_b32 v38, s100
    v_mov_b32 v39, s67
    s_mov_b64 exec, 1
    buffer_store_dwordx4 v[36:39], off, s[60:63], s59
    s_mov_b64 exec, -1
''')
    w(f'''    s_or_b64 s[{sCmp[0]}:{sCmp[0]+1}], s[{sCmp[0]}:{sCmp[0]+1}], s[{sCmp[1]}:{sCmp[1]+1}]
    s_or_b64 s[{sCmp[2]}:{sCmp[2]+1}], s[{sCmp[2]}:{sCmp[2]+1}], s[{sCmp[3]}:{sCmp[3]+1}]
    s_or_b64 s[{sCmp[0]}:{sCmp[0]+1}], s[{sCmp[0]}:{sCmp[0]+1}], s[{sCmp[2]}:{sCmp[2]+1}]
    s_cselect_b32 s42, 8, 0
    s_or_b32 s{sFlag}, s{sFlag}, s42
''')
    w(slow_path())
    w(f'''L_end:
    s_endpgm
.section .rodata,"a"
.p2align 6
.amdhsa_kernel {NAME}
  .amdhsa_next_free_vgpr 512
  .amdhsa_next_free_sgpr {102 if OPT['debug'] else 96}
  .amdhsa_accum_offset 256
  .amdhsa_group_segment_fixed_size 0
  .amdhsa_kernarg_size 48
  .amdhsa_user_sgpr_count 2
  .amdhsa_user_sgpr_kernarg_segment_ptr 1
  .amdhsa_system_sgpr_workgroup_id_x 1
.end_amdhsa_kernel
''')
    open(sys.argv[1], 'w').write(''.join(A))

def slow_path():
    raw = lambda t: Op('salu', t)
    T = []
    w = T.append
    sPair, sKoff, sJ = 56, 57, 58
    vF, vFh, vTr = 36, 37, 38
    w(f'''    s_cmp_eq_u32 s{sFlag}, 0
    s_cbranch_scc1 L_end
    s_waitcnt vmcnt(0) lgkmcnt(0)
    s_mov_b32 s{sQ+2}, {QBYTES}
    s_sub_u32 s42, s{sPA}, {VBASE}
    v_add_u32 v{vTr}, s42, v{vVa}
    v_and_b32 v20, 15, v0
    v_bfe_u32 v21, v0, 4, 2
    v_lshlrev_b32 v20, 8, v20
    v_lshl_add_u32 v{vF}, v21, 4, v20
    v_add_u32 v{vFh}, s46, v{vF}
    s_mov_b32 s{sB}, 0
L_slow_blk:
    s_lshr_b32 s42, s{sFlag}, s{sB}
    s_and_b32 s42, s42, 1
    s_cmp_eq_u32 s42, 0
    s_cbranch_scc1 L_slow_next
    s_mul_i32 s42, s{sB}, {OPT['pst']}
    s_add_u32 s{sPair}, s43, s42
    s_mul_i32 s42, s{sPair}, {PAIRQ}
    s_lshl_b32 s45, s44, 16
    s_add_u32 s42, s42, s45
    s_lshl_b32 s45, s{sW4k}, 2
    s_add_u32 s{sOo[0]}, s42, s45
    s_add_u32 s{sOo[1]}, s{sOo[0]}, 4096
''')
    for qt in range(4):
        for ks in range(4):
            w(f'    buffer_load_dwordx4 {ar(Q(qt,ks),4)}, v{vF if qt < 2 else vFh}, {srd(sQ)}, s{sOo[qt%2]} offen offset:{ks*64}\n')
    for qt in range(4): w(f'    v_mov_b32 v{vT[qt]}, 0xff800000\n')
    w(f'''    s_lshl_b32 s{sKoff}, s{sPair}, 17
    s_mov_b32 s{sJ}, 0
L_slow_p1:
''')
    def kload(buf):
        return [raw(f'buffer_load_dwordx4 {ar(KF(buf,ks),4)}, v{vF}, {srd(sK)}, s{sKoff} offen offset:{ks*64}') for ks in range(4)]
    w(lines(kload(0)))
    w('    s_waitcnt vmcnt(0)\n')
    l = op_QK(0, True)
    for qt in range(4):
        s = S(0, qt)
        l.append(valu(f'v_max3_f32 v{vT[qt]}, v{s}, v{s+1}, v{vT[qt]}', [f'v{s}', f'v{s+1}', f'v{vT[qt]}'], [f'v{vT[qt]}']))
        l.append(valu(f'v_max3_f32 v{vT[qt]}, v{s+2}, v{s+3}, v{vT[qt]}', [f'v{s+2}', f'v{s+3}', f'v{vT[qt]}'], [f'v{vT[qt]}']))
    w(lines(padded(l)))
    w(f'''    s_add_u32 s{sKoff}, s{sKoff}, 4096
    s_add_u32 s{sJ}, s{sJ}, 1
    s_cmp_lt_u32 s{sJ}, 32
    s_cbranch_scc1 L_slow_p1
''')
    w(lines(padded(op_reduce(True))))
    for i in range(128): w(f'    v_mov_b32 v{128+i}, 0\n')
    for i in range(16): w(f'    v_accvgpr_write_b32 a{RS(0)+i}, 0\n')
    w(f'''    s_lshl_b32 s{sKoff}, s{sPair}, 17
    s_mov_b32 s{sJ}, 0
L_slow_p2:
''')
    w(f'    s_mov_b32 m0, s{sPA}\n    s_nop 0\n')
    for n in range(4): w(f'    buffer_load_dwordx4 v{vKd[0]}, {srd(sV)}, s{sKoff} offen offset:{n*1024} lds\n')
    w(lines(kload(0)))
    w(f'    s_add_u32 s{sKoff}, s{sKoff}, 4096\n    s_add_u32 m0, s{sPA}, 4096\n    s_nop 0\n')
    for n in range(4): w(f'    buffer_load_dwordx4 v{vKd[0]}, {srd(sV)}, s{sKoff} offen offset:{n*1024} lds\n')
    w(lines(kload(1)))
    w(f'    s_add_u32 s{sKoff}, s{sKoff}, 4096\n    s_waitcnt vmcnt(0)\n')
    l = op_QK(0, True) + op_SM(0, True) + op_QK(1, True) + op_SM(1, True)
    for qt in range(4): l.append(mfma('a', RS(qt), 'a', ONES, 'v', P(0, 0, qt), False))
    w(lines(padded(l)))
    for u in range(4):
        for Tb in range(2):
            for jh in range(2):
                d = VF(0, Tb, 0) + 2*jh
                w(f'    ds_read_b64_tr_b16 {ar(d,2)}, v{vTr} offset:{jh*4096 + u*256 + Tb*8}\n')
        w('    s_waitcnt lgkmcnt(0)\n')
        for Tb in range(2):
            for qt in range(4):
                w('    ' + mfma('v', O(2*u+Tb, qt), 'a', VF(0, Tb, 0), 'v', P(0, 0, qt), False).text + '\n')
        w('    s_nop 7\n')
    w(f'''    s_add_u32 s{sJ}, s{sJ}, 1
    s_cmp_lt_u32 s{sJ}, 16
    s_cbranch_scc1 L_slow_p2
    s_nop 7
''')
    l = op_L()
    for u in range(4):
        l += op_EPI(u)
        if u % 2: l += op_OUT(u // 2)
    for o in l:
        if o.kind == 'wlg': o.text = 's_waitcnt lgkmcnt(0)'
    w(lines(padded(l)))
    w(f'''    s_waitcnt vmcnt(0)
L_slow_next:
    s_add_u32 s{sB}, s{sB}, 1
    s_cmp_lt_u32 s{sB}, 4
    s_cbranch_scc1 L_slow_blk
''')
    return ''.join(T)

main()
```

```python
import sys, struct, math
import sched
from sched import *

OPT = dict(store_flags='nt', ds_lead=8, ds_lat=120, vm_space=3, debug=0, force_slow=0, q_flags='nt', kv_flags='nt',
           ds_sp=4, vshift=0, st_lo=10, st_hi=900, last_flags='nt', epi_len=20, warm=1, abl='', bou=1, pk=0, vmc=12, stc=20, vm_due=4, pkf=1, pkd=4, vm_sp=0, updin=1, fo=0, pst=1, strict=1, barx=1, qsp=0, stb=0, smq=3, q4=1, fraw=1, prog=1, pl=24, res=40, resd=40, bord='P0.R.V0.V1.P1.V2.P2.P3.K0.V3.K1.K2.K3', nopw=6, finq=1, fin_len=18, fin_st=4)
for a in sys.argv[2:]:
    k, v = a.split('=')
    OPT[k] = int(v) if v.lstrip('-').isdigit() else v.replace('+', ' ')

sched.STRICT1 = OPT['strict']; sched.RESERVE = OPT['res']; sched.BAR_EXCL = OPT['barx']; sched.VM_COST = OPT['vmc']; sched.ST_COST = OPT['stc']
NAME = 'standalone__gqa_softmax__near_ridge_kernel'
def bf16(x):
    u = struct.unpack('<I', struct.pack('<f', x))[0]
    return (u + 0x7fff + ((u >> 16) & 1)) >> 16
def unbf(h): return struct.unpack('<f', struct.pack('<I', h << 16))[0]
def f32(x): return struct.unpack('<I', struct.pack('<f', x))[0]
CSCALE = math.log2(math.e) / math.sqrt(128.0)
CHI = bf16(CSCALE); CLO = bf16(CSCALE - unbf(CHI))
QBYTES = 16*32*496*128*2
KBYTES = 16*16*512*128*2
PAIRQ = 992*256
PAIRK = 512*256

vKa, vVa, vOlo, vOhi = 1, 2, 3, 4
vKd = [5, 6, 7, 8]
vQa = 9
vBias = 10
vRd = 11
vWr = [12, 13]
vRL = [14, 15, 16, 17]
vNM = [20, 24, 28, 32]
vT = [21, 25, 29, 33]
vX0, vX1, vD0, vD1 = 36, 37, 38, 39
def S(buf, qt): return 40 + 4*qt if qt < 2 else 48 + 8*(qt - 2) + 4*buf
def P(par, h, qt): return 64 + 32*par + 16*h + 4*qt
def O(T, qt): return 128 + 16*T + 4*qt
def Q(qt, ks): return 16*qt + 4*ks
def QN(qt, ks): return 64 + 16*qt + 4*ks
def KF(buf, ks): return 128 + 16*buf + 4*ks
def VF(buf, Tb, h): return 160 + 16*buf + 8*Tb + 4*h
def RS(qt): return 192 + 4*qt
ONES = 208
SEL = 244
def OST(R, n): return (96 if R == 0 else 212) + 4*n
sQ, sK, sV, sO, sKn, sVn, sQB = 4, 8, 12, 16, 20, 24, 68
sKV, sKVn = 28, 29
sQn = [30, 31, 64, 65]
sOo = [32, 33]
sC, sNC, sThr, sB, sFlag, sW4k = 34, 35, 36, 37, 38, 39
sTK, sTV = 40, 41
sCmp = [48, 50, 52, 54]
sOP = 72
sOp = [76, 77]
sPA = 66
VBASE = 65536

def vr(a, n): return f'v[{a}:{a+n-1}]'
def ar(a, n): return f'a[{a}:{a+n-1}]'
def srd(a): return f's[{a}:{a+3}]'

def mfma(dp, d, ap, a, bp, b, zero, cin=None):
    cr = d if cin is None else cin
    zero = zero and cin is None
    c = '0' if zero else f'{dp}[{cr}:{cr+3}]'
    D = rng(dp, d, 4); C = [] if zero else rng(dp, cr, 4)
    return Op('mfma', f'v_mfma_f32_16x16x32_bf16 {dp}[{d}:{d+3}], {ap}[{a}:{a+3}], {bp}[{b}:{b+3}], {c}',
              R=rng(ap, a, 4) + rng(bp, b, 4) + C, W=D, C=C)
def valu(text, R, W, kind='valu', **kw): return Op(kind, text, R=R, W=W, **kw)

def op_RK(a):
    tile, kt = divmod(a, 4)
    slot = tile % 4
    l = []
    for ks in range(4):
        d = KF(a % 2, ks)
        l.append(Op('ds', f'ds_read_b128 {ar(d,4)}, v{vKa} offset:{slot*16384 + kt*4096 + ks*256}',
                    R=[f'v{vKa}', f'Krdy{tile}'], W=rng('a', d, 4), name=('RK', a % 32, ks)))
    return l
def op_RV(b):
    tile, u = divmod(b, 4)
    slot = tile % 4
    l = []
    for Tb in range(2):
        for h in range(2):
            for jh in range(2):
                d = VF(b % 2, Tb, h) + 2*jh
                off = slot*16384 + h*8192 + jh*4096 + u*256 + Tb*8
                l.append(Op('ds', f'ds_read_b64_tr_b16 {ar(d,2)}, v{vVa} offset:{off}',
                            R=[f'v{vVa}', f'Vrdy{tile}'], W=rng('a', d, 2), name=('RV', b % 32, Tb, h, jh)))
    return l
def op_QK(a, raw=False):
    l = []
    for qt in ([2, 3, 0, 1] if (a == 4 and OPT['q4'] and not raw) else range(4)):
        for i in range(4):
            ks = 3 - i if (OPT['bou'] and qt % 2) else i
            l.append(mfma('v', S(a % 2, qt), 'a', KF(a % 2, ks), 'a', Q(qt, ks), i == 0, vNM[qt] if (i == 0 and a % 32 and not raw) else None))
    return l
def op_PV(b):
    t, u = divmod(b, 4)
    l = []
    for Tb in range(2):
        for qt in range(4):
            for i in range(2):
                h = 1 - i if (OPT['bou'] and qt % 2) else i
                l.append(mfma('v', O(2*u+Tb, qt), 'a', VF(b % 2, Tb, h), 'v', P(t % 2, h, qt), t == 0 and i == 0))
    return l
def op_RS(t, qt):
    return [mfma('a', RS(qt), 'a', ONES, 'v', P(t % 2, h, qt), t == 0 and h == 0) for h in range(2)]
def op_SM(a, raw=False):
    t, kt = divmod(a, 4)
    l = []
    for qt in range(4):
        s = S(a % 2, qt)
        for r in range(4):
            if raw: l.append(valu(f'v_fma_f32 v{s+r}, v{s+r}, s{sC}, v{vNM[qt]}', [f'v{s+r}', f'v{vNM[qt]}'], [f'v{s+r}']))
            elif a == 0: l.append(valu(f'v_add_f32 v{s+r}, v{s+r}, v{vNM[qt]}', [f'v{s+r}', f'v{vNM[qt]}'], [f'v{s+r}']))
        for r in range(4):
            l.append(valu(f'v_exp_f32 v{s+r}, v{s+r}', [f'v{s+r}'], [f'v{s+r}'], kind='trans', name=('sm', a, qt, r)))
        p = P(t % 2, kt // 2, qt) + 2*(kt % 2)
        for i in range(2):
            l.append(valu(f'v_cvt_pk_bf16_f32 v{p+i}, v{s+2*i}, v{s+2*i+1}', [f'v{s+2*i}', f'v{s+2*i+1}'], [f'v{p+i}'], name=('sm', a, qt, 4 + i)))
    return l
def op_PS(qt, src, tmp, ntmp=4):
    l = []
    for ks in range(4):
        t = tmp + 8*(ks % ntmp)
        for x in range(2):
            l.append(mfma('v', t + 4*x, 'a', SEL + 2 - 2*x, 'a', src(qt, ks), True))
            l.append(mfma('v', t + 4*x, 'a', SEL + 6 - 2*x, 'a', src(qt, ks), False))
        for i in range(4):
            l.append(valu(f'v_cvt_pk_bf16_f32 v{t+2*i}, v{t+2*i}, v{t+2*i+1}', [f'v{t+2*i}', f'v{t+2*i+1}'], [f'v{t+2*i}']))
            l.append(valu(f'v_accvgpr_write_b32 a{Q(qt,ks)+i}, v{t+2*i}', [f'v{t+2*i}'], [f'a{Q(qt,ks)+i}']))
    return l
def perm(n, a, b): return valu(f'v_permlane{n}_swap_b32 v{a}, v{b}', [f'v{a}', f'v{b}'], [f'v{a}', f'v{b}'], kind='perm')
def op_reduce(raw=False):
    t = vT; n = vNM
    mx = lambda d, a, b: valu(f'v_max_f32 v{d}, v{a}, v{b}', [f'v{a}', f'v{b}'], [f'v{d}'])
    mv = lambda d, a: valu(f'v_mov_b32 v{d}, v{a}', [f'v{a}'], [f'v{d}'])
    return [perm(16, t[0], t[1]), perm(16, t[2], t[3]), mx(t[0], t[0], t[1]), mx(t[2], t[2], t[3]),
            perm(32, t[0], t[2]), mx(t[0], t[0], t[2]),
            valu(f'v_fma_f32 v{n[0]}, v{t[0]}, s{sNC}, v{vBias}' if raw else f'v_sub_f32 v{n[0]}, v{vBias}, v{t[0]}', [f'v{t[0]}', f'v{vBias}'], [f'v{n[0]}']),
            mv(n[2], n[0]), perm(32, n[0], n[2]), mv(n[1], n[0]), mv(n[3], n[2]),
            perm(16, n[0], n[1]), perm(16, n[2], n[3])] + ([] if raw else [mv(n[q] + i, n[q]) for q in range(4) for i in range(1, 4)])
def op_MAX():
    l = []
    for qt in range(4):
        s = S(0, qt)
        l.append(valu(f'v_max3_f32 v{vT[qt]}, v{s}, v{s+1}, v{s+2}', rng('v', s, 3), [f'v{vT[qt]}']))
        l.append(valu(f'v_max_f32 v{vT[qt]}, v{vT[qt]}, v{s+3}', [f'v{vT[qt]}', f'v{s+3}'], [f'v{vT[qt]}']))
    return l + op_reduce()
def op_DMA(which, tile, bar):
    slot = tile % 4
    nxt = tile >= 8
    base = sKVn if nxt else sKV
    st = sTK if which == 'K' else sTV
    d = (sKn if nxt else sK) if which == 'K' else (sVn if nxt else sV)
    l = [Op('salu', f's_add_u32 s{st}, s{base}, {(tile % 8)*16384}', R=[f's{base}'], W=[f's{st}', 'scc']),
         Op('salu', f's_add_u32 m0, s{sW4k}, {slot*16384 + (VBASE if which == "V" else 0)}', R=[], W=['m0', 'scc'])]
    for n in range(4):
        va = vKd[n] if which == 'K' else vKd[0]
        l.append(Op('dma', f'buffer_load_dwordx4 v{va}, {srd(d)}, s{st} offen offset:{n*1024} {OPT["kv_flags"]} lds',
                    R=[f'v{va}', f's{st}', 'm0', 'srdn'] + ([bar] if bar else []), W=[], name=(which, tile % 8, n)))
    return l
def op_QD(qt, m0txt, dep=None, so=None):
    l = [Op('salu', m0txt, R=[], W=['m0', 'scc'])]
    so = sQn[qt] if so is None else so
    for n in range(4):
        l.append(Op('dma', f'buffer_load_dwordx4 v{vKd[n]}, {srd(sQ if qt < 2 else sQB)}, s{so} offen offset:{n*1024} {OPT["q_flags"]} lds',
                    R=[f'v{vKd[n]}', f's{so}', 'm0'] + ([dep] if dep else []), W=[], name=('Q', qt, n)))
    return l
def op_QR(qt, dst, va, off, dep):
    return [Op('ds', f'ds_read_b128 {ar(dst(qt,ks),4)}, v{va} offset:{off + ks*256}',
               R=[f'v{va}', dep, 'PA'], W=rng('a', dst(qt, ks), 4), name=('QR', qt, ks)) for ks in range(4)]
def op_L():
    l = []
    for qt in range(4):
        r = vRL[qt]
        l.append(valu(f'v_accvgpr_read_b32 v{r}, a{RS(qt)}', [f'a{RS(qt)}'], [f'v{r}']))
        l.append(valu(f'v_cmp_nge_f32 s[{sCmp[qt]}:{sCmp[qt]+1}], s{sThr}, v{r}', [f'v{r}'], [f's{sCmp[qt]}']))
        l.append(valu(f'v_rcp_f32 v{r}, v{r}', [f'v{r}'], [f'v{r}'], kind='trans'))
    return l
def op_EPI(u):
    l = []
    for qt in range(4):
        a, b = O(2*u, qt), O(2*u+1, qt)
        for x in list(range(a, a+4)) + list(range(b, b+4)):
            l.append(valu(f'v_mul_f32 v{x}, v{x}, v{vRL[qt]}', [f'v{x}', f'v{vRL[qt]}'], [f'v{x}']))
        for i, x in enumerate([a, a+2, b, b+2]):
            l.append(valu(f'v_cvt_pk_bf16_f32 v{a+i}, v{x}, v{x+1}', [f'v{x}', f'v{x+1}'], [f'v{a+i}']))
        l.append(Op('ds', f'ds_write_b128 v{vWr[u%2]}, {vr(a,4)} offset:{qt*2048}',
                    R=rng('v', a, 4) + [f'v{vWr[u%2]}', 'PAw'], W=[f'PA{qt}_{u%2}'], name=('OW', u, qt)))
    return l
def op_OR(R, half):
    return [Op('ds', f'ds_read_b128 {ar(OST(R,n),4)}, v{vRd} offset:{n*1024}',
               R=[f'v{vRd}', f'PA{n//2}_0', f'PA{n//2}_1'], W=rng('a', OST(R, n), 4), name=('OR', R, n)) for n in range(4*half, 4*half+4)]
def op_ST(R, half, dep, prev):
    l = []
    for n in range(4*half, 4*half+4):
        va = vOlo if n < 4 else vOhi
        so = (sOp if prev else sOo)[(n//2) % 2]
        l.append(Op('vst', f'buffer_store_dwordx4 {ar(OST(R,n),4)}, v{va}, {srd(sOP if prev else sO)}, s{so} offen offset:{(n%2)*2048 + R*128} {OPT["store_flags" if prev else "last_flags"]}'.rstrip(),
                    R=rng('a', OST(R, n), 4) + [f'v{va}', f's{so}', dep], W=[], name=('O', R, n)))
    return l
def op_OUT(R):
    l = []
    for half in range(2):
        rd = op_OR(R, half)
        l += rd + [wlg(rd, f'wO{R}_{half}')] + op_ST(R, half, f'wO{R}_{half}', False)
    return l
def wlg(targets, tag, prev=None):
    o = Op('wlg', None, W=[tag], targets=targets)
    o.prev_targets = [t.name for t in targets] if prev is None else prev
    return o
def wvm(names, tag, byname):
    o = Op('wvm', None, W=[tag], targets=[byname[x] for x in names if x in byname])
    o.prev_targets = names
    return o

def op_UPD():
    sa = lambda t, R, W: Op('salu', t, R=R, W=W)
    c = [f's{x}' for x in sCmp]
    p = lambda x: f's[{x}:{x+1}]'
    l = [sa(f's_or_b64 {p(sCmp[0])}, {p(sCmp[0])}, {p(sCmp[1])}', [c[0], c[1]], [c[0], 'scc']),
         sa(f's_or_b64 {p(sCmp[2])}, {p(sCmp[2])}, {p(sCmp[3])}', [c[2], c[3]], [c[2], 'scc']),
         sa(f's_or_b64 {p(sCmp[0])}, {p(sCmp[0])}, {p(sCmp[2])}', [c[0], c[2]], [c[0], 'scc']),
         sa('s_cselect_b32 s42, 1, 0', ['scc'], ['s42']),
         sa(f's_lshl_b32 s42, s42, s{sB}', ['s42', f's{sB}'], ['s42', 'scc']),
         sa(f's_or_b32 s{sFlag}, s{sFlag}, s42', ['s42'], [f's{sFlag}', 'scc']),
         sa(f's_mov_b64 {p(sOp[0])}, {p(sOo[0])}', [f's{sOo[0]}'], [f's{sOp[0]}']),
         sa(f's_mov_b64 {p(sOo[0])}, {p(sQn[0])}', [f's{sQn[0]}', f's{sQn[1]}'], [f's{sOo[0]}', f's{sOo[1]}']),
         sa(f's_mov_b32 s{sKV}, s{sKVn}', [f's{sKVn}'], [f's{sKV}']),
         sa(f's_add_u32 s{sB}, s{sB}, 1', [f's{sB}'], [f's{sB}', 'scc']),
         sa(f's_cselect_b32 s{sOP+2}, 0, {QBYTES}', ['scc'], [f's{sOP+2}']),
         sa(f's_cmp_lt_u32 s{sB}, 3', [f's{sB}'], ['scc']),
         sa(f's_cselect_b32 s42, {OPT["pst"]*PAIRQ}, 0', ['scc'], ['s42']),
         sa(f's_cselect_b32 s45, {OPT["pst"]*PAIRK}, 0', ['scc'], ['s45']),
         sa(f's_cselect_b32 s{sQ+2}, s{sQ+2}, 0', ['scc'], [f's{sQ+2}']),
         sa(f's_cselect_b32 s{sQB+2}, s{sQB+2}, 0', ['scc'], [f's{sQB+2}']),
         sa(f's_cselect_b32 s{sKn+2}, s{sKn+2}, 0', ['scc'], ['srdn']),
         sa(f's_cselect_b32 s{sVn+2}, s{sVn+2}, 0', ['scc'], ['srdn'])]
    l += [sa(f's_add_u32 s{x}, s{x}, s42', ['s42', f's{x}'], [f's{x}', 'scc']) for x in sQn]
    l += [sa(f's_add_u32 s{sKVn}, s{sKVn}, s45', ['s45', f's{sKVn}'], [f's{sKVn}', 'scc'])]
    return l

class Seg:
    def __init__(self):
        self.ops = []; self.nm = 0; self.byname = {}
    def add(self, l, need=None):
        for i, o in enumerate(l):
            if need and i == 0: o.R += need if isinstance(need, list) else [need]
            if o.kind == 'mfma': self.nm += 1
            if o.kind in ('dma', 'vld', 'vst'): self.byname[o.name] = o
            self.ops.append(o)
        return l
    def reads(self, l, tag, at):
        n = len(l)
        for i, o in enumerate(l):
            o.due = at - OPT['ds_lead'] - (n - 1 - i) * OPT['ds_sp']
            o.earliest = o.due - 2
        self.add(l)
        if tag: self.add([wlg(l, tag)])
    def spread(self, l, lo, hi, sp=None):
        mem = [o for o in l if o.kind in MEM_KINDS]
        for i, o in enumerate(mem):
            pos = lo + min(sp or OPT['vm_sp'] or 1000, (hi - lo) / len(mem)) * (i + 0.5)
            o.earliest = int(pos) - 2; o.due = pos + OPT['vm_due']
        for i, o in enumerate(l):
            if o.kind == 'salu':
                nx = next(x for x in l[i:] if x.kind in MEM_KINDS)
                o.earliest = nx.earliest - 6
        self.add(l)
    def barrier(self, nn, pos, waits):
        names = [('K', (nn+1) % 8, i) for i in range(4)] + [('V', nn % 8, i) for i in range(4)]
        wv = wvm(names, f'wvm{nn}', self.byname); wv.earliest = pos - 3
        bo = Op('bar', 's_barrier', R=[f'wvm{nn}'] + waits, W=[f'bar{nn}', f'Krdy{nn+1}', f'Vrdy{nn}'])
        bo.earliest = pos - 1; bo.due = pos + 1
        self.add([wv, bo])

def seg_A():
    g = Seg()
    start = {s: (s - 4) * 34 for s in range(4, 33)}
    barpos = {nn: start[4*nn+3] + 16 for nn in range(1, 8)}
    barpos[0] = -2
    def interval(nn, extra):
        bar = f'bar{nn}' if nn >= 1 else None
        k, v = op_DMA('K', nn + 4, bar), op_DMA('V', nn + 3, bar)
        if OPT['qsp']:
            h = {2: 4, 3: 0}.get(nn, (len(extra) // 2 + 1) // 2 * 2)
            l = k + extra[:h] + v + extra[h:]
        else: l = k + v + extra
        g.spread(l, barpos[nn] + 2, barpos[nn+1] - 6)
    qm0 = lambda j: f's_add_u32 m0, s{sPA}, {4096*j}'
    extras = {0: op_QD(0, qm0(0), 'wK4'), 1: op_QD(1, qm0(1), 'wK4'), 4: op_QD(2, qm0(0), 'wQA'), 5: op_QD(3, qm0(1), 'wQA')}
    if OPT['qsp']:
        def pieces(qts, dep):
            out = []
            for qt in qts:
                for p in op_QD(qt, '', dep)[1:]: out.append([Op('salu', qm0(qt % 2), R=[], W=['m0', 'scc']), p])
            return out
        a, b, c = pieces((0, 1), 'wK4'), pieces((2,), 'wQ0'), pieces((3,), 'wQ1')
        extras = {0: sum(a[:3], []), 1: sum(a[3:6], []), 2: sum(a[6:], []), 3: sum(b[:2], []), 4: sum(b[2:] + c[:1], []), 5: sum(c[1:], [])}
    w = wlg([], 'wK4', prev=[('RK', 4, ks) for ks in range(4)] + [('OR', R, n) for R in range(2) for n in range(8)]); w.due = -1
    g.add([w])
    sts = sum([op_ST(R, hf, 'wK4', True) for hf in range(2) for R in range(OPT['stb'], 2)], [])
    sts.sort(key=lambda o: (o.name[2], o.name[1]))
    g.spread(sts, OPT['st_lo'], OPT['st_hi'], 1000)
    interval(0, extras[0])
    for s in range(4, 32):
        if s > 4: g.reads(op_RK(s), f'wK{s}', start[s])
        g.add(op_SM(s - 1))
        g.add(op_QK(s), f'wK{s}')
        b = s - 4
        g.reads(op_RV(b), f'wV{b}', start[s] + 16)
        if s % 4 == 3: g.barrier(s // 4, barpos[s // 4], [f'wK{s}', f'wV{b}'])
        g.add(op_PV(b), f'wV{b}')
        g.add(op_RS(b // 4, b % 4))
        if s == 17 and not OPT['qsp']:
            wq = wvm([('Q', qt, n) for qt in range(2) for n in range(4)], 'vQA', g.byname); wq.earliest = start[17]
            g.add([wq])
            g.reads(op_QR(0, QN, vQa, 0, 'vQA') + op_QR(1, QN, vQa, 4096, 'vQA'), 'wQA', barpos[4] + 8)
        if s in (15, 19) and OPT['qsp']:
            qt = s // 19
            wq = wvm([('Q', qt, n) for n in range(4)], f'vQ{qt}', g.byname); wq.earliest = start[s + 2] - 4
            g.add([wq])
            g.reads(op_QR(qt, QN, vQa, 4096*qt, f'vQ{qt}'), f'wQ{qt}', start[s + 3] - 4)
        if s % 4 == 3 and s // 4 <= 6: interval(s // 4, extras.get(s // 4, []))
    g.add(op_SM(31)[:6*OPT['smq']])
    g.reads(op_RV(28), None, start[32] + 12)
    return g.ops

def seg_B():
    g = Seg()
    order = [{'R': ('RS', 0), 'V': ('PV', 28 + int(x[1:] or 0)), 'P': ('PS', int(x[1:] or 0)), 'K': ('QK', 32 + int(x[1:] or 0))}[x[0]]
             for x in OPT['bord'].split('.')]
    pos = {}; n = 0
    for k in order:
        pos[k] = n; n += 8 if k[0] == 'RS' else 16
    total = n
    g.add(op_SM(31)[6*OPT['smq']:])
    g.add([wlg([], 'wV28', prev=[o.name for o in op_RV(28)])])
    wq = wvm([('Q', qt, n) for qt in range(2, 4) for n in range(4)], 'vQB', g.byname); wq.due = -5
    g.add([wq])
    g.reads(op_QR(2, Q, vQa, 0, 'vQB') + op_QR(3, Q, vQa, 4096, 'vQB'), 'wQB', min(pos[('PV', 28)] + 24, pos[('PS', 2)]))
    for o in g.ops:
        if o.kind == 'ds': o.earliest = None; o.R.remove('PA'); o.R += [f'PA{q}_{p}' for q in range(4) for p in range(2)]
    barp = pos[('QK', 35)] - 1
    g.spread(op_DMA('K', 11, None) + op_DMA('V', 10, None), 2, barp - 40)
    for k in order:
        if k[0] == 'RS':
            for qt in range(4): g.add(op_RS(7, qt))
            g.add(op_L())
        elif k[0] == 'PS':
            g.add(op_PS(k[1], QN if k[1] < 2 else Q, P(0, 0, 0)), 'wQB' if k[1] == 2 else None)
        elif k[0] == 'PV':
            b = k[1]
            if b > 28: g.reads(op_RV(b), f'wV{b}', pos[k])
            g.add(op_PV(b), f'wV{b}')
            ep = op_EPI(b - 28)
            for i, o in enumerate(ep): o.due = pos[k] + 16 + 4 + OPT['epi_len'] * i / len(ep)
            g.add(ep)
            if b % 2 == 1:
                R = (b - 28) // 2
                out = op_OR(R, 0) + op_OR(R, 1)
                for i, o in enumerate(out): o.due = pos[k] + 16 + 4 + OPT['epi_len'] * (0.5 + 0.5 * i / len(out))
                g.add(out)
                if R == 0 and OPT['stb']:
                    g.add([wlg(out, 'wO0')])
                    st = op_ST(0, 0, 'wO0', False) + op_ST(0, 1, 'wO0', False)
                    for o in st: o.text = o.text.replace(OPT['last_flags'], OPT['store_flags']) if OPT['last_flags'] else o.text + ' ' + OPT['store_flags']
                    g.spread(st, pos[k] + 16 + 4 + OPT['epi_len'] + 10, total - 26, 1000)
        else:
            a = k[1]
            g.reads(op_RK(a), f'wK{a}', pos[k])
            if a > 32: g.add(op_SM(a - 33))
            if a == 35: g.barrier(8, barp, [f'wK{a}', 'wV31'])
            g.add(op_QK(a), f'wK{a}')
            if a == 32: g.add(op_MAX())
    g.reads(op_RK(36), None, total + 4)
    g.add(op_UPD())
    return g.ops

def seg_final():
    g = Seg()
    VFq = lambda u, Tb, h: [160, 176, 128, 144][u] + 8*Tb + 4*h
    x0 = P(0, 0, 0)
    vL, vI, vG, vW0, vW1, vS0, vS1, vX = [x0 + i for i in range(8)]
    va = lambda t, R, W: valu(t, [f'v{r}' for r in R], [f'v{W}'])
    adr = [va(f'v_and_b32 v{vI}, 15, v0', [], vI), va(f'v_bfe_u32 v{vG}, v0, 4, 2', [], vG),
           va(f'v_and_b32 v{vX}, 7, v0', [], vX), va(f'v_xor_b32 v{vX}, v{vX}, v{vG}', [vX, vG], vX),
           va(f'v_lshlrev_b32 v{vX}, 4, v{vX}', [vX], vX), va(f'v_lshl_add_u32 v{vX}, v{vI}, 8, v{vX}', [vX, vI], vX),
           va(f'v_add_u32 v{vW0}, s{sPA}, v{vX}', [vX], vW0), va(f'v_xor_b32 v{vW1}, 64, v{vW0}', [vW0], vW1),
           va(f'v_xor_b32 v{vL}, v{vI}, v{vG}', [vI, vG], vL), va(f'v_lshlrev_b32 v{vL}, 4, v{vL}', [vL], vL),
           va(f'v_lshl_add_u32 v{vS0}, v{vG}, 8, v{vL}', [vG, vL], vS0), va(f'v_xor_b32 v{vS1}, 64, v{vS0}', [vS0], vS1)]
    sm = op_SM(31)
    g.add([wlg([], 'wV0', prev=[o.name for o in op_RV(28)])])
    wq = wvm([('Q', qt, n) for qt in range(2, 4) for n in range(4)], 'PAw', g.byname); wq.earliest = 4
    g.add([wq])
    for u in range(1, 4):
        rv = op_RV(28 + u)
        for o, (Tb, h, jh) in zip(rv, [(a, b, c) for a in range(2) for b in range(2) for c in range(2)]):
            d = VFq(u, Tb, h) + 2*jh
            o.text = f'ds_read_b64_tr_b16 {ar(d,2)},' + o.text.split(',', 1)[1]; o.W = rng('a', d, 2)
            o.due = -20 + u
        g.add(rv); g.add([wlg(rv, f'wV{u}')])
    for i, o in enumerate(adr): o.due = 10
    g.add(adr)
    Lops = op_L()
    for qt in range(4):
        base = 18 * qt
        if qt >= OPT['smq']: g.add(sm[6*qt:6*qt+6])
        g.add(op_RS(7, qt))
        g.add(Lops[3*qt:3*qt+3])
        for u in range(4):
            for Tb in range(2):
                for h in range(2):
                    m = mfma('v', O(2*u+Tb, qt), 'a', VFq(u, Tb, h), 'v', P(1, h, qt), False)
                    if qt == 0 and Tb == 0 and h == 0: m.R.append(f'wV{u}')
                    g.add([m])
        ep = []
        for u in range(4):
            a, b = O(2*u, qt), O(2*u+1, qt)
            for x in list(range(a, a+4)) + list(range(b, b+4)):
                ep.append(valu(f'v_mul_f32 v{x}, v{x}, v{vRL[qt]}', [f'v{x}', f'v{vRL[qt]}'], [f'v{x}']))
            for i, x in enumerate([a, a+2, b, b+2]):
                ep.append(valu(f'v_cvt_pk_bf16_f32 v{a+i}, v{x}, v{x+1}', [f'v{x}', f'v{x+1}'], [f'v{a+i}']))
            w_ = [vW0, vW1][u % 2]
            ep.append(Op('ds', f'ds_write_b128 v{w_}, {vr(a,4)} offset:{(qt%2)*4096 + (u//2)*128}',
                         R=rng('v', a, 4) + [f'v{w_}', 'PAw'], W=[f'PB{qt%2}_{u}'], name=('OW', u, qt)))
        st = lambda n: OST(qt // 2, 4*(qt % 2) + n)
        rd = [Op('ds', f'ds_read_b128 {ar(st(n),4)}, v{vRd} offset:{(qt%2)*4096 + n*1024}',
                 R=[f'v{vRd}'] + [f'PB{qt%2}_{u}' for u in range(4)], W=rng('a', st(n), 4), name=('OR', qt, n)) for n in range(4)]
        ep += rd + [wlg(rd, f'wO{qt}')]
        if qt == 2:
            ep += [va(f'v_add_u32 v{x}, s46, v{x}', [x], x) for x in (vS0, vS1)]
        for n in range(4):
            s_ = [vS0, vS1][n % 2]
            ep.append(Op('vst', f'buffer_store_dwordx4 {ar(st(n),4)}, v{s_}, {srd(sO)}, s{sOo[qt%2]} offen offset:{n*1024} {OPT["last_flags"]}'.rstrip(),
                         R=rng('a', st(n), 4) + [f'v{s_}', f'wO{qt}'], W=[], name=('O', qt, n)))
        for i, o in enumerate(ep):
            o.due = base + 8 + OPT['fin_len'] * i / len(ep) + (OPT['fin_st'] * (1 + o.name[2]) if o.kind == 'vst' else 0)
            if o.kind == 'vst': o.earliest = o.due - 1
            if o.kind == 'wlg': o.due = None
        g.add(ep)
    return g.ops

def seg_first(qt, qr, dmas):
    g = Seg()
    g.add(qr); g.add([wlg(qr, 'wq')])
    raw = OPT['fraw']
    if not raw: g.add(op_PS(qt, Q, O(4, 0)), 'wq')
    tmp = lambda kt: S(1, qt) if kt == 3 else O(kt, qt)
    for kt in range(4):
        g.add([mfma('v', tmp(kt), 'a', 128 + 16*kt + 4*ks, 'a', Q(qt, ks), ks == 0) for ks in range(4)], 'wq' if (raw and kt == 0) else None)
    s = tmp(0); n = vNM[qt]; t, u = n + 1, n + 2
    mx = lambda d, a, b: valu(f'v_max_f32 v{d}, v{a}, v{b}', [f'v{a}', f'v{b}'], [f'v{d}'])
    mv = lambda d, a: valu(f'v_mov_b32 v{d}, v{a}', [f'v{a}'], [f'v{d}'])
    l = [valu(f'v_max3_f32 v{t}, v{s}, v{s+1}, v{s+2}', rng('v', s, 3), [f'v{t}']), mx(t, t, s+3),
         mv(u, t), perm(16, t, u), mx(t, t, u), mv(u, t), perm(32, t, u), mx(t, t, u)]
    if raw:
        l.append(valu(f'v_mul_f32 v{n}, s{sNC}, v{t}', [f'v{t}'], [f'v{n}']))
        if qt >= 2: l.append(valu(f'v_add_f32 v{n}, s47, v{n}', [f'v{n}'], [f'v{n}']))
    else: l.append(valu(f'v_sub_f32 v{n}, {"s47" if qt >= 2 else "0"}, v{t}', [f'v{t}'], [f'v{n}']))
    for o in l: o.due = 0
    g.add(l)
    if raw: g.add(op_PS(qt, Q, O(4, 0)))
    for kt in range(4):
        s = tmp(kt)
        for r in range(4):
            g.add([valu(f'v_fma_f32 v{s+r}, v{s+r}, s{sC}, v{n}' if raw else f'v_add_f32 v{s+r}, v{s+r}, v{n}', [f'v{s+r}', f'v{n}'], [f'v{s+r}'])])
        if kt == 3: break
        for r in range(4): g.add([valu(f'v_exp_f32 v{s+r}, v{s+r}', [f'v{s+r}'], [f'v{s+r}'], kind='trans')])
        p = P(0, kt // 2, qt) + 2*(kt % 2)
        for i in range(2): g.add([valu(f'v_cvt_pk_bf16_f32 v{p+i}, v{s+2*i}, v{s+2*i+1}', [f'v{s+2*i}', f'v{s+2*i+1}'], [f'v{p+i}'])])
    g.add([mv(n + i, n) for i in range(1, 4)])
    if dmas:
        for o in dmas: o.due = -50
        g.ops = dmas + g.ops
        g.ops[len(dmas) + 4].extra += dmas
        for o in dmas: o.extra += g.ops[len(dmas):len(dmas) + 4]
        g.ops = g.ops[len(dmas):len(dmas) + 4] + dmas + g.ops[len(dmas) + 4:]
    return g.ops

K1F = lambda kt, ks: 64 + 16*kt + 4*ks
V0F = lambda u, Tb, h: ('a', 212 + 16*u + 8*Tb + 4*h) if u < 2 else ('v', O(7, 0) + 8*Tb + 4*h)
def prog1(g, qt, qr, dmas):
    g.add(qr)
    for o in dmas:
        o.due = -50; o.extra += qr
    g.add(dmas)
    w = wlg(qr, 'wq'); w.extra += dmas
    g.add([w])
    for kt in range(4):
        g.add([mfma('v', O(kt, qt), 'a', 128 + 16*kt + 4*ks, 'a', Q(qt, ks), ks == 0) for ks in range(4)], 'wq' if kt == 0 else None)
    s = O(0, qt); n = vNM[qt]; t, u = n + 1, n + 2
    mx = lambda d, a, b: valu(f'v_max_f32 v{d}, v{a}, v{b}', [f'v{a}', f'v{b}'], [f'v{d}'])
    mv = lambda d, a: valu(f'v_mov_b32 v{d}, v{a}', [f'v{a}'], [f'v{d}'])
    l = [valu(f'v_max3_f32 v{t}, v{s}, v{s+1}, v{s+2}', rng('v', s, 3), [f'v{t}']), mx(t, t, s+3),
         mv(u, t), perm(16, t, u), mx(t, t, u), mv(u, t), perm(32, t, u), mx(t, t, u),
         valu(f'v_mul_f32 v{n}, s{sNC}, v{t}', [f'v{t}'], [f'v{n}'])]
    if qt >= 2: l.append(valu(f'v_add_f32 v{n}, s47, v{n}', [f'v{n}'], [f'v{n}']))
    for o in l: o.due = 0
    g.add(l)
    g.add(op_PS(qt, Q, O(6, 0), 2))
    for kt in range(4):
        s = O(kt, qt)
        for r in range(4): g.add([valu(f'v_fma_f32 v{s+r}, v{s+r}, s{sC}, v{n}', [f'v{s+r}', f'v{n}'], [f'v{s+r}'])])
        for r in range(4): g.add([valu(f'v_exp_f32 v{s+r}, v{s+r}', [f'v{s+r}'], [f'v{s+r}'], kind='trans')])
        p = P(0, kt // 2, qt) + 2*(kt % 2)
        for i in range(2): g.add([valu(f'v_cvt_pk_bf16_f32 v{p+i}, v{s+2*i}, v{s+2*i+1}', [f'v{s+2*i}', f'v{s+2*i+1}'], [f'v{p+i}'])])
    g.add([mv(n + i, n) for i in range(1, 4)])
def prog2(g, qt, done, dep=False):
    def qk(kt):
        s = [O(4, qt), O(5, qt), S(0, qt), S(1, qt)][kt]
        g.add([mfma('v', s, 'a', K1F(kt, ks), 'a', Q(qt, ks), ks == 0, vNM[qt] if ks == 0 else None) for ks in range(4)], f'wk{kt}' if dep else None)
        p = P(1, kt // 2, qt) + 2*(kt % 2)
        for r in range(4):
            if ('sm', 4 + kt, qt, r) in done: g.add([valu(f'v_exp_f32 v{s+r}, v{s+r}', [f'v{s+r}'], [f'v{s+r}'], kind='trans')])
            else: assert kt >= 2
        for i in range(2):
            if ('sm', 4 + kt, qt, 4 + i) in done:
                g.add([valu(f'v_cvt_pk_bf16_f32 v{p+i}, v{s+2*i}, v{s+2*i+1}', [f'v{s+2*i}', f'v{s+2*i+1}'], [f'v{p+i}'])])
            else: assert kt >= 2
    def pv(u):
        g.add([mfma('v', O(2*u+Tb, qt), *V0F(u, Tb, h), 'v', P(0, h, qt), h == 0) for Tb in range(2) for h in range(2)], f'wv{u}' if dep else None)
    qk(0); qk(1); qk(2); pv(0); pv(1); qk(3)
    if qt < 3: g.add(op_RS(0, qt))
    pv(2)

def resolve_waits(seqs):
    res = {}
    for kind, kinds, fmt, mx in (('wvm', ('dma', 'vld', 'vst'), 'vmcnt', 63), ('wlg', ('ds',), 'lgkmcnt', 15)):
        hist = []
        for si, sq in enumerate(seqs):
            for o in sq:
                if o.kind in kinds: hist.append(o.name)
                elif o.kind == kind:
                    assert any(x in hist for x in o.prev_targets), o.prev_targets
                    last = max(len(hist) - 1 - hist[::-1].index(x) for x in o.prev_targets if x in hist)
                    res.setdefault(o, []).append(len(hist) - 1 - last)
        for o, l in res.items():
            if o.kind == kind: o.text = f's_waitcnt {fmt}({min(min(l), mx)})'
    return res

def lines(ops): return ''.join('    ' + o.text + '\n' for o in ops)
def padded(ops):
    build_deps(ops)
    out = []
    for o in ops:
        need = 0
        for p, d in o.preds.items():
            need = max(need, d - (len(out) - p.pos - 1))
        for _ in range(need): out.append(Op('salu', 's_nop 0'))
        o.pos = len(out); out.append(o)
    return out

def dbg_lines(ops, first):
    txt = ''; n = first
    for o in ops:
        txt += '    ' + o.text + '\n'
        if o.kind == 'bar':
            txt += f'    s_memtime s[{78+2*n}:{79+2*n}]\n'; n += 1
    return txt, n
DUMP = '    s_memtime s[96:97]\n    s_waitcnt lgkmcnt(0)\n' + ''.join(
    f'    v_writelane_b32 v38, s{78+2*i}, {i}\n' for i in range(11)) + \
    '    s_mov_b64 exec, 0xffff\n    buffer_store_dword v38, v39, s[60:63], s59 offen\n    s_mov_b64 exec, -1\n    s_add_u32 s59, s59, 64\n'

def main():
    segs = {}
    for nme, ops in (('A', seg_A()), ('B', seg_B()), ('D', seg_final())):
        sched.RESERVE = OPT['resd'] if nme == 'D' else OPT['res']
        segs[nme], stats = schedule(ops, OPT['ds_lead'], OPT['ds_lat'], OPT['vm_space'], nop_win=(OPT['nopw'] if nme == 'A' else 10000))
        print(nme, stats, file=sys.stderr)
    A = []
    w = A.append
    WARM1 = '''    s_getpc_b64 s[94:95]
L_pc:
    s_bfe_u32 s64, s2, 0x20003            ; (wg >> 3) & 3
    s_lshl_b32 s64, s64, 13
    v_lshlrev_b32 v28, 7, v0
    v_cmp_lt_u32 vcc, 63, v0
    v_mov_b32 v29, s64
    s_nop 0
    v_cndmask_b32 v29, 0, v29, vcc
    v_add_u32 v28, v28, v29
    v_min_u32 v28, L_end-L_pc, v28
    v_cmp_gt_u32 vcc, 128, v0
    s_and_saveexec_b64 s[64:65], vcc
    s_cbranch_execz L_w1
    global_load_dword a255, v28, s[94:95]
L_w1:
    s_mov_b64 exec, -1
''' if OPT['warm'] else ''
    w(f'''; GQA attention forward, B=16 Hq=32 Hkv=16 Sq=496 Sk=512 D=128, bf16.  Generated by gen/gen.py (own generator).
; 256 persistent workgroups x 4 waves; each wave 64 q rows; K/V tiles streamed through an LDS ring by LDS-DMA.
; Softmax reference point: max over the row's first 16 keys; a run-time check on the row sum redoes the rows
; @launch grid=(256,1,1) block=(256,1,1) lds=163840
.amdgcn_target "amdgcn-amd-amdhsa--gfx950"
.text
.globl {NAME}
.p2align 8
.type {NAME},@function
{NAME}:
    s_cmp_ge_u32 s2, 256
    s_cbranch_scc1 L_end
{'    s_memtime s[100:101]' if OPT['debug'] else ''}
    s_load_dwordx4 s[56:59], s[0:1], 0
    s_load_dwordx4 s[60:63], s[0:1], 16
{WARM1}    v_lshrrev_b32 v20, 6, v0
    v_and_b32 v21, 63, v0                 ; lane
    v_readfirstlane_b32 s42, v20          ; wave
    v_and_b32 v22, 15, v21                ; i
    v_lshrrev_b32 v23, 4, v21             ; g
    v_lshrrev_b32 v26, 2, v22             ; i/4
    v_and_b32 v27, 3, v21                 ; i%4
    ; DMA lane part: (i/4)*256 + g*64 + ((i%4)^f(n))*16
    v_lshlrev_b32 v30, 8, v26
    v_lshl_add_u32 v30, v23, 6, v30
    v_lshl_add_u32 v{vKd[0]}, v27, 4, v30
    v_xor_b32 v{vKd[1]}, 48, v{vKd[0]}
    v_xor_b32 v{vKd[2]}, 32, v{vKd[0]}
    v_xor_b32 v{vKd[3]}, 16, v{vKd[0]}
    s_and_b32 s43, s2, 7                  ; xcd
    s_lshr_b32 s44, s2, 3
    s_lshr_b32 s45, s44, 2                ; group
    s_and_b32 s44, s44, 3                 ; qb
    s_lshl_b32 s43, s43, 5
{'    s_lshl_b32 s45, s45, 2' if OPT['pst'] == 1 else ''}
    s_add_u32 s43, s43, s45               ; pair0
    s_lshl_b32 s{sW4k}, s42, 12
    s_lshl_b32 s{sKVn}, s43, 17
    s_add_u32 s{sKVn}, s{sKVn}, s{sW4k}
    s_mul_i32 s45, s43, {PAIRQ}
    s_lshl_b32 s46, s44, 16
    s_add_u32 s45, s45, s46
    s_lshl_b32 s46, s42, 14
    s_add_u32 s{sQn[0]}, s45, s46
    s_add_u32 s{sQn[1]}, s{sQn[0]}, 4096
    s_lshl_b32 s{sPA}, s42, 13
    s_add_u32 s{sPA}, s{sPA}, 131072
    s_lshl_b32 s46, s44, 2
    s_add_u32 s46, s46, s42
    s_cmp_eq_u32 s46, 15
    s_cselect_b32 s46, 0x40000000, 8192
    s_cselect_b32 s47, 0xff800000, 0
    s_cselect_b32 s45, 0, 8192
    s_cselect_b32 s{sQB+2}, 0, {QBYTES}
    s_add_u32 s{sQn[2]}, s{sQn[0]}, s45
    s_add_u32 s{sQn[3]}, s{sQn[1]}, s45
    s_mov_b32 s{sQ+2}, {QBYTES}
    s_mov_b32 s{sQ+3}, 0x20000
    s_mov_b32 s{sQB+3}, 0x20000
    s_mov_b32 s{sKn+2}, {KBYTES}
    s_mov_b32 s{sKn+3}, 0x20000
    s_mov_b32 s{sVn+2}, {KBYTES}
    s_mov_b32 s{sVn+3}, 0x20000
    s_waitcnt lgkmcnt(0)
    s_mov_b32 s{sKn}, s58
    s_mov_b32 s{sKn+1}, s59
    s_mov_b32 s{sQ}, s56
    s_mov_b32 s{sQ+1}, s57
    s_mov_b32 s{sQB}, s56
    s_mov_b32 s{sQB+1}, s57
    s_mov_b32 s{sVn}, s60
    s_mov_b32 s{sVn+1}, s61
''')
    if OPT['debug']:
        w('''    s_memrealtime s[98:99]
    s_waitcnt lgkmcnt(0)
    s_mov_b32 s67, s98
''')
    QTMP = [None, None, VBASE + 3*16384, 3*16384]
    pro = op_DMA('K', 8, None)
    pro += op_QD(0, f's_add_u32 m0, s{sPA}, 0')
    if OPT['prog']: pro += op_DMA('K', 9, None) + op_DMA('V', 8, None)
    else:
        pro += op_QD(1, f's_add_u32 m0, s{sPA}, 4096')
        pro += op_QD(2, f's_add_u32 m0, s{sW4k}, {QTMP[2]}')
        if OPT['fo'] != 2: pro += op_QD(3, f's_add_u32 m0, s{sW4k}, {QTMP[3]}')
    pro = padded(pro)
    w(lines(pro))
    w(f'''    ; remaining setup under the load latency
    s_mov_b32 s{sK}, s58
    s_mov_b32 s{sK+1}, s59
    s_mov_b32 s{sK+2}, {KBYTES}
    s_mov_b32 s{sK+3}, 0x20000
    s_mov_b32 s{sV}, s60
    s_mov_b32 s{sV+1}, s61
    s_mov_b32 s{sV+2}, {KBYTES}
    s_mov_b32 s{sV+3}, 0x20000
    s_mov_b32 s{sO}, s62
    s_mov_b32 s{sO+1}, s63
    s_mov_b32 s{sO+2}, {QBYTES}
    s_mov_b32 s{sO+3}, 0x20000
    s_mov_b32 s{sOP}, s62
    s_mov_b32 s{sOP+1}, s63
    s_mov_b32 s{sOP+3}, 0x20000
    s_mov_b32 s{sOo[0]}, 0
    s_mov_b32 s{sOo[1]}, 0
    v_sub_u32 v30, 0, v26
    v_and_b32 v30, 3, v30                 ; f(i/4)
    v_xor_b32 v30, v30, v23
    v_lshlrev_b32 v30, 4, v30
    v_lshl_add_u32 v30, v27, 6, v30
    v_lshl_add_u32 v{vKa}, v26, 10, v30
    v_add_u32 v{vQa}, s{sPA}, v{vKa}
    v_lshlrev_b32 v30, 10, v23
    v_lshl_add_u32 v30, v26, 6, v30
    v_lshl_add_u32 v30, v27, 4, v30
    v_add_u32 v{vVa}, {VBASE}, v30
{'    v_and_b32 v30, 16, v21' + chr(10) + '    v_lshrrev_b32 v30, 1, v30' + chr(10) + f'    v_add_u32 v{vVa}, v{vVa}, v30' if 'conf' in OPT['abl'] else ''}
    ; O staging: write addr = PA + i*128 + ((g ^ (i&7))*16); read addr = PA + lane*16; store lane part = (l/8)*256 + ((l%8)^(l/8))*16
    v_and_b32 v30, 7, v21
    v_xor_b32 v31, v30, v23
    v_lshlrev_b32 v31, 4, v31
    v_lshl_add_u32 v31, v22, 7, v31
    v_add_u32 v{vWr[0]}, s{sPA}, v31
    v_xor_b32 v{vWr[1]}, 64, v{vWr[0]}
    v_lshlrev_b32 v31, 4, v21
    v_add_u32 v{vRd}, s{sPA}, v31
    v_lshrrev_b32 v31, 3, v21
    v_xor_b32 v30, v30, v31
    v_lshlrev_b32 v30, 4, v30
    v_lshl_add_u32 v{vOlo}, v31, 8, v30
    v_add_u32 v{vOhi}, s46, v{vOlo}
    v_mov_b32 v30, s47
    v_cmp_lt_u32 vcc, 31, v21
    v_mov_b32 v31, 0x3f803f80
    s_mov_b32 s{sC}, {hex(f32(CSCALE))}
    v_cndmask_b32 v{vBias}, 0, v30, vcc
    s_mov_b32 s{sNC}, {hex(f32(-CSCALE))}
    s_mov_b32 s{sThr}, {hex(f32(2.0**64) if not OPT['force_slow'] else f32(-1.0))}
    s_mov_b32 s{sB}, -1
    s_mov_b32 s{sFlag}, 0
    s_mov_b64 s[{sCmp[0]}:{sCmp[0]+1}], 0
    s_mov_b64 s[{sCmp[1]}:{sCmp[1]+1}], 0
    s_mov_b64 s[{sCmp[2]}:{sCmp[2]+1}], 0
    s_mov_b64 s[{sCmp[3]}:{sCmp[3]+1}], 0
    v_accvgpr_write_b32 a{ONES}, v31
    v_accvgpr_write_b32 a{ONES+1}, v31
    v_accvgpr_write_b32 a{ONES+2}, v31
    v_accvgpr_write_b32 a{ONES+3}, v31
    v_add_u32 v{vX0}, s{sW4k}, v{vKa}
    v_add_u32 v{vX1}, {VBASE}, v{vX0}
    ; scale/selection matrices: lane (g,i) is live iff g == i/4; element i%4 of a 4-element half
    v_and_b32 v30, 1, v21
    v_lshlrev_b32 v30, 4, v30
    v_mov_b32 v31, {CHI}
    v_mov_b32 v28, {CLO}
    v_lshlrev_b32 v31, v30, v31
    v_lshlrev_b32 v28, v30, v28
    v_lshrrev_b32 v30, 1, v22             ; i/2
    v_lshlrev_b32 v29, 1, v23             ; 2g
    v_cmp_eq_u32 vcc, v30, v29
    v_add_u32 v29, 1, v29
    v_accvgpr_write_b32 a{SEL}, 0
    v_cndmask_b32 v24, 0, v31, vcc
    v_cndmask_b32 v25, 0, v28, vcc
    v_cmp_eq_u32 vcc, v30, v29
    v_accvgpr_write_b32 a{SEL+2}, v24
    v_accvgpr_write_b32 a{SEL+6}, v25
    v_cndmask_b32 v24, 0, v31, vcc
    v_cndmask_b32 v25, 0, v28, vcc
    v_accvgpr_write_b32 a{SEL+1}, 0
    v_accvgpr_write_b32 a{SEL+4}, 0
    v_accvgpr_write_b32 a{SEL+5}, 0
    v_accvgpr_write_b32 a{SEL+8}, 0
    v_accvgpr_write_b32 a{SEL+9}, 0
    v_accvgpr_write_b32 a{SEL+3}, v24
    v_accvgpr_write_b32 a{SEL+7}, v25
''')
    w(f'    s_mov_b32 s56, s{sQn[1]}\n    s_mov_b32 s57, s{sQn[2]}\n    s_mov_b32 s58, s{sQn[3]}\n')
    w(lines(op_UPD()))
    stamp = lambda i: [Op('salu', f's_memtime s[{78+2*i}:{79+2*i}]')] if OPT['debug'] else []
    qr = [op_QR(0, Q, vQa, 0, 'x'), op_QR(1, Q, vQa, 4096, 'x'), op_QR(2, Q, vX1, 3*16384, 'x'), op_QR(3, Q, vX0, 3*16384, 'x')]
    names = lambda t, *idx: [(t, i, n) for i in idx for n in range(4)]
    F = stamp(0) + [wvm(names('K', 0), 'x', {})] + stamp(1) + [Op('salu', 's_barrier')] + stamp(2)
    F += [Op('ds', f'ds_read_b128 {ar(128 + 16*kt + 4*ks, 4)}, v{vKa} offset:{kt*4096 + ks*256}', name=('RK0', kt, ks)) for kt in range(4) for ks in range(4)]
    if OPT['fo'] == 2:
        F += padded(op_QD(3, f's_add_u32 m0, s{sW4k}, {QTMP[3]}', so=58))
        fd = [op_DMA('K', 1, None), op_DMA('V', 0, None), op_DMA('K', 2, None), op_DMA('V', 1, None)]
    else:
        F += padded(op_DMA('K', 1, None))
        fd = [op_DMA('V', 0, None), op_DMA('K', 2, None), op_DMA('V', 1, None), op_DMA('K', 3, None) + op_DMA('V', 2, None)]
    for qt in range(0 if OPT['prog'] else 4):
        F += [wvm(names('Q', qt), 'x', {})] + stamp(3 + qt)
        sched.RESERVE = 24
        sg, stats = schedule(seg_first(qt, qr[qt], fd[qt] if OPT['fo'] == 2 else None), OPT['ds_lead'], OPT['ds_lat'], 1)
        print('F', qt, stats, file=sys.stderr)
        F += sg + (stamp(7) if qt == 3 else []) + (padded(fd[qt]) if OPT['fo'] != 2 else [])
    F += [wvm(names('K', 1) + names('V', 0), 'x', {}), Op('bar', 's_barrier')] + op_RK(4)
    if OPT['fo'] == 2: F += padded(op_DMA('K', 3, None) + op_DMA('V', 2, None))
    cut = 0
    if OPT['prog']:
        A_ = segs['A']
        cut = next(i for i, o in enumerate(A_) if o.kind == 'bar') + 1
        done = set(o.name for o in A_[:cut] if o.name)
        nmf = sum(o.kind == 'mfma' for o in A_[:cut])
        assert nmf == 3*34 + 16, nmf
        assert all(('sm', 3, q, j) in done for q in range(4) for j in range(6))
        assert all(x in done for x in names('K', 4) + names('V', 3) + names('Q', 0))
        assert not any(x in done for x in names('K', 5) + names('V', 4) + names('Q', 1))
        def sch(f):
            sg = Seg(); f(sg)
            sched.RESERVE = 24
            r_, stats = schedule(sg.ops, OPT['ds_lead'], OPT['ds_lat'], 1)
            print('F', stats, file=sys.stderr)
            return r_
        qr[3] = op_QR(3, Q, vQa, 0, 'x')
        D_ = lambda *x: padded(op_DMA(*x, None))
        F = stamp(0) + [wvm(names('K', 0), 'x', {}), Op('salu', 's_barrier')] + stamp(1)
        F += [Op('ds', f'ds_read_b128 {ar(128 + 16*kt + 4*ks, 4)}, v{vKa} offset:{kt*4096 + ks*256}', W=rng('a', 128 + 16*kt + 4*ks, 4), name=('RK0', kt, ks)) for kt in range(4) for ks in range(4)]
        F += padded(op_QD(1, f's_add_u32 m0, s{sPA}, 4096', so=56)) + [wvm(names('Q', 0), 'x', {})] + stamp(2)
        F += sch(lambda sg: prog1(sg, 0, qr[0], op_QD(2, f's_add_u32 m0, s{sW4k}, {QTMP[2]}', so=57)))
        F += [wvm(names('K', 1) + names('V', 0), 'x', {})] + padded(op_QD(3, f's_add_u32 m0, s{sPA}, 0', so=58)) + [Op('salu', 's_barrier')] + stamp(3)
        def two(sg):
            j = 0
            for kt in range(4):
                rd = [Op('ds', f'ds_read_b128 {ar(K1F(kt, ks), 4)}, v{vKa} offset:{16384 + kt*4096 + ks*256}', W=rng('a', K1F(kt, ks), 4), name=('RK1', kt, ks)) for ks in range(4)]
                for o in rd: o.due = [-30, -29, -28, 5][kt]
                sg.add(rd); sg.add([wlg(rd, f'wk{kt}')])
            for u in range(3):
                rd = []
                for Tb in range(2):
                    for h in range(2):
                        for jh in range(2):
                            p_, d_ = V0F(u, Tb, h)
                            rd.append(Op('ds', f'ds_read_b64_tr_b16 {p_}[{d_+2*jh}:{d_+2*jh+1}], v{vVa} offset:{h*8192 + jh*4096 + u*256 + Tb*8}', W=rng(p_, d_ + 2*jh, 2), name=('RV0', u, Tb, h, jh)))
                for o in rd: o.due = [-10, 0, 10][u]
                sg.add(rd); sg.add([wlg(rd, f'wv{u}')])
            prog2(sg, 0, done, True)
            sg.spread(op_DMA('K', 2, None), 14, 28)
        F += sch(two)
        for qt, nxt in ((1, ('V', 1)), (2, ('K', 3)), (3, ('V', 2))):
            F += [wvm(names('Q', qt), 'x', {})] + stamp(3 + qt)
            def both(sg):
                prog1(sg, qt, qr[qt], op_DMA(*nxt, None)); prog2(sg, qt, done)
                if qt == 3:
                    rv = op_RV(3)
                    for o in rv: o.R = o.R[:1]
                    sg.add(rv)
                    sg.spread(op_DMA('K', 4, None) + op_DMA('V', 3, None) + op_QD(0, f's_add_u32 m0, s{sPA}, 0', 'wq'), OPT['pl'], 60)
            F += sch(both)
        F += stamp(7)
        for r_ in ('m0', f's{sTK}', f's{sTV}'):
            F.append(next(o for o in reversed(A_[:cut]) if r_ in o.W))
        F += [Op('salu', 's_waitcnt lgkmcnt(0)'), wvm(names('K', 2) + names('V', 1), 'x', {}), Op('bar', 's_barrier')]
    segs['F'] = F
    sq = [pro, segs['F'], segs['A'][cut:], segs['B']] + [segs['A'], segs['B']] * 2 + [segs['A'], segs['D']]
    r = resolve_waits(sq)
    print([(o.text, l) for o, l in r.items() if o.kind == 'wvm'], file=sys.stderr)
    if OPT['debug']:
        w('''    s_load_dwordx2 s[60:61], s[0:1], 40
    s_mov_b32 s62, 0x1000000
    s_mov_b32 s63, 0x20000
    s_lshl_b32 s59, s2, 14
    s_add_u32 s59, s59, s39
    s_lshr_b32 s59, s59, 3
    v_lshlrev_b32 v39, 2, v21
    s_waitcnt lgkmcnt(0)
''')
    if 'rs' in OPT['abl']:
        segs['A'] = [o if not (o.kind == 'mfma' and o.text.split()[1].startswith('a[')) else Op('salu', 's_nop 0') for o in segs['A']]
    if 'dma' in OPT['abl']:
        for sg in 'AB':
            segs[sg] = [o if not (o.kind == 'dma' and o.name[0] in 'KV') else Op('salu', 's_nop 0') for o in segs[sg]]
    if 'ds' in OPT['abl'].split():
        for sg in 'AB':
            segs[sg] = [o if not (o.kind == 'ds' and o.name[0] in ('RK', 'RV')) else Op('salu', 's_nop 0') for o in segs[sg]]
    upd = 'L_next:\n' + ('' if OPT['updin'] else lines(op_UPD()))
    pad = lambda n: [Op('salu', 'x') for _ in range(n)]
    bad = check_hazards(segs['F'] + segs['A'][cut:] + pad(2) + segs['B'] + pad(1) + segs['A'] + pad(2) + segs['D'])
    assert bad == 0, bad
    if not OPT['debug']:
        w(lines(segs['F']))
        if cut: w('    s_branch L_cut\n')
        w(upd)
        w(lines(segs['A'][:cut]))
        w('L_cut:\n')
        w(lines(segs['A'][cut:]))
        w(f'    s_cmp_eq_u32 s{sB}, 3\n    s_cbranch_scc1 L_final\n')
        w(lines(segs['B']))
        w('    s_branch L_next\nL_final:\n')
        w(lines(segs['D']))
    else:
        w(dbg_lines(segs['F'], 8)[0]); w(DUMP)
        if cut: w('    s_memtime s[78:79]\n    s_memrealtime s[98:99]\n    s_memtime s[80:81]\n    s_branch L_cut\n')
        w(upd)
        w('    s_memtime s[78:79]\n    s_memrealtime s[98:99]\n')
        t1, n1 = dbg_lines(segs['A'][:cut], 1)
        w(t1 + 'L_cut:\n')
        w(dbg_lines(segs['A'][cut:], n1)[0])
        w(f'    s_cmp_eq_u32 s{sB}, 3\n    s_cbranch_scc1 L_final\n')
        w(dbg_lines(segs['B'], 8)[0]); w(DUMP)
        w('    s_branch L_next\nL_final:\n')
        w(lines(segs['D'])); w('    s_memtime s[94:95]\n'); w(DUMP)
        w('''    s_waitcnt vmcnt(0)
    s_memtime s[78:79]
    s_memrealtime s[98:99]
    s_waitcnt lgkmcnt(0)
    v_mov_b32 v36, s78
    v_mov_b32 v37, s98
    v_mov_b32 v38, s100
    v_mov_b32 v39, s67
    s_mov_b64 exec, 1
    buffer_store_dwordx4 v[36:39], off, s[60:63], s59
    s_mov_b64 exec, -1
''')
    w(f'''    s_or_b64 s[{sCmp[0]}:{sCmp[0]+1}], s[{sCmp[0]}:{sCmp[0]+1}], s[{sCmp[1]}:{sCmp[1]+1}]
    s_or_b64 s[{sCmp[2]}:{sCmp[2]+1}], s[{sCmp[2]}:{sCmp[2]+1}], s[{sCmp[3]}:{sCmp[3]+1}]
    s_or_b64 s[{sCmp[0]}:{sCmp[0]+1}], s[{sCmp[0]}:{sCmp[0]+1}], s[{sCmp[2]}:{sCmp[2]+1}]
    s_cselect_b32 s42, 8, 0
    s_or_b32 s{sFlag}, s{sFlag}, s42
''')
    w(slow_path())
    w(f'''L_end:
    s_endpgm
.section .rodata,"a"
.p2align 6
.amdhsa_kernel {NAME}
  .amdhsa_next_free_vgpr 512
  .amdhsa_next_free_sgpr {102 if OPT['debug'] else 96}
  .amdhsa_accum_offset 256
  .amdhsa_group_segment_fixed_size 0
  .amdhsa_kernarg_size 48
  .amdhsa_user_sgpr_count 2
  .amdhsa_user_sgpr_kernarg_segment_ptr 1
  .amdhsa_system_sgpr_workgroup_id_x 1
.end_amdhsa_kernel
''')
    open(sys.argv[1], 'w').write(''.join(A))

def slow_path():
    raw = lambda t: Op('salu', t)
    T = []
    w = T.append
    sPair, sKoff, sJ = 56, 57, 58
    vF, vFh, vTr = 36, 37, 38
    w(f'''    s_cmp_eq_u32 s{sFlag}, 0
    s_cbranch_scc1 L_end
    s_waitcnt vmcnt(0) lgkmcnt(0)
    s_mov_b32 s{sQ+2}, {QBYTES}
    s_sub_u32 s42, s{sPA}, {VBASE}
    v_add_u32 v{vTr}, s42, v{vVa}
    v_and_b32 v20, 15, v0
    v_bfe_u32 v21, v0, 4, 2
    v_lshlrev_b32 v20, 8, v20
    v_lshl_add_u32 v{vF}, v21, 4, v20
    v_add_u32 v{vFh}, s46, v{vF}
    s_mov_b32 s{sB}, 0
L_slow_blk:
    s_lshr_b32 s42, s{sFlag}, s{sB}
    s_and_b32 s42, s42, 1
    s_cmp_eq_u32 s42, 0
    s_cbranch_scc1 L_slow_next
    s_mul_i32 s42, s{sB}, {OPT['pst']}
    s_add_u32 s{sPair}, s43, s42
    s_mul_i32 s42, s{sPair}, {PAIRQ}
    s_lshl_b32 s45, s44, 16
    s_add_u32 s42, s42, s45
    s_lshl_b32 s45, s{sW4k}, 2
    s_add_u32 s{sOo[0]}, s42, s45
    s_add_u32 s{sOo[1]}, s{sOo[0]}, 4096
''')
    for qt in range(4):
        for ks in range(4):
            w(f'    buffer_load_dwordx4 {ar(Q(qt,ks),4)}, v{vF if qt < 2 else vFh}, {srd(sQ)}, s{sOo[qt%2]} offen offset:{ks*64}\n')
    for qt in range(4): w(f'    v_mov_b32 v{vT[qt]}, 0xff800000\n')
    w(f'''    s_lshl_b32 s{sKoff}, s{sPair}, 17
    s_mov_b32 s{sJ}, 0
L_slow_p1:
''')
    def kload(buf):
        return [raw(f'buffer_load_dwordx4 {ar(KF(buf,ks),4)}, v{vF}, {srd(sK)}, s{sKoff} offen offset:{ks*64}') for ks in range(4)]
    w(lines(kload(0)))
    w('    s_waitcnt vmcnt(0)\n')
    l = op_QK(0, True)
    for qt in range(4):
        s = S(0, qt)
        l.append(valu(f'v_max3_f32 v{vT[qt]}, v{s}, v{s+1}, v{vT[qt]}', [f'v{s}', f'v{s+1}', f'v{vT[qt]}'], [f'v{vT[qt]}']))
        l.append(valu(f'v_max3_f32 v{vT[qt]}, v{s+2}, v{s+3}, v{vT[qt]}', [f'v{s+2}', f'v{s+3}', f'v{vT[qt]}'], [f'v{vT[qt]}']))
    w(lines(padded(l)))
    w(f'''    s_add_u32 s{sKoff}, s{sKoff}, 4096
    s_add_u32 s{sJ}, s{sJ}, 1
    s_cmp_lt_u32 s{sJ}, 32
    s_cbranch_scc1 L_slow_p1
''')
    w(lines(padded(op_reduce(True))))
    for i in range(128): w(f'    v_mov_b32 v{128+i}, 0\n')
    for i in range(16): w(f'    v_accvgpr_write_b32 a{RS(0)+i}, 0\n')
    w(f'''    s_lshl_b32 s{sKoff}, s{sPair}, 17
    s_mov_b32 s{sJ}, 0
L_slow_p2:
''')
    w(f'    s_mov_b32 m0, s{sPA}\n    s_nop 0\n')
    for n in range(4): w(f'    buffer_load_dwordx4 v{vKd[0]}, {srd(sV)}, s{sKoff} offen offset:{n*1024} lds\n')
    w(lines(kload(0)))
    w(f'    s_add_u32 s{sKoff}, s{sKoff}, 4096\n    s_add_u32 m0, s{sPA}, 4096\n    s_nop 0\n')
    for n in range(4): w(f'    buffer_load_dwordx4 v{vKd[0]}, {srd(sV)}, s{sKoff} offen offset:{n*1024} lds\n')
    w(lines(kload(1)))
    w(f'    s_add_u32 s{sKoff}, s{sKoff}, 4096\n    s_waitcnt vmcnt(0)\n')
    l = op_QK(0, True) + op_SM(0, True) + op_QK(1, True) + op_SM(1, True)
    for qt in range(4): l.append(mfma('a', RS(qt), 'a', ONES, 'v', P(0, 0, qt), False))
    w(lines(padded(l)))
    for u in range(4):
        for Tb in range(2):
            for jh in range(2):
                d = VF(0, Tb, 0) + 2*jh
                w(f'    ds_read_b64_tr_b16 {ar(d,2)}, v{vTr} offset:{jh*4096 + u*256 + Tb*8}\n')
        w('    s_waitcnt lgkmcnt(0)\n')
        for Tb in range(2):
            for qt in range(4):
                w('    ' + mfma('v', O(2*u+Tb, qt), 'a', VF(0, Tb, 0), 'v', P(0, 0, qt), False).text + '\n')
        w('    s_nop 7\n')
    w(f'''    s_add_u32 s{sJ}, s{sJ}, 1
    s_cmp_lt_u32 s{sJ}, 16
    s_cbranch_scc1 L_slow_p2
    s_nop 7
''')
    l = op_L()
    for u in range(4):
        l += op_EPI(u)
        if u % 2: l += op_OUT(u // 2)
    for o in l:
        if o.kind == 'wlg': o.text = 's_waitcnt lgkmcnt(0)'
    w(lines(padded(l)))
    w(f'''    s_waitcnt vmcnt(0)
L_slow_next:
    s_add_u32 s{sB}, s{sB}, 1
    s_cmp_lt_u32 s{sB}, 4
    s_cbranch_scc1 L_slow_blk
''')
    return ''.join(T)

main()
```

```python
import sys, struct, math
import sched
from sched import *

OPT = dict(store_flags='nt', ds_lead=8, ds_lat=120, vm_space=3, debug=0, force_slow=0, q_flags='nt', kv_flags='nt',
           ds_sp=4, vshift=0, st_lo=10, st_hi=900, last_flags='nt', epi_len=20, warm=1, abl='', bou=1, pk=0, vmc=12, stc=20, vm_due=4, pkf=1, pkd=4, vm_sp=0, updin=1, fo=0, pst=1, strict=1, barx=1, qsp=0, stb=0, smq=3, q4=1, fraw=1, prog=1, pl=24, early=0, res=40, resd=40, bord='P0.R.V0.V1.P1.V2.P2.P3.K0.V3.K1.K2.K3', nopw=6, finq=1, fin_len=18, fin_st=4)
for a in sys.argv[2:]:
    k, v = a.split('=')
    OPT[k] = int(v) if v.lstrip('-').isdigit() else v.replace('+', ' ')

sched.STRICT1 = OPT['strict']; sched.RESERVE = OPT['res']; sched.BAR_EXCL = OPT['barx']; sched.VM_COST = OPT['vmc']; sched.ST_COST = OPT['stc']
NAME = 'standalone__gqa_softmax__near_ridge_kernel'
def bf16(x):
    u = struct.unpack('<I', struct.pack('<f', x))[0]
    return (u + 0x7fff + ((u >> 16) & 1)) >> 16
def unbf(h): return struct.unpack('<f', struct.pack('<I', h << 16))[0]
def f32(x): return struct.unpack('<I', struct.pack('<f', x))[0]
CSCALE = math.log2(math.e) / math.sqrt(128.0)
CHI = bf16(CSCALE); CLO = bf16(CSCALE - unbf(CHI))
QBYTES = 16*32*496*128*2
KBYTES = 16*16*512*128*2
PAIRQ = 992*256
PAIRK = 512*256

vKa, vVa, vOlo, vOhi = 1, 2, 3, 4
vKd = [5, 6, 7, 8]
vQa = 9
vBias = 10
vRd = 11
vWr = [12, 13]
vRL = [14, 15, 16, 17]
vNM = [20, 24, 28, 32]
vT = [21, 25, 29, 33]
vX0, vX1, vD0, vD1 = 36, 37, 38, 39
def S(buf, qt): return 40 + 4*qt if qt < 2 else 48 + 8*(qt - 2) + 4*buf
def P(par, h, qt): return 64 + 32*par + 16*h + 4*qt
def O(T, qt): return 128 + 16*T + 4*qt
def Q(qt, ks): return 16*qt + 4*ks
def QN(qt, ks): return 64 + 16*qt + 4*ks
def KF(buf, ks): return 128 + 16*buf + 4*ks
def VF(buf, Tb, h): return 160 + 16*buf + 8*Tb + 4*h
def RS(qt): return 192 + 4*qt
ONES = 208
SEL = 244
def OST(R, n): return (96 if R == 0 else 212) + 4*n
sQ, sK, sV, sO, sKn, sVn, sQB = 4, 8, 12, 16, 20, 24, 68
sKV, sKVn = 28, 29
sQn = [30, 31, 64, 65]
sOo = [32, 33]
sC, sNC, sThr, sB, sFlag, sW4k = 34, 35, 36, 37, 38, 39
sTK, sTV = 40, 41
sCmp = [48, 50, 52, 54]
sOP = 72
sOp = [76, 77]
sPA = 66
VBASE = 65536

def vr(a, n): return f'v[{a}:{a+n-1}]'
def ar(a, n): return f'a[{a}:{a+n-1}]'
def srd(a): return f's[{a}:{a+3}]'

def mfma(dp, d, ap, a, bp, b, zero, cin=None):
    cr = d if cin is None else cin
    zero = zero and cin is None
    c = '0' if zero else f'{dp}[{cr}:{cr+3}]'
    D = rng(dp, d, 4); C = [] if zero else rng(dp, cr, 4)
    return Op('mfma', f'v_mfma_f32_16x16x32_bf16 {dp}[{d}:{d+3}], {ap}[{a}:{a+3}], {bp}[{b}:{b+3}], {c}',
              R=rng(ap, a, 4) + rng(bp, b, 4) + C, W=D, C=C)
def valu(text, R, W, kind='valu', **kw): return Op(kind, text, R=R, W=W, **kw)

def op_RK(a):
    tile, kt = divmod(a, 4)
    slot = tile % 4
    l = []
    for ks in range(4):
        d = KF(a % 2, ks)
        l.append(Op('ds', f'ds_read_b128 {ar(d,4)}, v{vKa} offset:{slot*16384 + kt*4096 + ks*256}',
                    R=[f'v{vKa}', f'Krdy{tile}'], W=rng('a', d, 4), name=('RK', a % 32, ks)))
    return l
def op_RV(b):
    tile, u = divmod(b, 4)
    slot = tile % 4
    l = []
    for Tb in range(2):
        for h in range(2):
            for jh in range(2):
                d = VF(b % 2, Tb, h) + 2*jh
                off = slot*16384 + h*8192 + jh*4096 + u*256 + Tb*8
                l.append(Op('ds', f'ds_read_b64_tr_b16 {ar(d,2)}, v{vVa} offset:{off}',
                            R=[f'v{vVa}', f'Vrdy{tile}'], W=rng('a', d, 2), name=('RV', b % 32, Tb, h, jh)))
    return l
def op_QK(a, raw=False):
    l = []
    for qt in ([2, 3, 0, 1] if (a == 4 and OPT['q4'] and not raw) else range(4)):
        for i in range(4):
            ks = 3 - i if (OPT['bou'] and qt % 2) else i
            l.append(mfma('v', S(a % 2, qt), 'a', KF(a % 2, ks), 'a', Q(qt, ks), i == 0, vNM[qt] if (i == 0 and a % 32 and not raw) else None))
    return l
def op_PV(b):
    t, u = divmod(b, 4)
    l = []
    for Tb in range(2):
        for qt in range(4):
            for i in range(2):
                h = 1 - i if (OPT['bou'] and qt % 2) else i
                l.append(mfma('v', O(2*u+Tb, qt), 'a', VF(b % 2, Tb, h), 'v', P(t % 2, h, qt), t == 0 and i == 0))
    return l
def op_RS(t, qt):
    return [mfma('a', RS(qt), 'a', ONES, 'v', P(t % 2, h, qt), t == 0 and h == 0) for h in range(2)]
def op_SM(a, raw=False):
    t, kt = divmod(a, 4)
    l = []
    for qt in range(4):
        s = S(a % 2, qt)
        for r in range(4):
            if raw: l.append(valu(f'v_fma_f32 v{s+r}, v{s+r}, s{sC}, v{vNM[qt]}', [f'v{s+r}', f'v{vNM[qt]}'], [f'v{s+r}']))
            elif a == 0: l.append(valu(f'v_add_f32 v{s+r}, v{s+r}, v{vNM[qt]}', [f'v{s+r}', f'v{vNM[qt]}'], [f'v{s+r}']))
        for r in range(4):
            l.append(valu(f'v_exp_f32 v{s+r}, v{s+r}', [f'v{s+r}'], [f'v{s+r}'], kind='trans', name=('sm', a, qt, r)))
        p = P(t % 2, kt // 2, qt) + 2*(kt % 2)
        for i in range(2):
            l.append(valu(f'v_cvt_pk_bf16_f32 v{p+i}, v{s+2*i}, v{s+2*i+1}', [f'v{s+2*i}', f'v{s+2*i+1}'], [f'v{p+i}'], name=('sm', a, qt, 4 + i)))
    return l
def op_PS(qt, src, tmp, ntmp=4):
    l = []
    for ks in range(4):
        t = tmp + 8*(ks % ntmp)
        for x in range(2):
            l.append(mfma('v', t + 4*x, 'a', SEL + 2 - 2*x, 'a', src(qt, ks), True))
            l.append(mfma('v', t + 4*x, 'a', SEL + 6 - 2*x, 'a', src(qt, ks), False))
        for i in range(4):
            l.append(valu(f'v_cvt_pk_bf16_f32 v{t+2*i}, v{t+2*i}, v{t+2*i+1}', [f'v{t+2*i}', f'v{t+2*i+1}'], [f'v{t+2*i}']))
            l.append(valu(f'v_accvgpr_write_b32 a{Q(qt,ks)+i}, v{t+2*i}', [f'v{t+2*i}'], [f'a{Q(qt,ks)+i}']))
    return l
def perm(n, a, b): return valu(f'v_permlane{n}_swap_b32 v{a}, v{b}', [f'v{a}', f'v{b}'], [f'v{a}', f'v{b}'], kind='perm')
def op_reduce(raw=False):
    t = vT; n = vNM
    mx = lambda d, a, b: valu(f'v_max_f32 v{d}, v{a}, v{b}', [f'v{a}', f'v{b}'], [f'v{d}'])
    mv = lambda d, a: valu(f'v_mov_b32 v{d}, v{a}', [f'v{a}'], [f'v{d}'])
    return [perm(16, t[0], t[1]), perm(16, t[2], t[3]), mx(t[0], t[0], t[1]), mx(t[2], t[2], t[3]),
            perm(32, t[0], t[2]), mx(t[0], t[0], t[2]),
            valu(f'v_fma_f32 v{n[0]}, v{t[0]}, s{sNC}, v{vBias}' if raw else f'v_sub_f32 v{n[0]}, v{vBias}, v{t[0]}', [f'v{t[0]}', f'v{vBias}'], [f'v{n[0]}']),
            mv(n[2], n[0]), perm(32, n[0], n[2]), mv(n[1], n[0]), mv(n[3], n[2]),
            perm(16, n[0], n[1]), perm(16, n[2], n[3])] + ([] if raw else [mv(n[q] + i, n[q]) for q in range(4) for i in range(1, 4)])
def op_MAX():
    l = []
    for qt in range(4):
        s = S(0, qt)
        l.append(valu(f'v_max3_f32 v{vT[qt]}, v{s}, v{s+1}, v{s+2}', rng('v', s, 3), [f'v{vT[qt]}']))
        l.append(valu(f'v_max_f32 v{vT[qt]}, v{vT[qt]}, v{s+3}', [f'v{vT[qt]}', f'v{s+3}'], [f'v{vT[qt]}']))
    return l + op_reduce()
def op_DMA(which, tile, bar):
    slot = tile % 4
    nxt = tile >= 8
    base = sKVn if nxt else sKV
    st = sTK if which == 'K' else sTV
    d = (sKn if nxt else sK) if which == 'K' else (sVn if nxt else sV)
    l = [Op('salu', f's_add_u32 s{st}, s{base}, {(tile % 8)*16384}', R=[f's{base}'], W=[f's{st}', 'scc']),
         Op('salu', f's_add_u32 m0, s{sW4k}, {slot*16384 + (VBASE if which == "V" else 0)}', R=[], W=['m0', 'scc'])]
    for n in range(4):
        va = vKd[n] if which == 'K' else vKd[0]
        l.append(Op('dma', f'buffer_load_dwordx4 v{va}, {srd(d)}, s{st} offen offset:{n*1024} {OPT["kv_flags"]} lds',
                    R=[f'v{va}', f's{st}', 'm0', 'srdn'] + ([bar] if bar else []), W=[], name=(which, tile % 8, n)))
    return l
def op_QD(qt, m0txt, dep=None, so=None):
    l = [Op('salu', m0txt, R=[], W=['m0', 'scc'])]
    so = sQn[qt] if so is None else so
    for n in range(4):
        l.append(Op('dma', f'buffer_load_dwordx4 v{vKd[n]}, {srd(sQ if qt < 2 else sQB)}, s{so} offen offset:{n*1024} {OPT["q_flags"]} lds',
                    R=[f'v{vKd[n]}', f's{so}', 'm0'] + ([dep] if dep else []), W=[], name=('Q', qt, n)))
    return l
def op_QR(qt, dst, va, off, dep):
    return [Op('ds', f'ds_read_b128 {ar(dst(qt,ks),4)}, v{va} offset:{off + ks*256}',
               R=[f'v{va}', dep, 'PA'], W=rng('a', dst(qt, ks), 4), name=('QR', qt, ks)) for ks in range(4)]
def op_L():
    l = []
    for qt in range(4):
        r = vRL[qt]
        l.append(valu(f'v_accvgpr_read_b32 v{r}, a{RS(qt)}', [f'a{RS(qt)}'], [f'v{r}']))
        l.append(valu(f'v_cmp_nge_f32 s[{sCmp[qt]}:{sCmp[qt]+1}], s{sThr}, v{r}', [f'v{r}'], [f's{sCmp[qt]}']))
        l.append(valu(f'v_rcp_f32 v{r}, v{r}', [f'v{r}'], [f'v{r}'], kind='trans'))
    return l
def op_EPI(u):
    l = []
    for qt in range(4):
        a, b = O(2*u, qt), O(2*u+1, qt)
        for x in list(range(a, a+4)) + list(range(b, b+4)):
            l.append(valu(f'v_mul_f32 v{x}, v{x}, v{vRL[qt]}', [f'v{x}', f'v{vRL[qt]}'], [f'v{x}']))
        for i, x in enumerate([a, a+2, b, b+2]):
            l.append(valu(f'v_cvt_pk_bf16_f32 v{a+i}, v{x}, v{x+1}', [f'v{x}', f'v{x+1}'], [f'v{a+i}']))
        l.append(Op('ds', f'ds_write_b128 v{vWr[u%2]}, {vr(a,4)} offset:{qt*2048}',
                    R=rng('v', a, 4) + [f'v{vWr[u%2]}', 'PAw'], W=[f'PA{qt}_{u%2}'], name=('OW', u, qt)))
    return l
def op_OR(R, half):
    return [Op('ds', f'ds_read_b128 {ar(OST(R,n),4)}, v{vRd} offset:{n*1024}',
               R=[f'v{vRd}', f'PA{n//2}_0', f'PA{n//2}_1'], W=rng('a', OST(R, n), 4), name=('OR', R, n)) for n in range(4*half, 4*half+4)]
def op_ST(R, half, dep, prev):
    l = []
    for n in range(4*half, 4*half+4):
        va = vOlo if n < 4 else vOhi
        so = (sOp if prev else sOo)[(n//2) % 2]
        l.append(Op('vst', f'buffer_store_dwordx4 {ar(OST(R,n),4)}, v{va}, {srd(sOP if prev else sO)}, s{so} offen offset:{(n%2)*2048 + R*128} {OPT["store_flags" if prev else "last_flags"]}'.rstrip(),
                    R=rng('a', OST(R, n), 4) + [f'v{va}', f's{so}', dep], W=[], name=('O', R, n)))
    return l
def op_OUT(R):
    l = []
    for half in range(2):
        rd = op_OR(R, half)
        l += rd + [wlg(rd, f'wO{R}_{half}')] + op_ST(R, half, f'wO{R}_{half}', False)
    return l
def wlg(targets, tag, prev=None):
    o = Op('wlg', None, W=[tag], targets=targets)
    o.prev_targets = [t.name for t in targets] if prev is None else prev
    return o
def wvm(names, tag, byname):
    o = Op('wvm', None, W=[tag], targets=[byname[x] for x in names if x in byname])
    o.prev_targets = names
    return o

def op_UPD():
    sa = lambda t, R, W: Op('salu', t, R=R, W=W)
    c = [f's{x}' for x in sCmp]
    p = lambda x: f's[{x}:{x+1}]'
    l = [sa(f's_or_b64 {p(sCmp[0])}, {p(sCmp[0])}, {p(sCmp[1])}', [c[0], c[1]], [c[0], 'scc']),
         sa(f's_or_b64 {p(sCmp[2])}, {p(sCmp[2])}, {p(sCmp[3])}', [c[2], c[3]], [c[2], 'scc']),
         sa(f's_or_b64 {p(sCmp[0])}, {p(sCmp[0])}, {p(sCmp[2])}', [c[0], c[2]], [c[0], 'scc']),
         sa('s_cselect_b32 s42, 1, 0', ['scc'], ['s42']),
         sa(f's_lshl_b32 s42, s42, s{sB}', ['s42', f's{sB}'], ['s42', 'scc']),
         sa(f's_or_b32 s{sFlag}, s{sFlag}, s42', ['s42'], [f's{sFlag}', 'scc']),
         sa(f's_mov_b64 {p(sOp[0])}, {p(sOo[0])}', [f's{sOo[0]}'], [f's{sOp[0]}']),
         sa(f's_mov_b64 {p(sOo[0])}, {p(sQn[0])}', [f's{sQn[0]}', f's{sQn[1]}'], [f's{sOo[0]}', f's{sOo[1]}']),
         sa(f's_mov_b32 s{sKV}, s{sKVn}', [f's{sKVn}'], [f's{sKV}']),
         sa(f's_add_u32 s{sB}, s{sB}, 1', [f's{sB}'], [f's{sB}', 'scc']),
         sa(f's_cselect_b32 s{sOP+2}, 0, {QBYTES}', ['scc'], [f's{sOP+2}']),
         sa(f's_cmp_lt_u32 s{sB}, 3', [f's{sB}'], ['scc']),
         sa(f's_cselect_b32 s42, {OPT["pst"]*PAIRQ}, 0', ['scc'], ['s42']),
         sa(f's_cselect_b32 s45, {OPT["pst"]*PAIRK}, 0', ['scc'], ['s45']),
         sa(f's_cselect_b32 s{sQ+2}, s{sQ+2}, 0', ['scc'], [f's{sQ+2}']),
         sa(f's_cselect_b32 s{sQB+2}, s{sQB+2}, 0', ['scc'], [f's{sQB+2}']),
         sa(f's_cselect_b32 s{sKn+2}, s{sKn+2}, 0', ['scc'], ['srdn']),
         sa(f's_cselect_b32 s{sVn+2}, s{sVn+2}, 0', ['scc'], ['srdn'])]
    l += [sa(f's_add_u32 s{x}, s{x}, s42', ['s42', f's{x}'], [f's{x}', 'scc']) for x in sQn]
    l += [sa(f's_add_u32 s{sKVn}, s{sKVn}, s45', ['s45', f's{sKVn}'], [f's{sKVn}', 'scc'])]
    return l

class Seg:
    def __init__(self):
        self.ops = []; self.nm = 0; self.byname = {}
    def add(self, l, need=None):
        for i, o in enumerate(l):
            if need and i == 0: o.R += need if isinstance(need, list) else [need]
            if o.kind == 'mfma': self.nm += 1
            if o.kind in ('dma', 'vld', 'vst'): self.byname[o.name] = o
            self.ops.append(o)
        return l
    def reads(self, l, tag, at):
        n = len(l)
        for i, o in enumerate(l):
            o.due = at - OPT['ds_lead'] - (n - 1 - i) * OPT['ds_sp']
            o.earliest = o.due - 2
        self.add(l)
        if tag: self.add([wlg(l, tag)])
    def spread(self, l, lo, hi, sp=None):
        mem = [o for o in l if o.kind in MEM_KINDS]
        for i, o in enumerate(mem):
            pos = lo + min(sp or OPT['vm_sp'] or 1000, (hi - lo) / len(mem)) * (i + 0.5)
            o.earliest = int(pos) - 2; o.due = pos + OPT['vm_due']
        for i, o in enumerate(l):
            if o.kind == 'salu':
                nx = next(x for x in l[i:] if x.kind in MEM_KINDS)
                o.earliest = nx.earliest - 6
        self.add(l)
    def barrier(self, nn, pos, waits):
        names = [('K', (nn+1) % 8, i) for i in range(4)] + [('V', nn % 8, i) for i in range(4)]
        wv = wvm(names, f'wvm{nn}', self.byname); wv.earliest = pos - 3
        bo = Op('bar', 's_barrier', R=[f'wvm{nn}'] + waits, W=[f'bar{nn}', f'Krdy{nn+1}', f'Vrdy{nn}'])
        bo.earliest = pos - 1; bo.due = pos + 1
        self.add([wv, bo])

def seg_A():
    g = Seg()
    start = {s: (s - 4) * 34 for s in range(4, 33)}
    barpos = {nn: start[4*nn+3] + 16 for nn in range(1, 8)}
    barpos[0] = -2
    def interval(nn, extra):
        bar = f'bar{nn}' if nn >= 1 else None
        k, v = op_DMA('K', nn + 4, bar), op_DMA('V', nn + 3, bar)
        if OPT['qsp']:
            h = {2: 4, 3: 0}.get(nn, (len(extra) // 2 + 1) // 2 * 2)
            l = k + extra[:h] + v + extra[h:]
        else: l = k + v + extra
        g.spread(l, barpos[nn] + 2, barpos[nn+1] - 6)
    qm0 = lambda j: f's_add_u32 m0, s{sPA}, {4096*j}'
    extras = {0: op_QD(0, qm0(0), 'wK4'), 1: op_QD(1, qm0(1), 'wK4'), 4: op_QD(2, qm0(0), 'wQA'), 5: op_QD(3, qm0(1), 'wQA')}
    if OPT['qsp']:
        def pieces(qts, dep):
            out = []
            for qt in qts:
                for p in op_QD(qt, '', dep)[1:]: out.append([Op('salu', qm0(qt % 2), R=[], W=['m0', 'scc']), p])
            return out
        a, b, c = pieces((0, 1), 'wK4'), pieces((2,), 'wQ0'), pieces((3,), 'wQ1')
        extras = {0: sum(a[:3], []), 1: sum(a[3:6], []), 2: sum(a[6:], []), 3: sum(b[:2], []), 4: sum(b[2:] + c[:1], []), 5: sum(c[1:], [])}
    w = wlg([], 'wK4', prev=[('RK', 4, ks) for ks in range(4)] + [('OR', R, n) for R in range(2) for n in range(8)]); w.due = -1
    g.add([w])
    sts = sum([op_ST(R, hf, 'wK4', True) for hf in range(2) for R in range(OPT['stb'], 2)], [])
    sts.sort(key=lambda o: (o.name[2], o.name[1]))
    g.spread(sts, OPT['st_lo'], OPT['st_hi'], 1000)
    interval(0, extras[0])
    for s in range(4, 32):
        if s > 4: g.reads(op_RK(s), f'wK{s}', start[s])
        g.add(op_SM(s - 1))
        g.add(op_QK(s), f'wK{s}')
        b = s - 4
        g.reads(op_RV(b), f'wV{b}', start[s] + 16)
        if s % 4 == 3: g.barrier(s // 4, barpos[s // 4], [f'wK{s}', f'wV{b}'])
        g.add(op_PV(b), f'wV{b}')
        g.add(op_RS(b // 4, b % 4))
        if s == 17 and not OPT['qsp']:
            wq = wvm([('Q', qt, n) for qt in range(2) for n in range(4)], 'vQA', g.byname); wq.earliest = start[17]
            g.add([wq])
            g.reads(op_QR(0, QN, vQa, 0, 'vQA') + op_QR(1, QN, vQa, 4096, 'vQA'), 'wQA', barpos[4] + 8)
        if s in (15, 19) and OPT['qsp']:
            qt = s // 19
            wq = wvm([('Q', qt, n) for n in range(4)], f'vQ{qt}', g.byname); wq.earliest = start[s + 2] - 4
            g.add([wq])
            g.reads(op_QR(qt, QN, vQa, 4096*qt, f'vQ{qt}'), f'wQ{qt}', start[s + 3] - 4)
        if s % 4 == 3 and s // 4 <= 6: interval(s // 4, extras.get(s // 4, []))
    g.add(op_SM(31)[:6*OPT['smq']])
    g.reads(op_RV(28), None, start[32] + 12)
    return g.ops

def seg_B():
    g = Seg()
    order = [{'R': ('RS', 0), 'V': ('PV', 28 + int(x[1:] or 0)), 'P': ('PS', int(x[1:] or 0)), 'K': ('QK', 32 + int(x[1:] or 0))}[x[0]]
             for x in OPT['bord'].split('.')]
    pos = {}; n = 0
    for k in order:
        pos[k] = n; n += 8 if k[0] == 'RS' else 16
    total = n
    g.add(op_SM(31)[6*OPT['smq']:])
    g.add([wlg([], 'wV28', prev=[o.name for o in op_RV(28)])])
    wq = wvm([('Q', qt, n) for qt in range(2, 4) for n in range(4)], 'vQB', g.byname); wq.due = -5
    g.add([wq])
    g.reads(op_QR(2, Q, vQa, 0, 'vQB') + op_QR(3, Q, vQa, 4096, 'vQB'), 'wQB', min(pos[('PV', 28)] + 24, pos[('PS', 2)]))
    for o in g.ops:
        if o.kind == 'ds': o.earliest = None; o.R.remove('PA'); o.R += [f'PA{q}_{p}' for q in range(4) for p in range(2)]
    barp = pos[('QK', 35)] - 1
    g.spread(op_DMA('K', 11, None) + op_DMA('V', 10, None), 2, barp - 40)
    for k in order:
        if k[0] == 'RS':
            for qt in range(4): g.add(op_RS(7, qt))
            g.add(op_L())
        elif k[0] == 'PS':
            g.add(op_PS(k[1], QN if k[1] < 2 else Q, P(0, 0, 0)), 'wQB' if k[1] == 2 else None)
        elif k[0] == 'PV':
            b = k[1]
            if b > 28: g.reads(op_RV(b), f'wV{b}', pos[k])
            g.add(op_PV(b), f'wV{b}')
            ep = op_EPI(b - 28)
            for i, o in enumerate(ep): o.due = pos[k] + 16 + 4 + OPT['epi_len'] * i / len(ep)
            g.add(ep)
            if b % 2 == 1:
                R = (b - 28) // 2
                out = op_OR(R, 0) + op_OR(R, 1)
                for i, o in enumerate(out): o.due = pos[k] + 16 + 4 + OPT['epi_len'] * (0.5 + 0.5 * i / len(out))
                g.add(out)
                if R == 0 and OPT['stb']:
                    g.add([wlg(out, 'wO0')])
                    st = op_ST(0, 0, 'wO0', False) + op_ST(0, 1, 'wO0', False)
                    for o in st: o.text = o.text.replace(OPT['last_flags'], OPT['store_flags']) if OPT['last_flags'] else o.text + ' ' + OPT['store_flags']
                    g.spread(st, pos[k] + 16 + 4 + OPT['epi_len'] + 10, total - 26, 1000)
        else:
            a = k[1]
            g.reads(op_RK(a), f'wK{a}', pos[k])
            if a > 32: g.add(op_SM(a - 33))
            if a == 35: g.barrier(8, barp, [f'wK{a}', 'wV31'])
            g.add(op_QK(a), f'wK{a}')
            if a == 32: g.add(op_MAX())
    g.reads(op_RK(36), None, total + 4)
    g.add(op_UPD())
    return g.ops

def seg_final():
    g = Seg()
    VFq = lambda u, Tb, h: [160, 176, 128, 144][u] + 8*Tb + 4*h
    x0 = P(0, 0, 0)
    vL, vI, vG, vW0, vW1, vS0, vS1, vX = [x0 + i for i in range(8)]
    va = lambda t, R, W: valu(t, [f'v{r}' for r in R], [f'v{W}'])
    adr = [va(f'v_and_b32 v{vI}, 15, v0', [], vI), va(f'v_bfe_u32 v{vG}, v0, 4, 2', [], vG),
           va(f'v_and_b32 v{vX}, 7, v0', [], vX), va(f'v_xor_b32 v{vX}, v{vX}, v{vG}', [vX, vG], vX),
           va(f'v_lshlrev_b32 v{vX}, 4, v{vX}', [vX], vX), va(f'v_lshl_add_u32 v{vX}, v{vI}, 8, v{vX}', [vX, vI], vX),
           va(f'v_add_u32 v{vW0}, s{sPA}, v{vX}', [vX], vW0), va(f'v_xor_b32 v{vW1}, 64, v{vW0}', [vW0], vW1),
           va(f'v_xor_b32 v{vL}, v{vI}, v{vG}', [vI, vG], vL), va(f'v_lshlrev_b32 v{vL}, 4, v{vL}', [vL], vL),
           va(f'v_lshl_add_u32 v{vS0}, v{vG}, 8, v{vL}', [vG, vL], vS0), va(f'v_xor_b32 v{vS1}, 64, v{vS0}', [vS0], vS1)]
    sm = op_SM(31)
    g.add([wlg([], 'wV0', prev=[o.name for o in op_RV(28)])])
    wq = wvm([('Q', qt, n) for qt in range(2, 4) for n in range(4)], 'PAw', g.byname); wq.earliest = 4
    g.add([wq])
    for u in range(1, 4):
        rv = op_RV(28 + u)
        for o, (Tb, h, jh) in zip(rv, [(a, b, c) for a in range(2) for b in range(2) for c in range(2)]):
            d = VFq(u, Tb, h) + 2*jh
            o.text = f'ds_read_b64_tr_b16 {ar(d,2)},' + o.text.split(',', 1)[1]; o.W = rng('a', d, 2)
            o.due = -20 + u
        g.add(rv); g.add([wlg(rv, f'wV{u}')])
    for i, o in enumerate(adr): o.due = 10
    g.add(adr)
    Lops = op_L()
    for qt in range(4):
        base = 18 * qt
        if qt >= OPT['smq']: g.add(sm[6*qt:6*qt+6])
        g.add(op_RS(7, qt))
        g.add(Lops[3*qt:3*qt+3])
        for u in range(4):
            for Tb in range(2):
                for h in range(2):
                    m = mfma('v', O(2*u+Tb, qt), 'a', VFq(u, Tb, h), 'v', P(1, h, qt), False)
                    if qt == 0 and Tb == 0 and h == 0: m.R.append(f'wV{u}')
                    g.add([m])
        ep = []
        for u in range(4):
            a, b = O(2*u, qt), O(2*u+1, qt)
            for x in list(range(a, a+4)) + list(range(b, b+4)):
                ep.append(valu(f'v_mul_f32 v{x}, v{x}, v{vRL[qt]}', [f'v{x}', f'v{vRL[qt]}'], [f'v{x}']))
            for i, x in enumerate([a, a+2, b, b+2]):
                ep.append(valu(f'v_cvt_pk_bf16_f32 v{a+i}, v{x}, v{x+1}', [f'v{x}', f'v{x+1}'], [f'v{a+i}']))
            w_ = [vW0, vW1][u % 2]
            ep.append(Op('ds', f'ds_write_b128 v{w_}, {vr(a,4)} offset:{(qt%2)*4096 + (u//2)*128}',
                         R=rng('v', a, 4) + [f'v{w_}', 'PAw'], W=[f'PB{qt%2}_{u}'], name=('OW', u, qt)))
        st = lambda n: OST(qt // 2, 4*(qt % 2) + n)
        rd = [Op('ds', f'ds_read_b128 {ar(st(n),4)}, v{vRd} offset:{(qt%2)*4096 + n*1024}',
                 R=[f'v{vRd}'] + [f'PB{qt%2}_{u}' for u in range(4)], W=rng('a', st(n), 4), name=('OR', qt, n)) for n in range(4)]
        ep += rd + [wlg(rd, f'wO{qt}')]
        if qt == 2:
            ep += [va(f'v_add_u32 v{x}, s46, v{x}', [x], x) for x in (vS0, vS1)]
        for n in range(4):
            s_ = [vS0, vS1][n % 2]
            ep.append(Op('vst', f'buffer_store_dwordx4 {ar(st(n),4)}, v{s_}, {srd(sO)}, s{sOo[qt%2]} offen offset:{n*1024} {OPT["last_flags"]}'.rstrip(),
                         R=rng('a', st(n), 4) + [f'v{s_}', f'wO{qt}'], W=[], name=('O', qt, n)))
        for i, o in enumerate(ep):
            o.due = base + 8 + OPT['fin_len'] * i / len(ep) + (OPT['fin_st'] * (1 + o.name[2]) if o.kind == 'vst' else 0)
            if o.kind == 'vst': o.earliest = o.due - 1
            if o.kind == 'wlg': o.due = None
        g.add(ep)
    return g.ops

def seg_first(qt, qr, dmas):
    g = Seg()
    g.add(qr); g.add([wlg(qr, 'wq')])
    raw = OPT['fraw']
    if not raw: g.add(op_PS(qt, Q, O(4, 0)), 'wq')
    tmp = lambda kt: S(1, qt) if kt == 3 else O(kt, qt)
    for kt in range(4):
        g.add([mfma('v', tmp(kt), 'a', 128 + 16*kt + 4*ks, 'a', Q(qt, ks), ks == 0) for ks in range(4)], 'wq' if (raw and kt == 0) else None)
    s = tmp(0); n = vNM[qt]; t, u = n + 1, n + 2
    mx = lambda d, a, b: valu(f'v_max_f32 v{d}, v{a}, v{b}', [f'v{a}', f'v{b}'], [f'v{d}'])
    mv = lambda d, a: valu(f'v_mov_b32 v{d}, v{a}', [f'v{a}'], [f'v{d}'])
    l = [valu(f'v_max3_f32 v{t}, v{s}, v{s+1}, v{s+2}', rng('v', s, 3), [f'v{t}']), mx(t, t, s+3),
         mv(u, t), perm(16, t, u), mx(t, t, u), mv(u, t), perm(32, t, u), mx(t, t, u)]
    if raw:
        l.append(valu(f'v_mul_f32 v{n}, s{sNC}, v{t}', [f'v{t}'], [f'v{n}']))
        if qt >= 2: l.append(valu(f'v_add_f32 v{n}, s47, v{n}', [f'v{n}'], [f'v{n}']))
    else: l.append(valu(f'v_sub_f32 v{n}, {"s47" if qt >= 2 else "0"}, v{t}', [f'v{t}'], [f'v{n}']))
    for o in l: o.due = 0
    g.add(l)
    if raw: g.add(op_PS(qt, Q, O(4, 0)))
    for kt in range(4):
        s = tmp(kt)
        for r in range(4):
            g.add([valu(f'v_fma_f32 v{s+r}, v{s+r}, s{sC}, v{n}' if raw else f'v_add_f32 v{s+r}, v{s+r}, v{n}', [f'v{s+r}', f'v{n}'], [f'v{s+r}'])])
        if kt == 3: break
        for r in range(4): g.add([valu(f'v_exp_f32 v{s+r}, v{s+r}', [f'v{s+r}'], [f'v{s+r}'], kind='trans')])
        p = P(0, kt // 2, qt) + 2*(kt % 2)
        for i in range(2): g.add([valu(f'v_cvt_pk_bf16_f32 v{p+i}, v{s+2*i}, v{s+2*i+1}', [f'v{s+2*i}', f'v{s+2*i+1}'], [f'v{p+i}'])])
    g.add([mv(n + i, n) for i in range(1, 4)])
    if dmas:
        for o in dmas: o.due = -50
        g.ops = dmas + g.ops
        g.ops[len(dmas) + 4].extra += dmas
        for o in dmas: o.extra += g.ops[len(dmas):len(dmas) + 4]
        g.ops = g.ops[len(dmas):len(dmas) + 4] + dmas + g.ops[len(dmas) + 4:]
    return g.ops

K1F = lambda kt, ks: 64 + 16*kt + 4*ks
V0F = lambda u, Tb, h: ('a', 212 + 16*u + 8*Tb + 4*h) if u < 2 else ('v', O(7, 0) + 8*Tb + 4*h)
def prog1(g, qt, qr, dmas):
    g.add(qr)
    for o in dmas:
        o.due = -50; o.extra += qr
    g.add(dmas)
    w = wlg(qr, 'wq'); w.extra += dmas
    g.add([w])
    for kt in range(4):
        g.add([mfma('v', O(kt, qt), 'a', 128 + 16*kt + 4*ks, 'a', Q(qt, ks), ks == 0) for ks in range(4)], 'wq' if kt == 0 else None)
    s = O(0, qt); n = vNM[qt]; t, u = n + 1, n + 2
    mx = lambda d, a, b: valu(f'v_max_f32 v{d}, v{a}, v{b}', [f'v{a}', f'v{b}'], [f'v{d}'])
    mv = lambda d, a: valu(f'v_mov_b32 v{d}, v{a}', [f'v{a}'], [f'v{d}'])
    l = [valu(f'v_max3_f32 v{t}, v{s}, v{s+1}, v{s+2}', rng('v', s, 3), [f'v{t}']), mx(t, t, s+3),
         mv(u, t), perm(16, t, u), mx(t, t, u), mv(u, t), perm(32, t, u), mx(t, t, u),
         valu(f'v_mul_f32 v{n}, s{sNC}, v{t}', [f'v{t}'], [f'v{n}'])]
    if qt >= 2: l.append(valu(f'v_add_f32 v{n}, s47, v{n}', [f'v{n}'], [f'v{n}']))
    for o in l: o.due = 0
    g.add(l)
    g.add(op_PS(qt, Q, O(6, 0), 2))
    for kt in range(4):
        s = O(kt, qt)
        for r in range(4): g.add([valu(f'v_fma_f32 v{s+r}, v{s+r}, s{sC}, v{n}', [f'v{s+r}', f'v{n}'], [f'v{s+r}'])])
        for r in range(4): g.add([valu(f'v_exp_f32 v{s+r}, v{s+r}', [f'v{s+r}'], [f'v{s+r}'], kind='trans')])
        p = P(0, kt // 2, qt) + 2*(kt % 2)
        for i in range(2): g.add([valu(f'v_cvt_pk_bf16_f32 v{p+i}, v{s+2*i}, v{s+2*i+1}', [f'v{s+2*i}', f'v{s+2*i+1}'], [f'v{p+i}'])])
    g.add([mv(n + i, n) for i in range(1, 4)])
def prog2(g, qt, done, dep=False):
    def qk(kt):
        s = [O(4, qt), O(5, qt), S(0, qt), S(1, qt)][kt]
        g.add([mfma('v', s, 'a', K1F(kt, ks), 'a', Q(qt, ks), ks == 0, vNM[qt] if ks == 0 else None) for ks in range(4)], f'wk{kt}' if dep else None)
        p = P(1, kt // 2, qt) + 2*(kt % 2)
        for r in range(4):
            if ('sm', 4 + kt, qt, r) in done: g.add([valu(f'v_exp_f32 v{s+r}, v{s+r}', [f'v{s+r}'], [f'v{s+r}'], kind='trans')])
            else: assert kt >= 2
        for i in range(2):
            if ('sm', 4 + kt, qt, 4 + i) in done:
                g.add([valu(f'v_cvt_pk_bf16_f32 v{p+i}, v{s+2*i}, v{s+2*i+1}', [f'v{s+2*i}', f'v{s+2*i+1}'], [f'v{p+i}'])])
            else: assert kt >= 2
    def pv(u):
        g.add([mfma('v', O(2*u+Tb, qt), *V0F(u, Tb, h), 'v', P(0, h, qt), h == 0) for Tb in range(2) for h in range(2)], f'wv{u}' if dep else None)
    qk(0); qk(1); qk(2); pv(0); pv(1); qk(3)
    if qt < 3: g.add(op_RS(0, qt))
    pv(2)

def resolve_waits(seqs):
    res = {}
    for kind, kinds, fmt, mx in (('wvm', ('dma', 'vld', 'vst'), 'vmcnt', 63), ('wlg', ('ds',), 'lgkmcnt', 15)):
        hist = []
        for si, sq in enumerate(seqs):
            for o in sq:
                if o.kind in kinds: hist.append(o.name)
                elif o.kind == kind:
                    assert any(x in hist for x in o.prev_targets), o.prev_targets
                    last = max(len(hist) - 1 - hist[::-1].index(x) for x in o.prev_targets if x in hist)
                    res.setdefault(o, []).append(len(hist) - 1 - last)
        for o, l in res.items():
            if o.kind == kind: o.text = f's_waitcnt {fmt}({min(min(l), mx)})'
    return res

def lines(ops): return ''.join('    ' + o.text + '\n' for o in ops)
def padded(ops):
    build_deps(ops)
    out = []
    for o in ops:
        need = 0
        for p, d in o.preds.items():
            need = max(need, d - (len(out) - p.pos - 1))
        for _ in range(need): out.append(Op('salu', 's_nop 0'))
        o.pos = len(out); out.append(o)
    return out

def dbg_lines(ops, first):
    txt = ''; n = first
    for o in ops:
        txt += '    ' + o.text + '\n'
        if o.kind == 'bar':
            txt += f'    s_memtime s[{78+2*n}:{79+2*n}]\n'; n += 1
    return txt, n
DUMP = '    s_memtime s[96:97]\n    s_waitcnt lgkmcnt(0)\n' + ''.join(
    f'    v_writelane_b32 v38, s{78+2*i}, {i}\n' for i in range(11)) + \
    '    s_mov_b64 exec, 0xffff\n    buffer_store_dword v38, v39, s[60:63], s59 offen\n    s_mov_b64 exec, -1\n    s_add_u32 s59, s59, 64\n'

def main():
    segs = {}
    for nme, ops in (('A', seg_A()), ('B', seg_B()), ('D', seg_final())):
        sched.RESERVE = OPT['resd'] if nme == 'D' else OPT['res']
        segs[nme], stats = schedule(ops, OPT['ds_lead'], OPT['ds_lat'], OPT['vm_space'], nop_win=(OPT['nopw'] if nme == 'A' else 10000))
        print(nme, stats, file=sys.stderr)
    A = []
    w = A.append
    WARM1 = '''    s_getpc_b64 s[94:95]
L_pc:
    s_bfe_u32 s64, s2, 0x20003            ; (wg >> 3) & 3
    s_lshl_b32 s64, s64, 13
    v_lshlrev_b32 v28, 7, v0
    v_cmp_lt_u32 vcc, 63, v0
    v_mov_b32 v29, s64
    s_nop 0
    v_cndmask_b32 v29, 0, v29, vcc
    v_add_u32 v28, v28, v29
    v_min_u32 v28, L_end-L_pc, v28
    v_cmp_gt_u32 vcc, 128, v0
    s_and_saveexec_b64 s[64:65], vcc
    s_cbranch_execz L_w1
    global_load_dword a255, v28, s[94:95]
L_w1:
    s_mov_b64 exec, -1
''' if OPT['warm'] else ''
    w(f'''; GQA attention forward, B=16 Hq=32 Hkv=16 Sq=496 Sk=512 D=128, bf16.  Generated by gen/gen.py (own generator).
; 256 persistent workgroups x 4 waves; each wave 64 q rows; K/V tiles streamed through an LDS ring by LDS-DMA.
; Softmax reference point: max over the row's first 16 keys; a run-time check on the row sum redoes the rows
; @launch grid=(256,1,1) block=(256,1,1) lds=163840
.amdgcn_target "amdgcn-amd-amdhsa--gfx950"
.text
.globl {NAME}
.p2align 8
.type {NAME},@function
{NAME}:
    s_cmp_ge_u32 s2, 256
    s_cbranch_scc1 L_end
{'    s_memtime s[100:101]' if OPT['debug'] else ''}
    s_load_dwordx4 s[56:59], s[0:1], 0
    s_load_dwordx4 s[60:63], s[0:1], 16
{WARM1}    v_lshrrev_b32 v20, 6, v0
    v_and_b32 v21, 63, v0                 ; lane
    v_readfirstlane_b32 s42, v20          ; wave
    v_and_b32 v22, 15, v21                ; i
    v_lshrrev_b32 v23, 4, v21             ; g
    v_lshrrev_b32 v26, 2, v22             ; i/4
    v_and_b32 v27, 3, v21                 ; i%4
    ; DMA lane part: (i/4)*256 + g*64 + ((i%4)^f(n))*16
    v_lshlrev_b32 v30, 8, v26
    v_lshl_add_u32 v30, v23, 6, v30
    v_lshl_add_u32 v{vKd[0]}, v27, 4, v30
    v_xor_b32 v{vKd[1]}, 48, v{vKd[0]}
    v_xor_b32 v{vKd[2]}, 32, v{vKd[0]}
    v_xor_b32 v{vKd[3]}, 16, v{vKd[0]}
    s_and_b32 s43, s2, 7                  ; xcd
    s_lshr_b32 s44, s2, 3
    s_lshr_b32 s45, s44, 2                ; group
    s_and_b32 s44, s44, 3                 ; qb
    s_lshl_b32 s43, s43, 5
{'    s_lshl_b32 s45, s45, 2' if OPT['pst'] == 1 else ''}
    s_add_u32 s43, s43, s45               ; pair0
    s_lshl_b32 s{sW4k}, s42, 12
    s_lshl_b32 s{sKVn}, s43, 17
    s_add_u32 s{sKVn}, s{sKVn}, s{sW4k}
    s_mul_i32 s45, s43, {PAIRQ}
    s_lshl_b32 s46, s44, 16
    s_add_u32 s45, s45, s46
    s_lshl_b32 s46, s42, 14
    s_add_u32 s{sQn[0]}, s45, s46
    s_add_u32 s{sQn[1]}, s{sQn[0]}, 4096
    s_lshl_b32 s{sPA}, s42, 13
    s_add_u32 s{sPA}, s{sPA}, 131072
    s_lshl_b32 s46, s44, 2
    s_add_u32 s46, s46, s42
    s_cmp_eq_u32 s46, 15
    s_cselect_b32 s46, 0x40000000, 8192
    s_cselect_b32 s47, 0xff800000, 0
    s_cselect_b32 s45, 0, 8192
    s_cselect_b32 s{sQB+2}, 0, {QBYTES}
    s_add_u32 s{sQn[2]}, s{sQn[0]}, s45
    s_add_u32 s{sQn[3]}, s{sQn[1]}, s45
    s_mov_b32 s{sQ+2}, {QBYTES}
    s_mov_b32 s{sQ+3}, 0x20000
    s_mov_b32 s{sQB+3}, 0x20000
    s_mov_b32 s{sKn+2}, {KBYTES}
    s_mov_b32 s{sKn+3}, 0x20000
    s_mov_b32 s{sVn+2}, {KBYTES}
    s_mov_b32 s{sVn+3}, 0x20000
    s_waitcnt lgkmcnt(0)
    s_mov_b32 s{sKn}, s58
    s_mov_b32 s{sKn+1}, s59
    s_mov_b32 s{sQ}, s56
    s_mov_b32 s{sQ+1}, s57
    s_mov_b32 s{sQB}, s56
    s_mov_b32 s{sQB+1}, s57
    s_mov_b32 s{sVn}, s60
    s_mov_b32 s{sVn+1}, s61
''')
    if OPT['debug']:
        w('''    s_memrealtime s[98:99]
    s_waitcnt lgkmcnt(0)
    s_mov_b32 s67, s98
''')
    QTMP = [None, None, VBASE + 3*16384, 3*16384]
    pro = op_DMA('K', 8, None)
    pro += op_QD(0, f's_add_u32 m0, s{sPA}, 0')
    if OPT['prog']: pro += op_DMA('K', 9, None) + op_DMA('V', 8, None)
    else:
        pro += op_QD(1, f's_add_u32 m0, s{sPA}, 4096')
        pro += op_QD(2, f's_add_u32 m0, s{sW4k}, {QTMP[2]}')
        if OPT['fo'] != 2: pro += op_QD(3, f's_add_u32 m0, s{sW4k}, {QTMP[3]}')
    pro = padded(pro)
    w(lines(pro))
    w(f'''    ; remaining setup under the load latency
    s_mov_b32 s{sK}, s58
    s_mov_b32 s{sK+1}, s59
    s_mov_b32 s{sK+2}, {KBYTES}
    s_mov_b32 s{sK+3}, 0x20000
    s_mov_b32 s{sV}, s60
    s_mov_b32 s{sV+1}, s61
    s_mov_b32 s{sV+2}, {KBYTES}
    s_mov_b32 s{sV+3}, 0x20000
    s_mov_b32 s{sO}, s62
    s_mov_b32 s{sO+1}, s63
    s_mov_b32 s{sO+2}, {QBYTES}
    s_mov_b32 s{sO+3}, 0x20000
    s_mov_b32 s{sOP}, s62
    s_mov_b32 s{sOP+1}, s63
    s_mov_b32 s{sOP+3}, 0x20000
    s_mov_b32 s{sOo[0]}, 0
    s_mov_b32 s{sOo[1]}, 0
    v_sub_u32 v30, 0, v26
    v_and_b32 v30, 3, v30                 ; f(i/4)
    v_xor_b32 v30, v30, v23
    v_lshlrev_b32 v30, 4, v30
    v_lshl_add_u32 v30, v27, 6, v30
    v_lshl_add_u32 v{vKa}, v26, 10, v30
    v_add_u32 v{vQa}, s{sPA}, v{vKa}
    v_lshlrev_b32 v30, 10, v23
    v_lshl_add_u32 v30, v26, 6, v30
    v_lshl_add_u32 v30, v27, 4, v30
    v_add_u32 v{vVa}, {VBASE}, v30
{'    v_and_b32 v30, 16, v21' + chr(10) + '    v_lshrrev_b32 v30, 1, v30' + chr(10) + f'    v_add_u32 v{vVa}, v{vVa}, v30' if 'conf' in OPT['abl'] else ''}
    ; O staging: write addr = PA + i*128 + ((g ^ (i&7))*16); read addr = PA + lane*16; store lane part = (l/8)*256 + ((l%8)^(l/8))*16
    v_and_b32 v30, 7, v21
    v_xor_b32 v31, v30, v23
    v_lshlrev_b32 v31, 4, v31
    v_lshl_add_u32 v31, v22, 7, v31
    v_add_u32 v{vWr[0]}, s{sPA}, v31
    v_xor_b32 v{vWr[1]}, 64, v{vWr[0]}
    v_lshlrev_b32 v31, 4, v21
    v_add_u32 v{vRd}, s{sPA}, v31
    v_lshrrev_b32 v31, 3, v21
    v_xor_b32 v30, v30, v31
    v_lshlrev_b32 v30, 4, v30
    v_lshl_add_u32 v{vOlo}, v31, 8, v30
    v_add_u32 v{vOhi}, s46, v{vOlo}
    v_mov_b32 v30, s47
    v_cmp_lt_u32 vcc, 31, v21
    v_mov_b32 v31, 0x3f803f80
    s_mov_b32 s{sC}, {hex(f32(CSCALE))}
    v_cndmask_b32 v{vBias}, 0, v30, vcc
    s_mov_b32 s{sNC}, {hex(f32(-CSCALE))}
    s_mov_b32 s{sThr}, {hex(f32(2.0**64) if not OPT['force_slow'] else f32(-1.0))}
    s_mov_b32 s{sB}, -1
    s_mov_b32 s{sFlag}, 0
    s_mov_b64 s[{sCmp[0]}:{sCmp[0]+1}], 0
    s_mov_b64 s[{sCmp[1]}:{sCmp[1]+1}], 0
    s_mov_b64 s[{sCmp[2]}:{sCmp[2]+1}], 0
    s_mov_b64 s[{sCmp[3]}:{sCmp[3]+1}], 0
    v_accvgpr_write_b32 a{ONES}, v31
    v_accvgpr_write_b32 a{ONES+1}, v31
    v_accvgpr_write_b32 a{ONES+2}, v31
    v_accvgpr_write_b32 a{ONES+3}, v31
    v_add_u32 v{vX0}, s{sW4k}, v{vKa}
    v_add_u32 v{vX1}, {VBASE}, v{vX0}
    ; scale/selection matrices: lane (g,i) is live iff g == i/4; element i%4 of a 4-element half
    v_and_b32 v30, 1, v21
    v_lshlrev_b32 v30, 4, v30
    v_mov_b32 v31, {CHI}
    v_mov_b32 v28, {CLO}
    v_lshlrev_b32 v31, v30, v31
    v_lshlrev_b32 v28, v30, v28
    v_lshrrev_b32 v30, 1, v22             ; i/2
    v_lshlrev_b32 v29, 1, v23             ; 2g
    v_cmp_eq_u32 vcc, v30, v29
    v_add_u32 v29, 1, v29
    v_accvgpr_write_b32 a{SEL}, 0
    v_cndmask_b32 v24, 0, v31, vcc
    v_cndmask_b32 v25, 0, v28, vcc
    v_cmp_eq_u32 vcc, v30, v29
    v_accvgpr_write_b32 a{SEL+2}, v24
    v_accvgpr_write_b32 a{SEL+6}, v25
    v_cndmask_b32 v24, 0, v31, vcc
    v_cndmask_b32 v25, 0, v28, vcc
    v_accvgpr_write_b32 a{SEL+1}, 0
    v_accvgpr_write_b32 a{SEL+4}, 0
    v_accvgpr_write_b32 a{SEL+5}, 0
    v_accvgpr_write_b32 a{SEL+8}, 0
    v_accvgpr_write_b32 a{SEL+9}, 0
    v_accvgpr_write_b32 a{SEL+3}, v24
    v_accvgpr_write_b32 a{SEL+7}, v25
''')
    w(f'    s_mov_b32 s56, s{sQn[1]}\n    s_mov_b32 s57, s{sQn[2]}\n    s_mov_b32 s58, s{sQn[3]}\n')
    w(lines(op_UPD()))
    stamp = lambda i: [Op('salu', f's_memtime s[{78+2*i}:{79+2*i}]')] if OPT['debug'] else []
    qr = [op_QR(0, Q, vQa, 0, 'x'), op_QR(1, Q, vQa, 4096, 'x'), op_QR(2, Q, vX1, 3*16384, 'x'), op_QR(3, Q, vX0, 3*16384, 'x')]
    names = lambda t, *idx: [(t, i, n) for i in idx for n in range(4)]
    F = stamp(0) + [wvm(names('K', 0), 'x', {})] + stamp(1) + [Op('salu', 's_barrier')] + stamp(2)
    F += [Op('ds', f'ds_read_b128 {ar(128 + 16*kt + 4*ks, 4)}, v{vKa} offset:{kt*4096 + ks*256}', name=('RK0', kt, ks)) for kt in range(4) for ks in range(4)]
    if OPT['fo'] == 2:
        F += padded(op_QD(3, f's_add_u32 m0, s{sW4k}, {QTMP[3]}', so=58))
        fd = [op_DMA('K', 1, None), op_DMA('V', 0, None), op_DMA('K', 2, None), op_DMA('V', 1, None)]
    else:
        F += padded(op_DMA('K', 1, None))
        fd = [op_DMA('V', 0, None), op_DMA('K', 2, None), op_DMA('V', 1, None), op_DMA('K', 3, None) + op_DMA('V', 2, None)]
    for qt in range(0 if OPT['prog'] else 4):
        F += [wvm(names('Q', qt), 'x', {})] + stamp(3 + qt)
        sched.RESERVE = 24
        sg, stats = schedule(seg_first(qt, qr[qt], fd[qt] if OPT['fo'] == 2 else None), OPT['ds_lead'], OPT['ds_lat'], 1)
        print('F', qt, stats, file=sys.stderr)
        F += sg + (stamp(7) if qt == 3 else []) + (padded(fd[qt]) if OPT['fo'] != 2 else [])
    F += [wvm(names('K', 1) + names('V', 0), 'x', {}), Op('bar', 's_barrier')] + op_RK(4)
    if OPT['fo'] == 2: F += padded(op_DMA('K', 3, None) + op_DMA('V', 2, None))
    cut = 0
    if OPT['prog']:
        A_ = segs['A']
        cut = next(i for i, o in enumerate(A_) if o.kind == 'bar') + 1
        done = set(o.name for o in A_[:cut] if o.name)
        nmf = sum(o.kind == 'mfma' for o in A_[:cut])
        assert nmf == 3*34 + 16, nmf
        assert all(('sm', 3, q, j) in done for q in range(4) for j in range(6))
        assert all(x in done for x in names('K', 4) + names('V', 3) + names('Q', 0))
        assert not any(x in done for x in names('K', 5) + names('V', 4) + names('Q', 1))
        def sch(f):
            sg = Seg(); f(sg)
            sched.RESERVE = 24
            r_, stats = schedule(sg.ops, OPT['ds_lead'], OPT['ds_lat'], 1)
            print('F', stats, file=sys.stderr)
            return r_
        qr[3] = op_QR(3, Q, vQa, 0, 'x')
        D_ = lambda *x: padded(op_DMA(*x, None))
        E = OPT['early']
        q1, q2, q3 = op_QD(1, f's_add_u32 m0, s{sPA}, 4096', so=56), op_QD(2, f's_add_u32 m0, s{sW4k}, {QTMP[2]}', so=57), op_QD(3, f's_add_u32 m0, s{sPA}, 0', so=58)
        F = stamp(0) + (padded(q1) if E & 1 else []) + [wvm(names('K', 0), 'x', {}), Op('salu', 's_barrier')] + stamp(1)
        F += [Op('ds', f'ds_read_b128 {ar(128 + 16*kt + 4*ks, 4)}, v{vKa} offset:{kt*4096 + ks*256}', W=rng('a', 128 + 16*kt + 4*ks, 4), name=('RK0', kt, ks)) for kt in range(4) for ks in range(4)]
        F += ([] if E & 1 else padded(q1)) + (padded(q2) if E & 2 else []) + [wvm(names('Q', 0), 'x', {})] + stamp(2)
        F += sch(lambda sg: prog1(sg, 0, qr[0], [] if E & 2 else q2))
        if E & 4: F += padded(q3) + D_('K', 2) + [wvm(names('K', 1) + names('V', 0), 'x', {}), Op('salu', 's_barrier')] + stamp(3)
        else: F += [wvm(names('K', 1) + names('V', 0), 'x', {})] + padded(q3) + [Op('salu', 's_barrier')] + stamp(3)
        def two(sg):
            j = 0
            for kt in range(4):
                rd = [Op('ds', f'ds_read_b128 {ar(K1F(kt, ks), 4)}, v{vKa} offset:{16384 + kt*4096 + ks*256}', W=rng('a', K1F(kt, ks), 4), name=('RK1', kt, ks)) for ks in range(4)]
                for o in rd: o.due = [-30, -29, -28, 5][kt]
                sg.add(rd); sg.add([wlg(rd, f'wk{kt}')])
            for u in range(3):
                rd = []
                for Tb in range(2):
                    for h in range(2):
                        for jh in range(2):
                            p_, d_ = V0F(u, Tb, h)
                            rd.append(Op('ds', f'ds_read_b64_tr_b16 {p_}[{d_+2*jh}:{d_+2*jh+1}], v{vVa} offset:{h*8192 + jh*4096 + u*256 + Tb*8}', W=rng(p_, d_ + 2*jh, 2), name=('RV0', u, Tb, h, jh)))
                for o in rd: o.due = [-10, 0, 10][u]
                sg.add(rd); sg.add([wlg(rd, f'wv{u}')])
            prog2(sg, 0, done, True)
            if not E & 4: sg.spread(op_DMA('K', 2, None), 14, 28)
        F += sch(two)
        for qt, nxt in ((1, ('V', 1)), (2, ('K', 3)), (3, ('V', 2))):
            F += (D_(*nxt) if E & 8 else []) + [wvm(names('Q', qt), 'x', {})] + stamp(3 + qt)
            def both(sg):
                prog1(sg, qt, qr[qt], [] if E & 8 else op_DMA(*nxt, None)); prog2(sg, qt, done)
                if qt == 3:
                    rv = op_RV(3)
                    for o in rv: o.R = o.R[:1]
                    sg.add(rv)
                    sg.spread(op_DMA('K', 4, None) + op_DMA('V', 3, None) + op_QD(0, f's_add_u32 m0, s{sPA}, 0', 'wq'), OPT['pl'], 60)
            F += sch(both)
        F += stamp(7)
        for r_ in ('m0', f's{sTK}', f's{sTV}'):
            F.append(next(o for o in reversed(A_[:cut]) if r_ in o.W))
        F += [Op('salu', 's_waitcnt lgkmcnt(0)'), wvm(names('K', 2) + names('V', 1), 'x', {}), Op('bar', 's_barrier')]
    segs['F'] = F
    sq = [pro, segs['F'], segs['A'][cut:], segs['B']] + [segs['A'], segs['B']] * 2 + [segs['A'], segs['D']]
    r = resolve_waits(sq)
    print([(o.text, l) for o, l in r.items() if o.kind == 'wvm'], file=sys.stderr)
    if OPT['debug']:
        w('''    s_load_dwordx2 s[60:61], s[0:1], 40
    s_mov_b32 s62, 0x1000000
    s_mov_b32 s63, 0x20000
    s_lshl_b32 s59, s2, 14
    s_add_u32 s59, s59, s39
    s_lshr_b32 s59, s59, 3
    v_lshlrev_b32 v39, 2, v21
    s_waitcnt lgkmcnt(0)
''')
    if 'rs' in OPT['abl']:
        segs['A'] = [o if not (o.kind == 'mfma' and o.text.split()[1].startswith('a[')) else Op('salu', 's_nop 0') for o in segs['A']]
    if 'dma' in OPT['abl']:
        for sg in 'AB':
            segs[sg] = [o if not (o.kind == 'dma' and o.name[0] in 'KV') else Op('salu', 's_nop 0') for o in segs[sg]]
    if 'ds' in OPT['abl'].split():
        for sg in 'AB':
            segs[sg] = [o if not (o.kind == 'ds' and o.name[0] in ('RK', 'RV')) else Op('salu', 's_nop 0') for o in segs[sg]]
    upd = 'L_next:\n' + ('' if OPT['updin'] else lines(op_UPD()))
    pad = lambda n: [Op('salu', 'x') for _ in range(n)]
    bad = check_hazards(segs['F'] + segs['A'][cut:] + pad(2) + segs['B'] + pad(1) + segs['A'] + pad(2) + segs['D'])
    assert bad == 0, bad
    if not OPT['debug']:
        w(lines(segs['F']))
        if cut: w('    s_branch L_cut\n')
        w(upd)
        w(lines(segs['A'][:cut]))
        w('L_cut:\n')
        w(lines(segs['A'][cut:]))
        w(f'    s_cmp_eq_u32 s{sB}, 3\n    s_cbranch_scc1 L_final\n')
        w(lines(segs['B']))
        w('    s_branch L_next\nL_final:\n')
        w(lines(segs['D']))
    else:
        w(dbg_lines(segs['F'], 8)[0]); w(DUMP)
        if cut: w('    s_memtime s[78:79]\n    s_memrealtime s[98:99]\n    s_memtime s[80:81]\n    s_branch L_cut\n')
        w(upd)
        w('    s_memtime s[78:79]\n    s_memrealtime s[98:99]\n')
        t1, n1 = dbg_lines(segs['A'][:cut], 1)
        w(t1 + 'L_cut:\n')
        w(dbg_lines(segs['A'][cut:], n1)[0])
        w(f'    s_cmp_eq_u32 s{sB}, 3\n    s_cbranch_scc1 L_final\n')
        w(dbg_lines(segs['B'], 8)[0]); w(DUMP)
        w('    s_branch L_next\nL_final:\n')
        w(lines(segs['D'])); w('    s_memtime s[94:95]\n'); w(DUMP)
        w('''    s_waitcnt vmcnt(0)
    s_memtime s[78:79]
    s_memrealtime s[98:99]
    s_waitcnt lgkmcnt(0)
    v_mov_b32 v36, s78
    v_mov_b32 v37, s98
    v_mov_b32 v38, s100
    v_mov_b32 v39, s67
    s_mov_b64 exec, 1
    buffer_store_dwordx4 v[36:39], off, s[60:63], s59
    s_mov_b64 exec, -1
''')
    w(f'''    s_or_b64 s[{sCmp[0]}:{sCmp[0]+1}], s[{sCmp[0]}:{sCmp[0]+1}], s[{sCmp[1]}:{sCmp[1]+1}]
    s_or_b64 s[{sCmp[2]}:{sCmp[2]+1}], s[{sCmp[2]}:{sCmp[2]+1}], s[{sCmp[3]}:{sCmp[3]+1}]
    s_or_b64 s[{sCmp[0]}:{sCmp[0]+1}], s[{sCmp[0]}:{sCmp[0]+1}], s[{sCmp[2]}:{sCmp[2]+1}]
    s_cselect_b32 s42, 8, 0
    s_or_b32 s{sFlag}, s{sFlag}, s42
''')
    w(slow_path())
    w(f'''L_end:
    s_endpgm
.section .rodata,"a"
.p2align 6
.amdhsa_kernel {NAME}
  .amdhsa_next_free_vgpr 512
  .amdhsa_next_free_sgpr {102 if OPT['debug'] else 96}
  .amdhsa_accum_offset 256
  .amdhsa_group_segment_fixed_size 0
  .amdhsa_kernarg_size 48
  .amdhsa_user_sgpr_count 2
  .amdhsa_user_sgpr_kernarg_segment_ptr 1
  .amdhsa_system_sgpr_workgroup_id_x 1
.end_amdhsa_kernel
''')
    open(sys.argv[1], 'w').write(''.join(A))

def slow_path():
    raw = lambda t: Op('salu', t)
    T = []
    w = T.append
    sPair, sKoff, sJ = 56, 57, 58
    vF, vFh, vTr = 36, 37, 38
    w(f'''    s_cmp_eq_u32 s{sFlag}, 0
    s_cbranch_scc1 L_end
    s_waitcnt vmcnt(0) lgkmcnt(0)
    s_mov_b32 s{sQ+2}, {QBYTES}
    s_sub_u32 s42, s{sPA}, {VBASE}
    v_add_u32 v{vTr}, s42, v{vVa}
    v_and_b32 v20, 15, v0
    v_bfe_u32 v21, v0, 4, 2
    v_lshlrev_b32 v20, 8, v20
    v_lshl_add_u32 v{vF}, v21, 4, v20
    v_add_u32 v{vFh}, s46, v{vF}
    s_mov_b32 s{sB}, 0
L_slow_blk:
    s_lshr_b32 s42, s{sFlag}, s{sB}
    s_and_b32 s42, s42, 1
    s_cmp_eq_u32 s42, 0
    s_cbranch_scc1 L_slow_next
    s_mul_i32 s42, s{sB}, {OPT['pst']}
    s_add_u32 s{sPair}, s43, s42
    s_mul_i32 s42, s{sPair}, {PAIRQ}
    s_lshl_b32 s45, s44, 16
    s_add_u32 s42, s42, s45
    s_lshl_b32 s45, s{sW4k}, 2
    s_add_u32 s{sOo[0]}, s42, s45
    s_add_u32 s{sOo[1]}, s{sOo[0]}, 4096
''')
    for qt in range(4):
        for ks in range(4):
            w(f'    buffer_load_dwordx4 {ar(Q(qt,ks),4)}, v{vF if qt < 2 else vFh}, {srd(sQ)}, s{sOo[qt%2]} offen offset:{ks*64}\n')
    for qt in range(4): w(f'    v_mov_b32 v{vT[qt]}, 0xff800000\n')
    w(f'''    s_lshl_b32 s{sKoff}, s{sPair}, 17
    s_mov_b32 s{sJ}, 0
L_slow_p1:
''')
    def kload(buf):
        return [raw(f'buffer_load_dwordx4 {ar(KF(buf,ks),4)}, v{vF}, {srd(sK)}, s{sKoff} offen offset:{ks*64}') for ks in range(4)]
    w(lines(kload(0)))
    w('    s_waitcnt vmcnt(0)\n')
    l = op_QK(0, True)
    for qt in range(4):
        s = S(0, qt)
        l.append(valu(f'v_max3_f32 v{vT[qt]}, v{s}, v{s+1}, v{vT[qt]}', [f'v{s}', f'v{s+1}', f'v{vT[qt]}'], [f'v{vT[qt]}']))
        l.append(valu(f'v_max3_f32 v{vT[qt]}, v{s+2}, v{s+3}, v{vT[qt]}', [f'v{s+2}', f'v{s+3}', f'v{vT[qt]}'], [f'v{vT[qt]}']))
    w(lines(padded(l)))
    w(f'''    s_add_u32 s{sKoff}, s{sKoff}, 4096
    s_add_u32 s{sJ}, s{sJ}, 1
    s_cmp_lt_u32 s{sJ}, 32
    s_cbranch_scc1 L_slow_p1
''')
    w(lines(padded(op_reduce(True))))
    for i in range(128): w(f'    v_mov_b32 v{128+i}, 0\n')
    for i in range(16): w(f'    v_accvgpr_write_b32 a{RS(0)+i}, 0\n')
    w(f'''    s_lshl_b32 s{sKoff}, s{sPair}, 17
    s_mov_b32 s{sJ}, 0
L_slow_p2:
''')
    w(f'    s_mov_b32 m0, s{sPA}\n    s_nop 0\n')
    for n in range(4): w(f'    buffer_load_dwordx4 v{vKd[0]}, {srd(sV)}, s{sKoff} offen offset:{n*1024} lds\n')
    w(lines(kload(0)))
    w(f'    s_add_u32 s{sKoff}, s{sKoff}, 4096\n    s_add_u32 m0, s{sPA}, 4096\n    s_nop 0\n')
    for n in range(4): w(f'    buffer_load_dwordx4 v{vKd[0]}, {srd(sV)}, s{sKoff} offen offset:{n*1024} lds\n')
    w(lines(kload(1)))
    w(f'    s_add_u32 s{sKoff}, s{sKoff}, 4096\n    s_waitcnt vmcnt(0)\n')
    l = op_QK(0, True) + op_SM(0, True) + op_QK(1, True) + op_SM(1, True)
    for qt in range(4): l.append(mfma('a', RS(qt), 'a', ONES, 'v', P(0, 0, qt), False))
    w(lines(padded(l)))
    for u in range(4):
        for Tb in range(2):
            for jh in range(2):
                d = VF(0, Tb, 0) + 2*jh
                w(f'    ds_read_b64_tr_b16 {ar(d,2)}, v{vTr} offset:{jh*4096 + u*256 + Tb*8}\n')
        w('    s_waitcnt lgkmcnt(0)\n')
        for Tb in range(2):
            for qt in range(4):
                w('    ' + mfma('v', O(2*u+Tb, qt), 'a', VF(0, Tb, 0), 'v', P(0, 0, qt), False).text + '\n')
        w('    s_nop 7\n')
    w(f'''    s_add_u32 s{sJ}, s{sJ}, 1
    s_cmp_lt_u32 s{sJ}, 16
    s_cbranch_scc1 L_slow_p2
    s_nop 7
''')
    l = op_L()
    for u in range(4):
        l += op_EPI(u)
        if u % 2: l += op_OUT(u // 2)
    for o in l:
        if o.kind == 'wlg': o.text = 's_waitcnt lgkmcnt(0)'
    w(lines(padded(l)))
    w(f'''    s_waitcnt vmcnt(0)
L_slow_next:
    s_add_u32 s{sB}, s{sB}, 1
    s_cmp_lt_u32 s{sB}, 4
    s_cbranch_scc1 L_slow_blk
''')
    return ''.join(T)

main()
```
